```python
import torch

def _softmax(x, axis=-1):
    return torch.softmax(x, dim=axis)

def _gelu(x):
    return torch.nn.functional.gelu(x, approximate='tanh')

def _silu(x):
    return torch.nn.functional.silu(x)

def _sigmoid(x):
    return torch.sigmoid(x)

def _layernorm(x, axis=-1, eps=1e-05):
    m = x.mean(dim=axis, keepdim=True)
    v = x.var(dim=axis, keepdim=True, unbiased=False)
    return (x - m) / torch.sqrt(v + eps)

def _scatter_add(tgt, idx, src, axis=0):
    return tgt.clone().index_add_(axis, idx, src)

def _segment_sum(src, seg, n):
    out = torch.zeros((n,) + src.shape[1:], dtype=src.dtype)
    return out.index_add_(0, seg, src)

def _pad(x, pw):
    flat = tuple((v for pair in reversed(pw) for v in pair))
    return torch.nn.functional.pad(x, flat)
kernel_name = 'recurrent_scan__ssm_conv_h3__mixer_gmlp__prompt'

def setup_inputs():

    _w = lambda a: (lambda t: t.to(torch.bfloat16) if t.is_floating_point() else t)(torch.as_tensor(a))

    def _A_setup():
        B, S, D = (1, 2048, 576)
        ks = 4
        return {'q': _w((lambda *s: torch.randn(*s, dtype=torch.bfloat16) * 0.05)(B, S, D)), 'k': _w((lambda *s: torch.randn(*s, dtype=torch.bfloat16) * 0.2)(B, S, D)), 'v': _w((lambda *s: torch.randn(*s, dtype=torch.bfloat16) * 0.2)(B, S, D)), 'shift_k': _w((lambda *s: torch.randn(*s, dtype=torch.bfloat16) * 0.2)(D, ks) * 0.5), 'ssm_k': _w((lambda *s: torch.randn(*s, dtype=torch.bfloat16) * 0.2)(D, S) * (1.0 / S ** 0.5)), 'ssm_D': _w((lambda *s: torch.randn(*s, dtype=torch.bfloat16) * 0.2)(D))}
    _A_in = _A_setup()

    def _B_setup():
        B, S, D, F = (1, 2048, 576, 4608)
        Fh = F // 2
        return {'x': _w((lambda *s: torch.randn(*s, dtype=torch.bfloat16) * 0.05)(B, S, D)), 'w_in': _w((lambda *s: torch.randn(*s, dtype=torch.bfloat16) * 0.4)(D, 2 * Fh)), 'w_sp': _w(0.01 * (lambda *s: torch.randn(*s, dtype=torch.bfloat16) * 0.4)(S, S)), 'b_sp': _w(1.0 + 0.01 * (lambda *s: torch.randn(*s, dtype=torch.bfloat16) * 0.1)(S)), 'w_out': _w((lambda *s: torch.randn(*s, dtype=torch.bfloat16) * 0.1)(Fh, D))}
    _B_in = _B_setup()
    return {'A_q': _A_in['q'], 'A_k': _A_in['k'], 'A_v': _A_in['v'], 'A_shift_k': _A_in['shift_k'], 'A_ssm_k': _A_in['ssm_k'], 'A_ssm_D': _A_in['ssm_D'], 'B_x': _B_in['x'], 'B_w_in': _B_in['w_in'], 'B_w_sp': _B_in['w_sp'], 'B_b_sp': _B_in['b_sp'], 'B_w_out': _B_in['w_out']}

def reference(A_q, A_k, A_v, A_shift_k, A_ssm_k, A_ssm_D, B_x, B_w_in, B_w_sp, B_b_sp, B_w_out):

    def _A_ref(q, k, v, shift_k, ssm_k, ssm_D):
        B, S, D = q.shape
        ks = shift_k.shape[-1]
        k_pad = _pad(k, ((0, 0), (ks - 1, 0), (0, 0)))
        k_shift = torch.zeros_like(k)
        for t in range(ks):
            k_shift = k_shift + k_pad[:, t:t + S, :] * shift_k[:, ks - 1 - t][None, None, :]
        kv = k_shift * v
        L = 2 * S
        kv_pad = _pad(kv, ((0, 0), (0, S), (0, 0)))
        kf_pad = _pad(ssm_k, ((0, 0), (0, S)))
        kv_f = (lambda x, axes=(-2, -1): torch.fft.rfft2(x.float(), dim=axes))(kv_pad[:, None, :, :], axes=(1, 2))
        kf_f = (lambda x, axes=(-2, -1): torch.fft.rfft2(x.float(), dim=axes))(kf_pad[:, None, :], axes=(1, 2))
        kf_f = (lambda x, *d: x.permute(*d))(kf_f, 1, 2, 0)
        y_f = kv_f * kf_f[None, :, :, :]
        y = (lambda x, s, axes=(-2, -1): torch.fft.irfft2(x, s=s, dim=axes).to(torch.bfloat16))(y_f, (1, L), axes=(1, 2))[:, 0, :S, :]
        y = y + kv * ssm_D[None, None, :]
        return q * y

    def _B_ref(x, w_in, w_sp, b_sp, w_out):
        B, S, D = x.shape
        F = w_in.shape[-1]
        Fh = F // 2
        z = _gelu(torch.einsum('bsd,df->bsf', x, w_in))
        z1 = z[..., :Fh].clone()
        z2 = _layernorm(z[..., Fh:], axis=-1)
        g = torch.einsum('ts,bsf->btf', w_sp, z2) + b_sp[None, :, None]
        return torch.einsum('bsf,fd->bsd', z1 * g, w_out)
    x = A_q
    xn = _layernorm(x, axis=-1)
    s = _A_ref(xn, A_k, A_v, A_shift_k, A_ssm_k, A_ssm_D)
    g = _silu(_B_ref(xn, B_w_in, B_w_sp, B_b_sp, B_w_out))
    return x + s * g
```

```python
import re

def v(i, n=1):
    return f"v{i}" if n == 1 else f"v[{i}:{i+n-1}]"
def s(i, n=1):
    return f"s{i}" if n == 1 else f"s[{i}:{i+n-1}]"
def a(i, n=1):
    return f"a{i}" if n == 1 else f"a[{i}:{i+n-1}]"

_REG = re.compile(r"^(-|abs\()?([vsa])(?:(\d+)|\[(\d+):(\d+)\])\)?$")

def regs_of(tok):
    tok = tok.strip()
    if tok.startswith('-'):
        tok = tok[1:]
    if tok.startswith('|') and tok.endswith('|'):
        tok = tok[1:-1]
    if tok.startswith('abs(') and tok.endswith(')'):
        tok = tok[4:-1]
    if tok == 'vcc':
        return {('s', 'vcc_lo'), ('s', 'vcc_hi')}
    if tok in ('vcc_lo', 'vcc_hi', 'm0', 'exec_lo', 'exec_hi'):
        return {('s', tok)}
    if tok == 'exec':
        return {('s', 'exec_lo'), ('s', 'exec_hi')}
    m = re.match(r"^([vsa])(?:(\d+)|\[(\d+):(\d+)\])$", tok)
    if not m:
        return set()
    k = m.group(1)
    if m.group(2) is not None:
        return {(k, int(m.group(2)))}
    return {(k, i) for i in range(int(m.group(3)), int(m.group(4)) + 1)}

TRANS = ('v_exp_f32', 'v_log_f32', 'v_rcp_f32', 'v_rsq_f32', 'v_sqrt_f32', 'v_sin_f32', 'v_cos_f32', 'v_rcp_iflag_f32')

class Ins:
    __slots__ = ('text', 'op', 'ops', 'mods', 'dst', 'src', 'kind', 'passes', 'srcc', 'dpp', 'label', 'target', 'line')
    def __init__(self, text):
        self.text = text
        self.label = None
        self.target = None
        t = text.split(';')[0].strip()
        if t.endswith(':'):
            self.label = t[:-1]
            self.kind = 'label'; self.op = ''; self.dst = set(); self.src = set(); self.ops = []; self.mods = ''
            self.passes = 0; self.srcc = set(); self.dpp = False
            return
        parts = t.split(None, 1)
        self.op = parts[0]
        rest = parts[1] if len(parts) > 1 else ''
        raw = [x.strip() for x in rest.split(',')] if rest else []
        ops = []
        mods = ''
        for i, r in enumerate(raw):
            if i == len(raw) - 1:
                sp = r.split(None, 1)
                ops.append(sp[0] if sp else '')
                mods = sp[1] if len(sp) > 1 else ''
            else:
                ops.append(r)
        self.ops = ops
        self.mods = mods
        self.passes = 0
        self.srcc = set()
        self.dpp = ('row_' in mods or 'quad_perm' in mods or 'wave_' in mods or 'dpp' in self.op)
        op = self.op
        R = [regs_of(o) for o in ops]
        allr = set().union(*R) if R else set()
        dst = set(); src = set()
        if op.startswith('v_mfma'):
            self.kind = 'mfma'
            dst = R[0]; src = R[1] | R[2] | R[3]; self.srcc = R[3]
            self.passes = 8 if '32x32' in op else 4
        elif op.startswith('v_'):
            self.kind = 'valu'
            base = op.replace('_e32', '').replace('_e64', '').replace('_dpp', '').replace('_sdwa', '')
            if base.startswith('v_cmp'):
                dst = R[0]; src = set().union(*R[1:])
                if base.startswith('v_cmpx'):
                    dst = dst | regs_of('exec')
            elif base in ('v_add_co_u32', 'v_sub_co_u32', 'v_subrev_co_u32'):
                dst = R[0] | R[1]; src = set().union(*R[2:])
            elif base in ('v_addc_co_u32', 'v_subb_co_u32', 'v_subbrev_co_u32'):
                dst = R[0] | R[1]; src = set().union(*R[2:])
            elif base in ('v_permlane32_swap_b32', 'v_permlane16_swap_b32', 'v_swap_b32'):
                dst = R[0] | R[1]; src = R[0] | R[1]
            elif base in ('v_fmac_f32', 'v_dot2c_f32_bf16', 'v_pk_fmac_f16', 'v_writelane_b32'):
                dst = R[0]; src = set().union(*R)
            elif base == 'v_nop':
                pass
            else:
                dst = R[0]; src = set().union(*R[1:]) if len(R) > 1 else set()
                if self.dpp:
                    src = src | R[0]
        elif op.startswith('ds_'):
            self.kind = 'ds'
            if op.startswith('ds_read') or op.startswith('ds_bpermute') or op.startswith('ds_permute') or op.startswith('ds_swizzle') or '_rtn_' in op:
                dst = R[0]; src = set().union(*R[1:])
            else:
                src = allr
        elif op.startswith('buffer_') or op.startswith('global_'):
            self.kind = 'vmem'
            islds = bool(re.search(r'\blds\b', mods)) or '_lds_' in op
            if islds:
                src = allr | {('s', 'm0')}
            elif '_load' in op:
                dst = R[0]; src = set().union(*R[1:])
            elif 'atomic' in op and 'sc0' in mods.split():
                dst = R[0]; src = allr
            elif op in ('buffer_inv', 'buffer_wbl2'):
                pass
            else:
                src = allr
        elif op.startswith('s_load') or op.startswith('s_buffer_load') or op in ('s_memtime', 's_memrealtime'):
            self.kind = 'smem'
            dst = R[0]; src = set().union(*R[1:]) if len(R) > 1 else set()
        elif op.startswith('s_'):
            self.kind = 'salu'
            if op.startswith('s_cbranch') or op == 's_branch':
                self.target = ops[0]
            elif op.startswith('s_cmp') or op in ('s_waitcnt', 's_barrier', 's_nop', 's_endpgm', 's_setprio', 's_sleep', 's_bitcmp0_b32', 's_bitcmp1_b32', 's_set_gpr_idx_off', 's_set_gpr_idx_on'):
                src = allr
            elif 'saveexec' in op:
                dst = R[0] | regs_of('exec'); src = set().union(*R[1:]) | regs_of('exec')
            else:
                dst = R[0]; src = set().union(*R[1:]) if len(R) > 1 else set()
        else:
            self.kind = 'other'
        self.dst = dst; self.src = src

    def states(self):
        if self.kind == 'label':
            return 0
        if self.op == 's_nop':
            return int(self.ops[0], 0) + 1
        return 1

def isv(rs):
    return {r for r in rs if r[0] in 'va'}
def iss(rs):
    return {r for r in rs if r[0] == 's'}

def need(p, c):
    n = 0
    if p.kind == 'label' or c.kind == 'label':
        return 0
    pb = p.op.replace('_e32', '').replace('_e64', '')
    cb = c.op.replace('_e32', '').replace('_e64', '')
    if p.kind == 'valu':
        vd = isv(p.dst); sd = iss(p.dst)
        if c.kind == 'mfma' and vd & c.src:
            n = max(n, 2)
        if pb in TRANS and c.kind in ('valu', 'mfma', 'ds', 'vmem') and vd & c.src:
            n = max(n, 1)
        if c.kind == 'valu':
            if sd & c.src:
                n = max(n, 4 if cb in ('v_readlane_b32', 'v_writelane_b32') else 2)
            if cb.startswith('v_cndmask') and len(c.ops) == 3 and (sd & regs_of('vcc')):
                n = max(n, 2)
            if cb in ('v_readlane_b32', 'v_readfirstlane_b32') and vd & c.src:
                n = max(n, 1)
            if c.dpp and vd & c.src:
                n = max(n, 2)
            if cb.startswith('v_permlane') and vd & c.src:
                n = max(n, 2)
            if ('sdwa' in p.op or 'op_sel' in p.mods or 'dst_sel' in p.mods) and vd & (c.src | c.dst):
                n = max(n, 1)
            if regs_of('exec') & sd:
                n = max(n, 5)
        if c.kind == 'mfma' and regs_of('exec') & sd:
            n = max(n, 4)
        if c.kind == 'vmem' and sd & c.src:
            n = max(n, 5)
        if pb.startswith('v_dot'):
            if vd & (c.src | c.dst):
                same_c = (cb == pb and c.kind == 'valu' and not (vd & (regs_of(c.ops[1]) | regs_of(c.ops[2]))))
                if not same_c:
                    n = max(n, 3)
    if p.kind == 'mfma':
        P = p.passes
        t_ab = {2: 5, 4: 8, 8: 12, 16: 20}[P]
        t_c = {2: 4, 4: 6, 8: 10, 16: 18}[P]
        t_war = {2: 1, 4: 3, 8: 7, 16: 15}[P]
        if c.kind == 'mfma':
            ab = regs_of(c.ops[1]) | regs_of(c.ops[2])
            if p.dst & ab:
                n = max(n, t_ab)
            if p.dst & c.srcc:
                if not (p.dst == c.srcc and c.passes == P):
                    n = max(n, t_c)
            if p.dst & c.dst and p.dst != c.srcc:
                n = max(n, t_ab)
        elif c.kind in ('valu', 'vmem', 'ds'):
            if p.dst & (c.src | c.dst):
                n = max(n, t_ab)
            if c.kind == 'valu' and p.srcc & c.dst:
                n = max(n, t_war)
    if p.kind == 'vmem' and ('store_dwordx4' in p.op or 'store_dwordx3' in p.op):
        data = regs_of(p.ops[0]) if p.op.startswith('buffer') else regs_of(p.ops[1])
        if data & c.dst:
            n = max(n, 2 if c.kind in ('valu', 'mfma') else 1)
    if p.kind == 'salu' and ('s', 'm0') in p.dst and c.kind in ('vmem', 'ds') and ('s', 'm0') in c.src:
        n = max(n, 1)
    return n

WINDOW = 24

class Kernel:
    def __init__(self, name, vgpr=256, sgpr=102, accum=None, wg_y=False):
        self.name = name
        self.items = []
        self.vgpr = vgpr; self.sgpr = sgpr; self.accum = accum
        self.nlabel = 0
        self.wg_y = wg_y
    def __call__(self, text):
        for line in text.strip('\n').split('\n'):
            line = line.strip()
            if not line or line.startswith(';'):
                self.items.append(('c', line))
                continue
            self.items.append(('i', Ins(line)))
    def label(self, stem='L'):
        self.nlabel += 1
        return f"{self.name}_{stem}{self.nlabel}"
    def comment(self, t):
        self.items.append(('c', '; ' + t))

    def _fix(self):
        ins = [x[1] for x in self.items if x[0] == 'i']
        out = []
        nins = 0
        def required(hist, c):
            d = 0
            req = 0
            for p in reversed(hist):
                if p.kind == 'label':
                    continue
                k = need(p, c)
                if k > d:
                    req = max(req, k - d)
                d += p.states()
                if d >= WINDOW:
                    break
            return req
        labels = {}
        seq = []
        for it in self.items:
            if it[0] == 'i':
                c = it[1]
                r = required(seq[-64:], c) if c.kind != 'label' else 0
                while r > 0:
                    k = min(r, 16)
                    nop = Ins(f"s_nop {k-1}")
                    seq.append(nop); out.append(('i', nop)); r -= k; nins += 1
                seq.append(c)
                if c.label:
                    labels[c.label] = len(seq) - 1
            out.append(it)
        changed = True
        while changed:
            changed = False
            seq = [x[1] for x in out if x[0] == 'i']
            labels = {c.label: i for i, c in enumerate(seq) if c.label}
            for bi, b in enumerate(seq):
                if b.target is None:
                    continue
                ti = labels[b.target]
                hist = seq[max(0, bi - 63):bi + 1]
                h = list(hist)
                d = 0
                worst = 0
                for c in seq[ti:ti + 64]:
                    if c.kind == 'label':
                        continue
                    dd = d
                    for p in reversed(hist):
                        if p.kind == 'label':
                            continue
                        k = need(p, c)
                        if k > dd:
                            worst = max(worst, k - dd)
                        dd += p.states()
                        if dd >= WINDOW:
                            break
                    d += c.states()
                    if d >= WINDOW or c.op in ('s_branch', 's_endpgm'):
                        break
                if worst > 0:
                    idx = [i for i, x in enumerate(out) if x[0] == 'i' and x[1] is b][0]
                    out.insert(idx, ('i', Ins(f"s_nop {worst-1}")))
                    nins += 1
                    changed = True
                    break
        self.items = out
        return nins

    def check_waits(self):
        seq = [x[1] for x in self.items if x[0] == 'i']
        labels = {c.label: i for i, c in enumerate(seq) if c.label}
        errs = []
        vm = []; lg = []
        taken = {}
        i = 0
        steps = 0
        while i < len(seq) and steps < 2000000:
            c = seq[i]; steps += 1
            if c.kind == 'label':
                i += 1; continue
            if c.op == 's_endpgm':
                vm = []; lg = []
                i += 1; continue
            if c.op == 's_waitcnt':
                t = c.text
                m = re.search(r'vmcnt\((\d+)\)', t)
                if m:
                    n = int(m.group(1))
                    while len(vm) > n: vm.pop(0)
                m = re.search(r'lgkmcnt\((\d+)\)', t)
                if m:
                    n = int(m.group(1))
                    if any(x[1] == 'smem' for x in lg):
                        if n == 0: lg = []
                    else:
                        while len(lg) > n: lg.pop(0)
                i += 1; continue
            touched = c.src | c.dst
            for q, nm in ((vm, 'vm'), (lg, 'lgkm')):
                for (d, kind, txt) in q:
                    if d & touched:
                        errs.append(f"{self.name}: '{c.text}' touches pending {nm} result of '{txt}'")
            if c.kind == 'vmem' and c.op not in ('buffer_inv', 'buffer_wbl2'):
                vm.append((c.dst, 'vm', c.text))
                if len(vm) > 63: errs.append(f"{self.name}: vmcnt overflow at {c.text}")
            elif c.kind == 'ds':
                lg.append((c.dst, 'ds', c.text))
                if len(lg) > 15: errs.append(f"{self.name}: lgkmcnt overflow (>15) at {c.text}")
            elif c.kind == 'smem':
                lg.append((c.dst, 'smem', c.text))
            if c.target is not None:
                ti = labels[c.target]
                if ti <= i:
                    k = taken.get(i, 0)
                    if k < 2:
                        taken[i] = k + 1
                        i = ti; continue
                elif c.op == 's_branch':
                    i = ti; continue
            i += 1
        return errs

    def maxregs(self):
        mv = ms = ma = -1
        for x in self.items:
            if x[0] != 'i': continue
            for r in x[1].src | x[1].dst:
                if isinstance(r[1], int):
                    if r[0] == 'v': mv = max(mv, r[1])
                    if r[0] == 's': ms = max(ms, r[1])
                    if r[0] == 'a': ma = max(ma, r[1])
        return mv, ms, ma

    def text(self, check=True):
        n = self._fix()
        errs = self.check_waits() if check else []
        if errs:
            seen = []
            for e in errs:
                if e not in seen: seen.append(e)
            raise RuntimeError("waitcnt problems:\n" + "\n".join(seen[:30]))
        mv, ms, ma = self.maxregs()
        nv = mv + 1
        acc = (nv + 3) // 4 * 4
        tot = acc + ma + 1 if ma >= 0 else nv
        tot = max(tot, 8)
        acc = max(acc, 4)
        L = [f".globl {self.name}", ".p2align 8", f".type {self.name},@function", f"{self.name}:"]
        for x in self.items:
            if x[0] == 'c':
                L.append("    " + x[1] if x[1] else "")
            elif x[1].label:
                L.append(x[1].text)
            else:
                L.append("    " + x[1].text)
        body = "\n".join(L)
        kd = [f".amdhsa_kernel {self.name}",
              f"  .amdhsa_next_free_vgpr {tot}",
              f"  .amdhsa_next_free_sgpr {max(ms + 1, 8)}",
              f"  .amdhsa_accum_offset {acc}",
              "  .amdhsa_group_segment_fixed_size 0",
              "  .amdhsa_kernarg_size 112",
              "  .amdhsa_user_sgpr_count 2",
              "  .amdhsa_user_sgpr_kernarg_segment_ptr 1",
              "  .amdhsa_system_sgpr_workgroup_id_x 1"]
        if self.wg_y:
            kd.append("  .amdhsa_system_sgpr_workgroup_id_y 1")
        kd.append(".end_amdhsa_kernel")
        self.info = dict(vgpr=tot, sgpr=ms + 1, nops=n, nins=sum(1 for x in self.items if x[0] == 'i'))
        return body, "\n".join(kd)

def build_file(header_lines, launches, kernels, path):
    out = list(header_lines)
    for (k, g, b, l) in launches:
        out.append(f"; @launch kernel={k.name} grid=({g},1,1) block=({b},1,1) lds={l}")
    out.append('.amdgcn_target "amdgcn-amd-amdhsa--gfx950"')
    out.append(".text")
    kds = []
    for k in kernels:
        body, kd = k.text(check=getattr(k,"check",True))
        out.append(body)
        kds.append(kd)
        print(f"{k.name}: {k.info}")
    out.append('.section .rodata,"a"')
    for kd in kds:
        out.append(".p2align 6")
        out.append(kd)
    open(path, 'w').write("\n".join(out) + "\n")

class Alloc:
    def __init__(self, start=0, limit=256):
        self.n = start; self.limit = limit
    def get(self, n=1, align=None):
        al = align or (4 if n >= 4 else (2 if n >= 2 else 1))
        self.n = (self.n + al - 1) // al * al
        r = self.n
        self.n += n
        assert self.n <= self.limit, f"out of registers: {self.n}"
        return r
```

```python
from asmgen import *

WS_Z1   = 0x0000000
WS_Z2T  = 0x1000000
WS_P    = 0x2000000
WS_XN   = 0x3000000
WS_KVT  = 0x3400000
WS_YT   = 0x3800000
WS_WOT  = 0x3C00000
WS_STAT = 0x4000000
WS_STAMP = 0x4800000
WS_SIZE = 268435456

KA = dict(q=0, k=8, v=16, shk=24, ssmk=32, ssmD=40, bx=48, win=56, wsp=64, bsp=72, wout=80, out=88, dbg=96, ws=104)

def srd(k, sr, base_lo, base_hi, off, size):
    if off == 0:
        k(f"s_mov_b32 s{sr}, s{base_lo}")
        k(f"s_mov_b32 s{sr+1}, s{base_hi}")
    elif off > 0:
        k(f"s_add_u32 s{sr}, s{base_lo}, {off}")
        k(f"s_addc_u32 s{sr+1}, s{base_hi}, 0")
    else:
        k(f"s_sub_u32 s{sr}, s{base_lo}, {-off}")
        k(f"s_subb_u32 s{sr+1}, s{base_hi}, 0")
    k(f"s_mov_b32 s{sr+2}, {size}")
    k(f"s_mov_b32 s{sr+3}, 0x20000")

def rnd2(k, x0, x1, tmp):
    k(f"v_cvt_pk_bf16_f32 v{tmp}, v{x0}, v{x1}")
    k(f"v_lshlrev_b32 v{x0}, 16, v{tmp}")
    k(f"v_and_b32 v{x1}, 0xffff0000, v{tmp}")


class Stamps:
    def __init__(self, k, on, s_wave, wg=77):
        self.k = k; self.on = on; self.n = 0; self.s_wave = s_wave; self.wg = wg
        if on:
            k(f"s_load_dwordx2 s[68:69], s[0:1], {KA['ws']}")
            k("s_memrealtime s[96:97]")
    def __call__(self, idx):
        if self.on:
            self.k(f"s_memtime s[{70 + 2 * idx}:{71 + 2 * idx}]")
    def flush(self, Lend, vtmp):
        if not self.on: return
        k = self.k
        k("s_waitcnt vmcnt(0)")
        k("s_memtime s[84:85]")
        k("s_memrealtime s[98:99]")
        k("s_waitcnt lgkmcnt(0)")
        k("s_sub_u32 s98, s98, s96")
        k(f"s_cmp_lg_u32 s2, {self.wg}")
        k(f"s_cbranch_scc1 {Lend}")
        srd(k, 88, 68, 69, WS_STAMP, 256)
        k(f"s_lshl_b32 s92, s{self.s_wave}, 5")
        k(f"v_mov_b32 v{vtmp}, s92")
        k("s_mov_b64 exec, 1")
        for i in range(1, 8):
            k(f"s_sub_u32 s93, s{70 + 2 * i}, s70")
            k(f"v_mov_b32 v{vtmp + 1}, s93")
            k(f"buffer_store_dword v{vtmp + 1}, v{vtmp}, s[88:91], 0 offen offset:{4 * i}")
        k(f"v_mov_b32 v{vtmp + 1}, s98")
        k(f"buffer_store_dword v{vtmp + 1}, v{vtmp}, s[88:91], 0 offen")
```

```python
from common import *
from k2 import getopt

def kv_job(k, va, s_tile, sK, sV, sSH, sKV, vlane, LB, s_tmp, s_t2, nwaves_log=2, s_wq=None):
    t = va.get(); t2 = va.get(); vrow = va.get(); vch = va.get(); voff = va.get()
    kk = va.get(40, 4)
    sh = va.get(16, 4)
    w = va.get(8, 4); acc_ = va.get(8, 4); pr = va.get(8, 4); tp = va.get(4, 4)
    k(f"s_mul_i32 s{s_tmp}, s{s_tile}, 7282")
    k(f"s_lshr_b32 s{s_tmp}, s{s_tmp}, 16")
    k(f"s_mul_i32 s{s_t2}, s{s_tmp}, 9")
    k(f"s_sub_u32 s{s_t2}, s{s_tile}, s{s_t2}")
    k(f"s_lshl_b32 s{s_tmp}, s{s_tmp}, 6")
    k(f"s_lshl_b32 s{s_t2}, s{s_t2}, 6")
    k(f"s_lshl_b32 s70, s{s_wq}, 6")
    k(f"v_add_u32 v{t}, s70, v{vlane}")
    k(f"v_and_b32 v{vch}, 7, v{t}")
    k(f"v_lshrrev_b32 v{vrow}, 3, v{t}")
    k(f"v_add_u32 v{t}, s{s_tmp}, v{vrow}")
    k(f"v_mul_u32_u24 v{voff}, 1152, v{t}")
    k(f"v_lshl_add_u32 v{voff}, v{vch}, 4, v{voff}")
    k(f"s_lshl_b32 s70, s{s_t2}, 1")
    k(f"v_add_u32 v{voff}, s70, v{voff}")
    for it in range(2):
        for j in range(4):
            so = it * 32 * 1152
            k(f"s_mov_b32 s70, {so}")
            if it == 0 and j > 0:
                k(f"v_cmp_gt_u32 vcc, {j}, v{t}")
                k(f"v_mov_b32 v{t2}, 0x7ff00000")
                k(f"v_cndmask_b32 v{t2}, v{voff}, v{t2}, vcc")
                k(f"buffer_load_dwordx4 {v(kk + it * 16 + 4 * j, 4)}, v{t2}, s[{sK}:{sK+3}], s70 offen offset:{(3 - j) * 1152}")
            else:
                k(f"buffer_load_dwordx4 {v(kk + it * 16 + 4 * j, 4)}, v{voff}, s[{sK}:{sK+3}], s70 offen offset:{(3 - j) * 1152}")
        k(f"buffer_load_dwordx4 {v(kk + 32 + 4 * it, 4)}, v{voff}, s[{sV}:{sV+3}], s70 offen")
    k(f"v_lshlrev_b32 v{t2}, 6, v{vch}")
    k(f"s_lshl_b32 s70, s{s_t2}, 3")
    for j in range(4):
        k(f"buffer_load_dwordx4 {v(sh + 4 * j, 4)}, v{t2}, s[{sSH}:{sSH+3}], s70 offen offset:{16 * j}")
    k("s_waitcnt vmcnt(0)")
    def unpack8(dst, src):
        for c in range(4):
            k(f"v_lshlrev_b32 v{dst + 2 * c}, 16, v{src + c}")
            k(f"v_and_b32 v{dst + 2 * c + 1}, 0xffff0000, v{src + c}")
    def rnd8(x):
        for c in range(4): k(f"v_cvt_pk_bf16_f32 v{tp + c}, v{x + 2 * c}, v{x + 2 * c + 1}")
        unpack8(x, tp)
    for it in range(2):
        for j in (3, 2, 1, 0):
            for e in range(8):
                src = sh + 2 * e + (j >> 1)
                if j & 1: k(f"v_and_b32 v{w + e}, 0xffff0000, v{src}")
                else: k(f"v_lshlrev_b32 v{w + e}, 16, v{src}")
            unpack8(pr, kk + it * 16 + 4 * j)
            dst = acc_ if j == 3 else pr
            for e in range(8): k(f"v_mul_f32 v{dst + e}, v{pr + e}, v{w + e}")
            rnd8(dst)
            if j != 3:
                for e in range(8): k(f"v_add_f32 v{acc_ + e}, v{acc_ + e}, v{pr + e}")
                rnd8(acc_)
        unpack8(pr, kk + 32 + 4 * it)
        for e in range(8): k(f"v_mul_f32 v{acc_ + e}, v{acc_ + e}, v{pr + e}")
        for c in range(4): k(f"v_cvt_pk_bf16_f32 v{kk + it * 16 + c}, v{acc_ + 2 * c}, v{acc_ + 2 * c + 1}")
        k(f"v_mul_u32_u24 v{t2}, {8 * 144}, v{vch}")
        k(f"v_sub_u32 v{t}, {63 - 32 * it}, v{vrow}")
        k(f"v_lshl_add_u32 v{t2}, v{t}, 1, v{t2}")
        for e in range(8):
            op = "ds_write_b16_d16_hi" if e & 1 else "ds_write_b16"
            k(f"{op} v{t2}, v{kk + it * 16 + e // 2} offset:{LB + e * 144}")
        k("s_waitcnt lgkmcnt(0)")
    k("s_barrier")
    k(f"v_mul_u32_u24 v{t2}, 144, v{vrow}")
    k(f"v_lshl_add_u32 v{t2}, v{vch}, 4, v{t2}")
    for it in range(2):
        k(f"ds_read_b128 {v(kk + 4 * it, 4)}, v{t2} offset:{LB + it * 32 * 144}")
    k(f"v_add_u32 v{t}, s{s_t2}, v{vrow}")
    k(f"v_lshlrev_b32 v{t}, 12, v{t}")
    k(f"v_lshl_add_u32 v{t}, v{vch}, 4, v{t}")
    k(f"s_sub_u32 s70, 1984, s{s_tmp}")
    k(f"s_lshl_b32 s70, s70, 1")
    k(f"v_add_u32 v{t}, s70, v{t}")
    k(f"s_mov_b32 s70, {32 * 4096}")
    k("s_waitcnt lgkmcnt(0)")
    k(f"buffer_store_dwordx4 {v(kk, 4)}, v{t}, s[{sKV}:{sKV+3}], 0 offen")
    k(f"buffer_store_dwordx4 {v(kk + 4, 4)}, v{t}, s[{sKV}:{sKV+3}], s70 offen")

def wo_job(k, va, s_tile, sWO, sWF, vlane, vn, vg, LB, s_tmp, s_t2, s_wq):
    t = va.get(); t2 = va.get(); t3 = va.get(); ld = va.get(12, 4); fr = va.get(12, 4)
    k(f"s_lshr_b32 s{s_tmp}, s{s_tile}, 2")
    k(f"s_and_b32 s{s_t2}, s{s_tile}, 3")
    k(f"s_mul_i32 s70, s{s_tmp}, 7282")
    k(f"s_lshr_b32 s70, s70, 16")
    k(f"s_mul_i32 s71, s70, 9")
    k(f"s_sub_u32 s71, s{s_tmp}, s71")
    k(f"s_lshr_b32 s72, s71, 2")
    k(f"s_lshl_b32 s73, s70, 1")
    k(f"s_add_u32 s72, s72, s73")
    k(f"s_mul_i32 s72, s72, 144")
    k(f"s_and_b32 s74, s71, 3")
    k(f"s_lshl_b32 s74, s74, 5")
    k(f"s_add_u32 s72, s72, s74")
    k(f"s_mul_i32 s73, s73, 144")
    k(f"s_add_u32 s73, s73, 128")
    k(f"s_cmp_eq_u32 s71, 8")
    k(f"s_cselect_b32 s72, s73, s72")
    k(f"s_cselect_b32 s73, 144, 16")
    k(f"s_mul_i32 s74, s{s_t2}, 288")
    k(f"s_mov_b32 s75, 3641")
    for j in range(3):
        k(f"s_lshl_b32 s76, s{s_wq}, 6")
        k(f"s_add_u32 s76, s76, {256 * j}")
        k(f"v_add_u32 v{t}, s76, v{vlane}")
        k(f"v_mul_lo_u32 v{t2}, v{t}, s75")
        k(f"v_lshrrev_b32 v{t2}, 16, v{t2}")
        k(f"v_mul_u32_u24 v{t3}, 18, v{t2}")
        k(f"v_sub_u32 v{t3}, v{t}, v{t3}")
        k(f"v_lshrrev_b32 v{fr}, 4, v{t2}")
        k(f"v_mul_lo_u32 v{fr}, v{fr}, s73")
        k(f"v_and_b32 v{t2}, 15, v{t2}")
        k(f"v_add3_u32 v{t2}, v{t2}, v{fr}, s72")
        k(f"v_mul_u32_u24 v{t2}, 1152, v{t2}")
        k(f"v_lshl_add_u32 v{t2}, v{t3}, 4, v{t2}")
        k(f"v_add_u32 v{t2}, s74, v{t2}")
        if j == 2:
            k(f"v_cmp_gt_u32 vcc, 576, v{t}")
            k(f"v_mov_b32 v{t3}, 0x7ff00000")
            k(f"v_cndmask_b32 v{t2}, v{t3}, v{t2}, vcc")
        k(f"buffer_load_dwordx4 {v(ld + 4 * j, 4)}, v{t2}, s[{sWO}:{sWO+3}], 0 offen")
        k(f"v_lshlrev_b32 v{fr + 1 + j}, 4, v{t}")
    k("s_waitcnt vmcnt(0)")
    for j in range(3):
        if j == 2:
            k(f"s_cmp_eq_u32 s{s_wq}, 0")
            k(f"s_cselect_b64 exec, -1, 0") if False else None
        k(f"ds_write_b128 v{fr + 1 + j}, {v(ld + 4 * j, 4)} offset:{LB}")
    k("s_waitcnt lgkmcnt(0)")
    k("s_barrier")
    k(f"v_lshrrev_b32 v{t}, 2, v{vn}")
    k(f"v_lshl_add_u32 v{t}, v{vg}, 2, v{t}")
    k(f"v_mul_u32_u24 v{t}, 288, v{t}")
    k(f"v_and_b32 v{t2}, 3, v{vn}")
    k(f"v_lshl_add_u32 v{t}, v{t2}, 3, v{t}")
    k(f"s_lshl_b32 s76, s{s_wq}, 5")
    k(f"v_add_u32 v{t2}, s76, v{t}")
    for j in range(2):
        k(f"ds_read_b64_tr_b16 {v(fr + 4 * j, 2)}, v{t2} offset:{LB + 128 * j}")
        k(f"ds_read_b64_tr_b16 {v(fr + 4 * j + 2, 2)}, v{t2} offset:{LB + 128 * j + 16 * 288}")
    k(f"ds_read_b64_tr_b16 {v(fr + 8, 2)}, v{t} offset:{LB + 256}")
    k(f"ds_read_b64_tr_b16 {v(fr + 10, 2)}, v{t} offset:{LB + 256 + 16 * 288}")
    k(f"s_mul_i32 s76, s{s_t2}, 9")
    k(f"s_mul_i32 s76, s76, 72")
    k(f"s_add_u32 s76, s76, s{s_tmp}")
    k(f"s_lshl_b32 s76, s76, 10")
    k(f"v_lshlrev_b32 v{t}, 4, v{vlane}")
    k(f"v_add_u32 v{t}, s76, v{t}")
    k(f"s_mul_i32 s77, s{s_wq}, {72 * 1024}")
    k(f"s_add_u32 s78, s77, {4 * 72 * 1024}")
    k(f"s_mov_b32 s79, {8 * 72 * 1024}")
    k("s_waitcnt lgkmcnt(0)")
    k(f"buffer_store_dwordx4 {v(fr, 4)}, v{t}, s[{sWF}:{sWF+3}], s77 offen")
    k(f"buffer_store_dwordx4 {v(fr + 4, 4)}, v{t}, s[{sWF}:{sWF+3}], s78 offen")
    k(f"buffer_store_dwordx4 {v(fr + 8, 4)}, v{t}, s[{sWF}:{sWF+3}], s79 offen")

def gen_k0(name="k0_kernel"):
    k = Kernel(name)
    Lend = k.label('end')
    k("s_cmp_ge_u32 s2, 288"); k(f"s_cbranch_scc1 {Lend}")
    k(f"s_load_dwordx4 s[4:7], s[0:1], {KA['k']}")
    k(f"s_load_dwordx2 s[40:41], s[0:1], {KA['shk']}")
    k(f"s_load_dwordx2 s[42:43], s[0:1], {KA['wout']}")
    k(f"s_load_dwordx2 s[44:45], s[0:1], {KA['ws']}")
    va = Alloc(1)
    vlane = va.get(); vn = va.get(); vg = va.get(); vt = va.get()
    k(f"v_lshrrev_b32 v{vt}, 6, v0"); k(f"v_and_b32 v{vlane}, 63, v0"); k(f"v_readfirstlane_b32 s30, v{vt}")
    k(f"v_and_b32 v{vn}, 15, v{vlane}"); k(f"v_lshrrev_b32 v{vg}, 4, v{vlane}")
    k("s_waitcnt lgkmcnt(0)")
    srd(k, 8, 4, 5, -3456, 2048 * 1152 + 3456)
    srd(k, 12, 6, 7, 0, 2048 * 1152)
    srd(k, 16, 40, 41, 0, 576 * 8)
    srd(k, 20, 44, 45, WS_KVT, 576 * 4096)
    srd(k, 24, 42, 43, 0, 2304 * 1152)
    srd(k, 32, 44, 45, WS_WOT, 2304 * 1152)
    from k1 import SYNC
    Lz = k.label('nz')
    k("s_cmp_lg_u32 s2, 0"); k(f"s_cbranch_scc1 {Lz}")
    srd(k, 48, 44, 45, SYNC + 0x4000, 36 * 256)
    k(f"v_lshlrev_b32 v{vt}, 8, v0"); k(f"v_mov_b32 v{vn + 10}, 0")
    k(f"buffer_store_dword v{vn + 10}, v{vt}, s[48:51], 0 offen")
    k(f"{Lz}:")
    kv_job(k, va, 2, 8, 12, 16, 20, vlane, 0, 36, 37, s_wq=30)
    wo_job(k, va, 2, 24, 32, vlane, vn, vg, 16384, 36, 37, 30)
    k(f"{Lend}:"); k("s_endpgm")
    k.lds = 16384 + 12288
    return k

if __name__ == "__main__":
    import sys
    k = gen_k0()
    build_file(["; k0 test"], [(k, 288, 256, k.lds)], [k], sys.argv[1])
```

```python
from common import *
from k2 import getopt
import struct

WU = 18432; XS = 16384
STAT2 = WS_STAT
XSTAT = WS_STAT + 0x100000
CSP   = WS_STAT + 0x140000
SYNC  = WS_STAT + 0x180000
D0 = -2.302208198; D1 = -0.1029432397
OOB = 0x7ff00000
def f2u(x): return struct.unpack('<I', struct.pack('<f', x))[0]

def gelu_n(k, xs, ts, sD1, vD0):
    for x, t in zip(xs, ts): k(f"v_mul_f32 v{t}, v{x}, v{x}")
    for x, t in zip(xs, ts): k(f"v_fma_f32 v{t}, v{t}, s{sD1}, v{vD0}")
    for x, t in zip(xs, ts): k(f"v_mul_f32 v{t}, v{t}, v{x}")
    for x, t in zip(xs, ts): k(f"v_exp_f32 v{t}, v{t}")
    for x, t in zip(xs, ts): k(f"v_add_f32 v{t}, 1.0, v{t}")
    for x, t in zip(xs, ts): k(f"v_rcp_f32 v{t}, v{t}")
    for x, t in zip(xs, ts): k(f"v_mul_f32 v{x}, v{x}, v{t}")

def rnd_n(k, xs, ts):
    for j in range(0, len(xs), 2): k(f"v_cvt_pk_bf16_f32 v{ts[j // 2]}, v{xs[j]}, v{xs[j + 1]}")
    for j in range(0, len(xs), 2):
        k(f"v_lshlrev_b32 v{xs[j]}, 16, v{ts[j // 2]}")
        k(f"v_and_b32 v{xs[j + 1]}, 0xffff0000, v{ts[j // 2]}")

def ln_finish(k, vs, vq, n, t0):
    k(f"v_mul_f32 v{vs}, {hex(f2u(1.0 / n))}, v{vs}")
    k(f"v_mul_f32 v{vq}, {hex(f2u(1.0 / n))}, v{vq}")
    k(f"v_fma_f32 v{vq}, -v{vs}, v{vs}, v{vq}")
    k(f"v_max_f32 v{vq}, 0, v{vq}")
    rnd2(k, vs, vq, t0)
    k(f"v_add_f32 v{vq}, {hex(f2u(1e-5))}, v{vq}")
    k(f"v_cvt_pk_bf16_f32 v{t0}, v{vq}, v{vq}")
    k(f"v_lshlrev_b32 v{vq}, 16, v{t0}")
    k(f"v_sqrt_f32 v{vq}, v{vq}")
    k(f"v_cvt_pk_bf16_f32 v{t0}, v{vq}, v{vq}")
    k(f"v_lshlrev_b32 v{vq}, 16, v{t0}")
    k(f"v_rcp_f32 v{vq}, v{vq}")

class VMQ:
    def __init__(self, k): self.k = k; self.q = []
    def __call__(self, text, tag=None):
        self.k(text); self.q.append(tag)
    def wait(self, tag):
        idx = max(i for i, t in enumerate(self.q) if t == tag)
        self.k(f"s_waitcnt vmcnt({len(self.q) - 1 - idx})")

def gen_k1(name="k1_kernel", opts=()):
    k = Kernel(name); k.check = not [o for o in opts if o in ('stamp','nomfma')]
    NUW = 5; NX = 3
    LAM = getopt(opts, 'LAM', 10)
    R = 9
    CS = 0
    XM = 1280; XR = 1792
    ZSL = 2304
    LCNT = 4352
    WBASE = 4608
    XBASE = WBASE + NUW * WU
    LDS = XBASE + NX * XS
    sX, sWi, sZ1, sZ2, sST, sDB, sWS = 8, 12, 16, 20, 24, 44, 48
    s_wave, s_role, s_wq, s_r0, s_cg, s_cnt, s_tmp, s_off, s_offx, s_t2, s_k, s_rb, sD1, sONE, s_rot, s_idx, s_n, s_t3 = \
        28, 29, 30, 31, 32, 33, 34, 35, 36, 37, 38, 39, 52, 53, 56, 57, 58, 59
    Lend = k.label('end'); Lhelp = k.label('helper'); Lepi = k.label('epi')
    k(f"s_cmp_ge_u32 s2, 256")
    k(f"s_cbranch_scc1 {Lend}")
    k(f"s_load_dwordx2 s[4:5], s[0:1], {KA['q']}")
    k(f"s_load_dwordx2 s[6:7], s[0:1], {KA['win']}")
    k(f"s_load_dwordx4 s[40:43], s[0:1], {KA['dbg']}")
    va = Alloc(1)
    vlane = va.get(); vt = va.get(); vt2 = va.get(); vt3 = va.get(); vn = va.get(); vg = va.get(); vl16 = va.get()
    vtr = va.get()
    k(f"v_lshrrev_b32 v{vt}, 6, v0")
    k(f"v_and_b32 v{vlane}, 63, v0")
    k(f"v_readfirstlane_b32 s{s_wave}, v{vt}")
    k(f"v_and_b32 v{vn}, 15, v{vlane}")
    k(f"v_lshrrev_b32 v{vg}, 4, v{vlane}")
    k(f"v_lshlrev_b32 v{vl16}, 4, v{vlane}")
    k(f"s_lshr_b32 s{s_role}, s{s_wave}, 2")
    k(f"s_and_b32 s{s_wq}, s{s_wave}, 3")
    k(f"s_and_b32 s{s_tmp}, s2, 1")
    k(f"s_lshl_b32 s{s_tmp}, s{s_tmp}, 3")
    k(f"s_bfe_u32 s{s_rb}, s2, 0x30003")
    k(f"s_add_u32 s{s_rb}, s{s_rb}, s{s_tmp}")
    k(f"s_lshl_b32 s{s_r0}, s{s_rb}, 7")
    k(f"s_bfe_u32 s{s_tmp}, s2, 0x20001")
    k(f"s_lshl_b32 s{s_tmp}, s{s_tmp}, 2")
    k(f"s_lshr_b32 s{s_cg}, s2, 6")
    k(f"s_add_u32 s{s_cg}, s{s_cg}, s{s_tmp}")
    k(f"s_sub_u32 s{s_tmp}, s{s_rb}, 9")
    k(f"s_cmp_lt_u32 s{s_rb}, 9")
    k(f"s_cselect_b32 s{s_rot}, s{s_rb}, s{s_tmp}")
    k(f"s_mov_b32 s{s_off}, 0"); k(f"s_mov_b32 s{s_offx}, 0"); k(f"s_mov_b32 s{s_cnt}, 0")
    k(f"s_mov_b32 s{sD1}, {hex(f2u(D1))}")
    k(f"s_mov_b32 s{sONE}, 0x3f803f80")
    k(f"v_lshrrev_b32 v{vt}, 2, v{vn}")
    k(f"v_and_b32 v{vt2}, 1, v{vg}")
    k(f"v_lshl_add_u32 v{vt}, v{vt2}, 2, v{vt}")
    k(f"v_lshrrev_b32 v{vt2}, 1, v{vg}")
    k(f"v_lshl_add_u32 v{vt}, v{vt2}, 4, v{vt}")
    k(f"v_mul_u32_u24 v{vt}, 288, v{vt}")
    k(f"v_and_b32 v{vt2}, 3, v{vn}")
    k(f"v_lshl_add_u32 v{vtr}, v{vt2}, 3, v{vt}")
    k(f"v_add_u32 v{vtr}, {WBASE}, v{vtr}")
    st = Stamps(k, 'stamp' in opts, s_wave)
    for i_ in range(7): st(i_)
    acc = va.get(144, 4)
    A2 = lambda i, mu: acc + (i * 2 + mu) * 4
    A1 = lambda i, mu: acc + 72 + (i * 2 + mu) * 4
    save = va.n
    k(f"s_cmp_eq_u32 s{s_role}, 1")
    k(f"s_cbranch_scc1 {Lhelp}")

    vWa = va.get(); vXb = va.get(); vX = va.get(); vX1 = va.get()
    ring = va.get(4 * R, 4); xreg = va.get(16, 4)
    k(f"v_lshrrev_b32 v{vt}, 2, v{vn}")
    k(f"v_and_b32 v{vt2}, 3, v{vn}")
    k(f"v_lshl_add_u32 v{vt}, v{vt}, 3, v{vt2}")
    k(f"v_lshlrev_b32 v{vt}, 7, v{vt}")
    k(f"v_xor_b32 v{vt2}, v{vg}, v{vn}")
    k(f"v_and_b32 v{vt2}, 7, v{vt2}")
    k(f"v_lshl_add_u32 v{vt}, v{vt2}, 4, v{vt}")
    k(f"s_lshl_b32 s{s_tmp}, s{s_wq}, 12")
    k(f"s_add_u32 s{s_tmp}, s{s_tmp}, {XBASE}")
    k(f"v_add_u32 v{vXb}, s{s_tmp}, v{vt}")
    for i in range(144):
        k(f"v_mov_b32 v{acc+i}, 0")
    NRD = 38
    def rd(q):
        u, j = divmod(q, NRD)
        if j == 0:
            k("s_barrier")
            if u % 2 == 0:
                k(f"v_add_u32 v{vX}, s{s_offx}, v{vXb}")
        if j == 1 and u % 2 == 0:
            k(f"v_xor_b32 v{vX1}, 64, v{vX}")
        if j == 2:
            k(f"v_add_u32 v{vWa}, s{s_off}, v{vtr}")
        if j == 5:
            k(f"s_add_u32 s{s_off}, s{s_off}, {WU}")
        if j == 7:
            k(f"s_cmp_eq_u32 s{s_off}, {NUW * WU}")
            k(f"s_cselect_b32 s{s_off}, 0, s{s_off}")
        if j == 9 and u % 2 == 0:
            k(f"s_add_u32 s{s_offx}, s{s_offx}, {XS}")
        if j == 11 and u % 2 == 0:
            k(f"s_cmp_eq_u32 s{s_offx}, {NX * XS}")
            k(f"s_cselect_b32 s{s_offx}, 0, s{s_offx}")
        if j < 2:
            k(f"ds_read_b128 {v(xreg + ((u % 2) * 2 + j) * 4, 4)}, v{vX1 if u % 2 else vX} offset:{j * 512}")
        else:
            t, half = divmod(j - 2, 2)
            part, i = t % 2, t // 2
            k(f"ds_read_b64_tr_b16 {v(ring + 4 * (t % R) + 2 * half, 2)}, v{vWa} offset:{part * 9216 + i * 32 + half * 2304}")
    def need(m):
        u, r = divmod(m, 36)
        return u * NRD + 2 + (r // 2) * 2 + 1
    def sched(iss, m):
        n = 0
        while iss + n <= need(m + LAM) and n < 2:
            n += 1
        return n
    iss = need(LAM - 1) + 1
    for m in range(72 * 3):
        iss += sched(iss, m)
        if (m + 1) % 72 == 0: steady = iss - ((m + 1) // 72) * 2 * NRD
    k("s_waitcnt lgkmcnt(0)")
    for q in range(steady):
        rd(q)
    st(2)
    if st.on: k("s_waitcnt lgkmcnt(0)")
    issued = steady
    Lloop = k.label('loop')
    k(f"{Lloop}:")
    for u in range(2):
        for t in range(18):
            part, i = t % 2, t // 2
            m0 = u * 36 + t * 2
            assert issued - need(m0) - 1 <= 15
            k(f"s_waitcnt lgkmcnt({issued - need(m0) - 1})")
            Wf = v(ring + 4 * (t % R), 4)
            for mu in range(2):
                X = v(xreg + (u * 2 + mu) * 4, 4)
                if 'nomfma' in opts:
                    pass
                elif part == 0:
                    C = v(A2(i, mu), 4)
                    k(f"v_mfma_f32_16x16x32_bf16 {C}, {X}, {Wf}, {C}")
                else:
                    C = v(A1(i, mu), 4)
                    k(f"v_mfma_f32_16x16x32_bf16 {C}, {Wf}, {X}, {C}")
                for _ in range(sched(issued, m0 + mu)):
                    u2, j2 = divmod(issued, NRD)
                    if j2 >= 2:
                        assert (u2 * 18 + (j2 - 2) // 2) - R < u * 18 + t, "ring too small"
                    rd(issued); issued += 1
    assert issued == steady + 2 * NRD
    if 'iter' in opts:
        k("s_memtime s[94:95]")
        k("s_waitcnt lgkmcnt(0)")
        k("s_sub_u32 s94, s94, s70")
        k(f"s_mov_b32 m0, s{s_cnt}")
        k(f"v_writelane_b32 v250, s94, m0")
    k(f"s_add_u32 s{s_cnt}, s{s_cnt}, 1")
    k(f"s_cmp_lt_u32 s{s_cnt}, 9")
    k(f"s_cbranch_scc1 {Lloop}")
    k("s_waitcnt lgkmcnt(0)")
    st(3)
    k("s_barrier")
    HO = [A2(i, mu) for i in range(5, 9) for mu in range(2)] + [A1(i, mu) for i in range(4, 9) for mu in range(2)]
    k(f"s_mul_i32 s{s_tmp}, s{s_wq}, 18432")
    k(f"s_add_u32 s{s_tmp}, s{s_tmp}, {WBASE}")
    k(f"v_add_u32 v{vt}, s{s_tmp}, v{vl16}")
    for j, r in enumerate(HO):
        if j == 14: k("s_waitcnt lgkmcnt(8)")
        k(f"ds_write_b128 v{vt}, {v(r, 4)} offset:{j * 1024}")
    k("s_waitcnt lgkmcnt(0)")
    k("s_barrier")
    k(f"s_branch {Lepi}")

    k(f"{Lhelp}:")
    va.n = save
    vD = [va.get() for _ in range(9)]
    BIAS = 4096
    LX = k.label('xload'); Ljoin = k.label('hjoin')
    k("s_waitcnt lgkmcnt(0)")
    k(f"s_cmp_ge_u32 s{s_wq}, 2")
    k(f"s_cbranch_scc1 {LX}")
    srd(k, sWi, 6, 7, -BIAS, 576 * 4608 * 2 + BIAS)
    k(f"s_mul_i32 s{s_tmp}, s{s_cg}, 288")
    k(f"s_xor_b32 s{s_t2}, s{s_wq}, 1")
    k(f"s_mul_i32 s{s_t2}, s{s_t2}, 4608")
    k(f"s_add_u32 s{s_tmp}, s{s_tmp}, s{s_t2}")
    k(f"s_mul_i32 s{s_t2}, s{s_wq}, 9216")
    k(f"s_add_u32 s{s_t2}, s{s_t2}, {WBASE}")
    k(f"s_mul_i32 s{s_k}, s{s_rot}, {64 * 9216}")
    k(f"s_mov_b32 s54, 3641")
    for j in range(9):
        k(f"v_add_u32 v{vt}, {64 * j}, v{vlane}")
        k(f"v_mul_lo_u32 v{vt2}, v{vt}, s54")
        k(f"v_lshrrev_b32 v{vt2}, 16, v{vt2}")
        k(f"v_mul_u32_u24 v{vt3}, 18, v{vt2}")
        k(f"v_sub_u32 v{vt}, v{vt}, v{vt3}")
        k(f"v_and_b32 v{vt3}, 0x13, v{vt2}")
        k(f"v_and_b32 v{vD[j]}, 4, v{vt2}")
        k(f"v_lshl_or_b32 v{vt3}, v{vD[j]}, 1, v{vt3}")
        k(f"v_and_b32 v{vD[j]}, 8, v{vt2}")
        k(f"v_lshrrev_b32 v{vD[j]}, 1, v{vD[j]}")
        k(f"v_or_b32 v{vt3}, v{vt3}, v{vD[j]}")
        k(f"v_mul_u32_u24 v{vt3}, 9216, v{vt3}")
        k(f"v_lshl_add_u32 v{vt3}, v{vt}, 4, v{vt3}")
        k(f"v_add_u32 v{vt3}, s{s_tmp}, v{vt3}")
        k(f"v_add_u32 v{vD[j]}, {BIAS - (j % 4) * 1024}, v{vt3}")
    def wissue():
        k(f"s_add_u32 s{s_t3}, s{s_t2}, s{s_off}")
        for j in range(9):
            if j % 4 == 0:
                k(f"s_add_u32 m0, s{s_t3}, {(j // 4) * 4096}")
            k(f"buffer_load_dwordx4 v{vD[j]}, s[{sWi}:{sWi+3}], s{s_k} offen offset:{(j % 4) * 1024} lds")
        k(f"s_add_u32 s{s_off}, s{s_off}, {WU}")
        k(f"s_cmp_eq_u32 s{s_off}, {NUW * WU}")
        k(f"s_cselect_b32 s{s_off}, 0, s{s_off}")
        k(f"s_add_u32 s{s_k}, s{s_k}, {32 * 9216}")
        k(f"s_cmp_eq_u32 s{s_k}, {576 * 9216}")
        k(f"s_cselect_b32 s{s_k}, 0, s{s_k}")
        k(f"s_add_u32 s{s_cnt}, s{s_cnt}, 1")
        k(f"s_cmp_ge_u32 s{s_cnt}, {3 if 'now' in opts else 18}")
        k(f"s_cselect_b32 s{s_k}, {OOB}, s{s_k}")
    wissue(); wissue()
    k("s_waitcnt vmcnt(9)")
    k("s_barrier")
    wissue()
    Lw = k.label('wloop')
    k(f"{Lw}:")
    wissue()
    k(f"s_cmp_lt_u32 s{s_cnt}, 21")
    k("s_waitcnt vmcnt(18)")
    k("s_barrier")
    k(f"s_cbranch_scc1 {Lw}")
    k("s_waitcnt vmcnt(0)")
    k(f"s_branch {Ljoin}")

    k(f"{LX}:")
    csa = va.get(9); hb = va.get(24, 4); xb = va.get(36, 4); vxs = va.get(2, 2); vcw = va.get(); vj = va.get(); vsy = va.get(); vfl = va.get(); vone = va.get()
    s_xl = s_idx
    Q = VMQ(k)
    srd(k, sX, 4, 5, -BIAS, 2048 * 576 * 2 + BIAS)
    srd(k, sWS, 42, 43, WS_STAT, 0x200000)
    srd(k, sDB, 40, 41, 0, 256)
    k(f"s_sub_u32 s{s_xl}, s{s_wq}, 2")
    k(f"s_lshl_b32 s{s_t2}, s{s_xl}, 13")
    k(f"s_add_u32 s{s_t2}, s{s_t2}, {XBASE}")
    k(f"s_lshl_b32 s{s_tmp}, s{s_xl}, 6")
    k(f"s_add_u32 s{s_tmp}, s{s_tmp}, s{s_r0}")
    k(f"s_lshl_b32 s{s_k}, s{s_rot}, 7")
    k(f"v_lshrrev_b32 v{vt}, 3, v{vlane}")
    k(f"v_and_b32 v{vt2}, 3, v{vt}")
    k(f"v_xor_b32 v{vt2}, v{vt2}, v{vlane}")
    k(f"v_and_b32 v{vt2}, 7, v{vt2}")
    k(f"v_add_u32 v{vt}, s{s_tmp}, v{vt}")
    k(f"v_mul_u32_u24 v{vt}, 1152, v{vt}")
    for j in range(8):
        k(f"v_xor_b32 v{vt3}, {4 * (j & 1)}, v{vt2}")
        k(f"v_lshl_add_u32 v{vt3}, v{vt3}, 4, v{vt}")
        k(f"v_add_u32 v{vD[j]}, {BIAS + j * 8 * 1152 - (j % 4) * 1024}, v{vt3}")
    xi = {'n': 0}
    def xissue():
        it = xi['n']
        base = (it % NX) * XS
        for j in range(8):
            if j % 4 == 0:
                k(f"s_add_u32 m0, s{s_t2}, {base + (j // 4) * 4096}")
            Q(f"buffer_load_dwordx4 v{vD[j]}, s[{sX}:{sX+3}], s{s_k} offen offset:{(j % 4) * 1024} lds", f"x{it}")
        k(f"s_add_u32 s{s_k}, s{s_k}, 128")
        k(f"s_cmp_eq_u32 s{s_k}, 1152")
        k(f"s_cselect_b32 s{s_k}, 0, s{s_k}")
        xi['n'] += 1
    xissue()
    k(f"s_lshl_b32 s{s_tmp}, s{s_cg}, 3")
    k(f"s_add_u32 s{s_tmp}, s{s_tmp}, s{s_r0}")
    k(f"v_lshrrev_b32 v{vt}, 3, v{vlane}")
    k(f"v_add_u32 v{vj}, s{s_tmp}, v{vt}")
    k(f"v_mul_u32_u24 v{vt}, 1152, v{vj}")
    k(f"v_and_b32 v{vt2}, 7, v{vlane}")
    k(f"v_lshl_add_u32 v{vt}, v{vt2}, 4, v{vt}")
    k(f"v_add_u32 v{vt}, {BIAS}, v{vt}")
    for j in range(9):
        Q(f"buffer_load_dwordx4 {v(xb + 4 * j, 4)}, v{vt}, s[{sX}:{sX+3}], 0 offen offset:{128 * j}", "j1")
    k(f"s_lshl_b32 s{s_tmp}, s{s_rb}, 8")
    k(f"s_add_u32 s{s_tmp}, s{s_tmp}, {SYNC - WS_STAT}")
    k(f"v_lshlrev_b32 v{vsy}, 12, v{vlane}")
    k(f"v_add_u32 v{vsy}, s{s_tmp}, v{vsy}")
    k(f"s_lshl_b32 s{s_tmp}, s{s_cg}, 8")
    k(f"s_add_u32 s{s_tmp}, s{s_tmp}, {SYNC - WS_STAT + 8192}")
    k(f"v_mov_b32 v{vt2}, s{s_tmp}")
    k(f"v_cmp_eq_u32 vcc, 2, v{vlane}")
    k(f"v_cndmask_b32 v{vsy}, v{vsy}, v{vt2}, vcc")
    k(f"s_lshl_b32 s{s_tmp}, s{s_rb}, 2")
    k(f"v_mov_b32 v{vfl}, s{s_tmp}")
    k(f"s_lshl_b32 s{s_tmp}, s{s_cg}, 2")
    k(f"s_add_u32 s{s_tmp}, s{s_tmp}, 64")
    k(f"v_mov_b32 v{vt2}, s{s_tmp}")
    k(f"v_cndmask_b32 v{vfl}, v{vfl}, v{vt2}, vcc")
    k(f"v_mov_b32 v{vt2}, {OOB}")
    k(f"v_cmp_gt_u32 vcc, 3, v{vlane}")
    k(f"v_cndmask_b32 v{vfl}, v{vt2}, v{vfl}, vcc")
    k(f"v_cndmask_b32 v{vsy}, v{vt2}, v{vsy}, vcc")
    k(f"s_cmp_eq_u32 s{s_cg}, 0"); k(f"s_cselect_b32 s60, 3, 0")
    k(f"s_cmp_eq_u32 s{s_rb}, 0"); k(f"s_cselect_b32 s{s_tmp}, 4, 0")
    k(f"s_or_b32 s60, s60, s{s_tmp}")
    k(f"s_cmp_eq_u32 s{s_xl}, 0"); k(f"s_cselect_b32 s60, s60, 0")
    k(f"s_mov_b32 s61, 0")
    k(f"v_mov_b32 v{vt2}, {OOB}")
    k(f"v_cndmask_b32 v{vt3}, v{vt2}, v{vsy}, s[60:61]")
    k(f"v_cndmask_b32 v{vcw}, v{vt2}, v{vfl}, s[60:61]")
    k(f"v_mov_b32 v{vone}, 0")
    Q(f"buffer_store_dword v{vone}, v{vt3}, s[{sWS}:{sWS+3}], 0 offen sc1", "init")
    k(f"v_mov_b32 v{hb + 20}, v{vcw}")
    xissue()
    for j in range(9): k(f"v_mov_b32 v{csa + j}, 0")
    k(f"s_mul_i32 s{s_tmp}, s{s_xl}, 9216")
    k(f"v_add_u32 v{vcw}, s{s_tmp}, v{vtr}")
    k(f"v_mov_b32 v{vt}, 0")
    k(f"v_mov_b32 v{vt2}, {LCNT}")
    k(f"ds_write_b32 v{vt2}, v{vt}")
    def j2(u):
        for t0_ in (0, 5):
            ts = range(t0_, min(t0_ + 5, 9))
            for t in ts:
                for half in range(2):
                    k(f"ds_read_b64_tr_b16 {v(hb + 4 * (t - t0_) + 2 * half, 2)}, v{vcw} offset:{u * WU + t * 32 + half * 2304}")
            k("s_waitcnt lgkmcnt(0)")
            for c in range(4):
                for t in ts:
                    k(f"v_dot2_f32_bf16 v{csa + t}, v{hb + 4 * (t - t0_) + c}, s{sONE}, v{csa + t}")
    def poll_until(addr_v, srd_, cmpregs, tag):
        Lr = k.label('re'); Lok = k.label('ok')
        Q.wait(tag)
        k(f"{Lr}:")
        k(f"v_cmp_lt_u32 vcc, v{vt3}, v{vt2}")
        k(f"s_and_b32 s{s_tmp}, vcc_lo, 7")
        k(f"s_cmp_eq_u32 s{s_tmp}, 0")
        k(f"s_cbranch_scc1 {Lok}")
        k("s_sleep 4")
        k(f"buffer_load_dword v{vt3}, v{addr_v}, s[{srd_}:{srd_+3}], 0 offen sc1")
        k("s_waitcnt vmcnt(0)")
        k(f"s_branch {Lr}")
        k(f"{Lok}:")
    for b in range(19):
        if b % 2 == 0 and b // 2 < 9:
            Q.wait(f"x{b // 2}")
        k("s_barrier")
        if xi['n'] < 9 and 2 * (xi['n'] - NX) + 2 <= b:
            xissue()
        if b < 2:
            j2(b)
        if b == 2:
            k(f"v_mov_b32 v{vone}, 1")
            Q(f"buffer_store_dword v{vone}, v{hb + 20}, s[{sDB}:{sDB+3}], 0 offen sc1", "flag")
            for op in ("v_permlane32_swap_b32", "v_permlane16_swap_b32"):
                for t in range(9): k(f"v_mov_b32 v{hb + t}, v{csa + t}")
                for t in range(9): k(f"{op} v{csa + t}, v{hb + t}")
                for t in range(9): k(f"v_add_f32 v{csa + t}, v{csa + t}, v{hb + t}")
            k(f"s_mul_i32 s{s_tmp}, s{s_cg}, 9")
            k(f"s_add_u32 s{s_tmp}, s{s_tmp}, s{s_rot}")
            k(f"s_mul_i32 s{s_tmp}, s{s_tmp}, 1152")
            k(f"s_mul_i32 s{s_t3}, s{s_xl}, 576")
            k(f"s_add_u32 s{s_tmp}, s{s_tmp}, s{s_t3}")
            k(f"s_add_u32 s{s_tmp}, s{s_tmp}, {CSP - WS_STAT}")
            k(f"s_cmp_lt_u32 s{s_rb}, 9")
            k(f"s_cselect_b32 s{s_tmp}, s{s_tmp}, {OOB}")
            k(f"v_lshlrev_b32 v{vt}, 2, v{vlane}")
            k(f"v_add_u32 v{vt}, s{s_tmp}, v{vt}")
            k(f"v_cmp_eq_u32 s[62:63], 1, v{vg}"); k(f"v_cmp_eq_u32 s[64:65], 2, v{vg}"); k(f"v_cmp_eq_u32 s[66:67], 3, v{vg}")
            for j in range(2):
                k(f"v_cndmask_b32 v{hb + j}, v{csa + 4 * j}, v{csa + 4 * j + 1}, s[62:63]")
                k(f"v_cndmask_b32 v{hb + j}, v{hb + j}, v{csa + 4 * j + 2}, s[64:65]")
                k(f"v_cndmask_b32 v{hb + j}, v{hb + j}, v{csa + 4 * j + 3}, s[66:67]")
                Q(f"buffer_store_dword v{hb + j}, v{vt}, s[{sWS}:{sWS+3}], 0 offen offset:{256 * j} sc1", "cs")
            k(f"v_mov_b32 v{vt2}, {OOB}")
            k(f"v_cmp_gt_u32 vcc, 16, v{vlane}")
            k(f"v_cndmask_b32 v{vt}, v{vt2}, v{vt}, vcc")
            Q(f"buffer_store_dword v{csa + 8}, v{vt}, s[{sWS}:{sWS+3}], 0 offen offset:512 sc1", "cs")
        if b == 3:
            Q.wait("j1")
            for c in range(4): k(f"v_mov_b32 v{hb + c}, 0")
            for j in range(36):
                k(f"v_dot2_f32_bf16 v{hb + (j % 2)}, v{xb + j}, s{sONE}, v{hb + (j % 2)}")
                k(f"v_dot2_f32_bf16 v{hb + 2 + (j % 2)}, v{xb + j}, v{xb + j}, v{hb + 2 + (j % 2)}")
            k(f"v_add_f32 v{vxs}, v{hb}, v{hb + 1}")
            k(f"v_add_f32 v{vxs + 1}, v{hb + 2}, v{hb + 3}")
            for pat in ("quad_perm:[1,0,3,2]", "quad_perm:[2,3,0,1]", "row_half_mirror"):
                for c in range(2):
                    k(f"v_add_f32_dpp v{vxs + c}, v{vxs + c}, v{vxs + c} {pat} row_mask:0xf bank_mask:0xf")
            ln_finish(k, vxs, vxs + 1, 576, vt)
            k(f"v_lshlrev_b32 v{vt}, 3, v{vj}")
            k(f"v_add_u32 v{vt}, {XSTAT - WS_STAT}, v{vt}")
            k(f"v_and_b32 v{vt2}, 7, v{vlane}")
            k(f"v_cmp_eq_u32 vcc, 0, v{vt2}")
            k(f"v_mov_b32 v{vt2}, {OOB}")
            k(f"v_cndmask_b32 v{vt}, v{vt2}, v{vt}, vcc")
            Q(f"buffer_store_dwordx2 {v(vxs, 2)}, v{vt}, s[{sWS}:{sWS+3}], 0 offen sc1", "xs")
        if b == 4:
            Q(f"buffer_load_dword v{vt3}, v{vfl}, s[{sDB}:{sDB+3}], 0 offen sc1", "fl")
        if b == 7:
            k(f"v_mov_b32 v{vt2}, 1")
            poll_until(vfl, sDB, None, "fl")
            k(f"s_cmp_lt_u32 s{s_rb}, 9"); k(f"s_cselect_b32 s60, 5, 1"); k(f"s_mov_b32 s61, 0")
            k(f"v_mov_b32 v{vt2}, {OOB}")
            k(f"v_cndmask_b32 v{vt}, v{vt2}, v{vsy}, s[60:61]")
            Q(f"buffer_atomic_add v{vone}, v{vt}, s[{sWS}:{sWS+3}], 0 offen sc1", "arr")
        if b == 11:
            Q(f"buffer_load_dword v{vt3}, v{vsy}, s[{sWS}:{sWS+3}], 0 offen sc1", "cnt")
        if b == 13:
            k(f"v_mov_b32 v{vt2}, 0")
            k(f"v_cmp_eq_u32 vcc, 0, v{vlane}"); k(f"v_cndmask_b32 v{vt2}, v{vt2}, 32, vcc")
            k(f"v_cmp_eq_u32 vcc, 2, v{vlane}"); k(f"v_cndmask_b32 v{vt2}, v{vt2}, 18, vcc")
            poll_until(vsy, sWS, None, "cnt")
            k(f"s_lshl_b32 s{s_tmp}, s{s_xl}, 6")
            k(f"s_add_u32 s{s_tmp}, s{s_tmp}, s{s_r0}")
            k(f"s_lshl_b32 s{s_tmp}, s{s_tmp}, 3")
            k(f"s_add_u32 s{s_tmp}, s{s_tmp}, {XSTAT - WS_STAT}")
            k(f"v_lshlrev_b32 v{vt}, 3, v{vlane}")
            Q(f"buffer_load_dwordx2 {v(vxs, 2)}, v{vt}, s[{sWS}:{sWS+3}], s{s_tmp} offen sc1", "ld")
            k(f"s_mul_i32 s{s_tmp}, s{s_cg}, {9 * 1152}")
            k(f"s_mul_i32 s{s_t3}, s{s_xl}, 576")
            k(f"s_add_u32 s{s_tmp}, s{s_tmp}, s{s_t3}")
            k(f"s_add_u32 s{s_tmp}, s{s_tmp}, {CSP - WS_STAT}")
            k(f"v_mov_b32 v{vt2}, {OOB}")
            k(f"v_cmp_gt_u32 vcc, 36, v{vlane}")
            k(f"v_cndmask_b32 v{vt}, v{vt2}, v{vl16}, vcc")
            for j in range(9):
                if j == 3: k(f"s_add_u32 s{s_tmp}, s{s_tmp}, 3456")
                if j == 6: k(f"s_add_u32 s{s_tmp}, s{s_tmp}, 3456")
                Q(f"buffer_load_dwordx4 {v(xb + 4 * j, 4)}, v{vt}, s[{sWS}:{sWS+3}], s{s_tmp} offen offset:{1152 * (j % 3)} sc1", "ld")
        if b == 16:
            Q.wait("ld")
            for j in range(1, 9):
                for c in range(4):
                    k(f"v_add_f32 v{xb + c}, v{xb + c}, v{xb + 4 * j + c}")
            k(f"s_mul_i32 s{s_tmp}, s{s_xl}, 576")
            k(f"v_add_u32 v{vt}, s{s_tmp}, v{vl16}")
            k(f"v_cmp_gt_u32 vcc, 36, v{vlane}")
            k(f"s_and_saveexec_b64 s[60:61], vcc")
            k(f"ds_write_b128 v{vt}, {v(xb, 4)} offset:{CS}")
            k(f"s_mov_b64 exec, -1")
            k(f"s_lshl_b32 s{s_tmp}, s{s_xl}, 8")
            k(f"v_lshlrev_b32 v{vt}, 2, v{vlane}")
            k(f"v_add_u32 v{vt}, s{s_tmp}, v{vt}")
            k(f"ds_write_b32 v{vt}, v{vxs} offset:{XM}")
            k(f"ds_write_b32 v{vt}, v{vxs + 1} offset:{XR}")
    k("s_waitcnt vmcnt(0) lgkmcnt(0)")
    k(f"{Ljoin}:")
    k("s_barrier")
    k(f"s_mul_i32 s{s_tmp}, s{s_wq}, 18432")
    k(f"s_add_u32 s{s_tmp}, s{s_tmp}, {WBASE}")
    k(f"v_add_u32 v{vt}, s{s_tmp}, v{vl16}")
    k("s_barrier")
    for j, r in enumerate(HO):
        if j == 15: k("s_waitcnt lgkmcnt(0)")
        k(f"ds_read_b128 {v(r, 4)}, v{vt} offset:{j * 1024}")

    k(f"{Lepi}:")
    ea = Alloc(save)
    xm = ea.get(8, 4); xr = ea.get(8, 4); zs = ea.get(16, 4); X = ea.get(8, 4); T = ea.get(8, 4); pl = A1(0, 0)
    csn = ea.get(); csc = ea.get(); vD0 = ea.get(); va1 = ea.get(); va2 = ea.get(); va3 = ea.get(); t0 = ea.get(); t1 = ea.get()
    sa = ea.get(4, 4); cA = ea.get(4, 4); cB = ea.get(4, 4); ob = ea.get(4, 4); ob2 = ea.get(4, 4); ob3 = ea.get(4, 4)
    XL = [X + j for j in range(8)]; TL = [T + j for j in range(8)]
    srd(k, sZ1, 42, 43, WS_Z1, 2048 * 2304 * 2)
    srd(k, sZ2, 42, 43, WS_Z2T, 2048 * 2304 * 2)
    srd(k, sWS, 42, 43, WS_STAT, 0x200000)
    k(f"v_mov_b32 v{vD0}, {hex(f2u(D0))}")
    k(f"s_lshl_b32 s{s_tmp}, s{s_wq}, 7")
    k(f"v_lshlrev_b32 v{va1}, 5, v{vg}")
    k(f"v_add_u32 v{va1}, s{s_tmp}, v{va1}")
    for j in range(2):
        k(f"ds_read_b128 {v(xm + 4 * j, 4)}, v{va1} offset:{XM + 16 * j}")
        k(f"ds_read_b128 {v(xr + 4 * j, 4)}, v{va1} offset:{XR + 16 * j}")
    k(f"s_mul_i32 s{s_idx}, s{s_role}, 40")
    k(f"s_sub_u32 s{s_n}, 5, s{s_role}")
    k(f"s_lshl_b32 s{s_tmp}, s{s_idx}, 3")
    k(f"v_lshlrev_b32 v{va2}, 2, v{vn}")
    k(f"v_add_u32 v{va2}, s{s_tmp}, v{va2}")
    k(f"ds_read_b32 v{csn}, v{va2} offset:{CS}")
    for j in range(16): k(f"v_mov_b32 v{zs + j}, 0")
    k(f"s_mov_b32 s{s_cnt}, 0")
    La = k.label('z2a')
    k(f"{La}:")
    k("s_waitcnt lgkmcnt(0)")
    k(f"v_mov_b32 v{csc}, v{csn}")
    k(f"v_add_u32 v{va2}, 64, v{va2}")
    k(f"ds_read_b32 v{csn}, v{va2} offset:{CS}")
    k(f"s_set_gpr_idx_on s{s_idx}, gpr_idx(SRC2)")
    k("s_nop 0")
    for r in range(8): k(f"v_fma_f32 v{X + r}, -v{xm + r}, v{csc}, v{acc + r}")
    k("s_set_gpr_idx_off")
    for r in range(8): k(f"v_mul_f32 v{X + r}, v{X + r}, v{xr + r}")
    rnd_n(k, XL, TL)
    gelu_n(k, XL, TL, sD1, vD0)
    rnd_n(k, XL, TL)
    k(f"s_set_gpr_idx_on s{s_idx}, gpr_idx(DST)")
    k("s_nop 0")
    for r in range(4): k(f"v_mov_b32 v{acc + r}, v{T + r}")
    k("s_set_gpr_idx_off")
    for r in range(8):
        k(f"v_add_f32 v{zs + 2 * r}, v{zs + 2 * r}, v{X + r}")
        k(f"v_fmac_f32 v{zs + 2 * r + 1}, v{X + r}, v{X + r}")
    k(f"s_add_u32 s{s_idx}, s{s_idx}, 8")
    k(f"s_add_u32 s{s_cnt}, s{s_cnt}, 1")
    k(f"s_cmp_lt_u32 s{s_cnt}, s{s_n}")
    k(f"s_cbranch_scc1 {La}")
    for sh in (8, 4, 2, 1):
        for j in range(16):
            k(f"v_add_f32_dpp v{zs + j}, v{zs + j}, v{zs + j} row_ror:{sh} row_mask:0xf bank_mask:0xf")
    k(f"s_lshl_b32 s{s_tmp}, s{s_rb}, 5")
    k(f"s_lshl_b32 s{s_t2}, s{s_cg}, 1")
    k(f"s_add_u32 s{s_tmp}, s{s_tmp}, s{s_t2}")
    k(f"s_add_u32 s{s_tmp}, s{s_tmp}, s{s_role}")
    k(f"s_lshl_b32 s{s_tmp}, s{s_tmp}, 10")
    k(f"v_lshl_add_u32 v{t0}, v{va1}, 1, s{s_tmp}")
    k(f"v_mov_b32 v{t1}, {OOB}")
    k(f"v_cmp_eq_u32 vcc, 0, v{vn}")
    k(f"v_cndmask_b32 v{t0}, v{t1}, v{t0}, vcc")
    for j in range(4):
        k(f"buffer_store_dwordx4 {v(zs + 4 * j, 4)}, v{t0}, s[{sWS}:{sWS+3}], 0 offen offset:{16 * j} sc1")
    st(4)
    k(f"v_lshrrev_b32 v{t0}, 2, v{vn}")
    k(f"v_and_b32 v{t1}, 3, v{vn}")
    k(f"v_lshl_add_u32 v{t0}, v{t0}, 3, v{t1}")
    k(f"s_lshl_b32 s{s_tmp}, s{s_wq}, 7")
    k(f"v_lshlrev_b32 v{va3}, 2, v{t0}")
    k(f"v_add_u32 v{va3}, s{s_tmp}, v{va3}")
    k(f"ds_read_b32 v{sa}, v{va3} offset:{XM}")
    k(f"ds_read_b32 v{sa + 1}, v{va3} offset:{XR}")
    k(f"ds_read_b32 v{sa + 2}, v{va3} offset:{XM + 16}")
    k(f"ds_read_b32 v{sa + 3}, v{va3} offset:{XR + 16}")
    k(f"s_lshl_b32 s{s_tmp}, s{s_rb}, 3")
    k(f"s_lshl_b32 s{s_t2}, s{s_wq}, 1")
    k(f"s_add_u32 s{s_tmp}, s{s_tmp}, s{s_t2}")
    k(f"s_lshl_b32 s{s_tmp}, s{s_tmp}, 3")
    k(f"s_lshr_b32 s{s_t2}, s{s_cg}, 1")
    k(f"s_add_u32 s{s_tmp}, s{s_tmp}, s{s_t2}")
    k(f"s_mul_i32 s{s_tmp}, s{s_tmp}, 9216")
    k(f"v_lshrrev_b32 v{t1}, 3, v{vn}")
    k(f"v_mul_u32_u24 v{t1}, {8 * 9216}, v{t1}")
    k(f"v_and_b32 v{t0}, 15, v{t0}")
    k(f"v_lshl_add_u32 v{t0}, v{vg}, 4, v{t0}")
    k(f"v_lshl_add_u32 v{t1}, v{t0}, 4, v{t1}")
    k(f"v_add_u32 v{va2}, s{s_tmp}, v{t1}")
    k(f"s_and_b32 s{s_t2}, s{s_cg}, 1")
    k(f"s_lshl_b32 s{s_k}, s{s_t2}, 12")
    k(f"s_lshl_b32 s{s_tmp}, s{s_role}, 11")
    k(f"s_add_u32 s{s_k}, s{s_k}, s{s_tmp}")
    k(f"s_lshl_b32 s{s_t2}, s{s_t2}, 3")
    k(f"s_add_u32 s{s_t2}, s{s_t2}, 8192")
    k(f"s_lshl_b32 s{s_tmp}, s{s_role}, 8")
    k(f"v_lshlrev_b32 v{va3}, 4, v{vg}")
    k(f"v_add_u32 v{va3}, s{s_tmp}, v{va3}")
    k(f"s_lshl_b32 s{s_idx}, s{s_role}, 5")
    k(f"s_add_u32 s{s_idx}, s{s_idx}, 72")
    k(f"s_mov_b32 s{s_cnt}, 0")
    k("s_waitcnt vmcnt(0)")
    k(f"v_mov_b32 v{t0}, {LCNT}")
    k(f"v_mov_b32 v{t1}, 1")
    k("s_mov_b64 exec, 1")
    k(f"ds_add_rtn_u32 v{t0}, v{t0}, v{t1}")
    k("s_waitcnt lgkmcnt(0)")
    k(f"v_readfirstlane_b32 s{s_tmp}, v{t0}")
    k(f"s_lshl_b32 s{s_t3}, s{s_rb}, 8")
    k(f"s_add_u32 s{s_t3}, s{s_t3}, {SYNC - WS_STAT + 4096}")
    k(f"s_cmp_eq_u32 s{s_tmp}, 7")
    k(f"s_cselect_b32 s{s_tmp}, s{s_t3}, {OOB}")
    k(f"v_mov_b32 v{t0}, s{s_tmp}")
    k(f"buffer_atomic_add v{t1}, v{t0}, s[{sWS}:{sWS+3}], 0 offen sc1")
    k("s_mov_b64 exec, -1")
    def z1_body(mA, mB, cb_b, offB):
        k(f"s_set_gpr_idx_on s{s_idx}, gpr_idx(SRC2)")
        k("s_nop 0")
        for r in range(4): k(f"v_fma_f32 v{X + r}, -v{sa + 2 * mA}, v{cA + r}, v{acc + r + 4 * mA * (offB == 8)}")
        for r in range(4): k(f"v_fma_f32 v{X + 4 + r}, -v{sa + 2 * mB}, v{cb_b + r}, v{acc + offB + r + 4 * mA * (offB == 8)}")
        k("s_set_gpr_idx_off")
        for r in range(4): k(f"v_mul_f32 v{X + r}, v{X + r}, v{sa + 2 * mA + 1}")
        for r in range(4): k(f"v_mul_f32 v{X + 4 + r}, v{X + 4 + r}, v{sa + 2 * mB + 1}")
        rnd_n(k, XL, TL)
        gelu_n(k, XL, TL, sD1, vD0)
    Lb = k.label('z1')
    k(f"{Lb}:")
    k(f"ds_read_b128 {v(cA, 4)}, v{va3} offset:{CS + 576}")
    k(f"ds_read_b128 {v(cB, 4)}, v{va3} offset:{CS + 576 + 64}")
    k(f"v_add_u32 v{va3}, 128, v{va3}")
    k("s_waitcnt lgkmcnt(0)")
    for mu in range(2):
        z1_body(mu, mu, cB, 8)
        o = ob if mu == 0 else ob2
        for j in range(4): k(f"v_cvt_pk_bf16_f32 v{o + j}, v{X + 2 * j}, v{X + 2 * j + 1}")
        k(f"buffer_store_dwordx4 {v(o, 4)}, v{va2}, s[{sZ1}:{sZ1+3}], s{s_k} offen offset:{64 * mu}")
    k(f"s_add_u32 s{s_k}, s{s_k}, 1024")
    k(f"s_add_u32 s{s_idx}, s{s_idx}, 16")
    k(f"s_add_u32 s{s_cnt}, s{s_cnt}, 1")
    k(f"s_cmp_lt_u32 s{s_cnt}, 2")
    k(f"s_cbranch_scc1 {Lb}")
    Lc = k.label('nolast')
    k(f"s_cmp_eq_u32 s{s_role}, 0")
    k(f"s_cbranch_scc1 {Lc}")
    k(f"ds_read_b128 {v(cA, 4)}, v{va3} offset:{CS + 576}")
    k("s_waitcnt lgkmcnt(0)")
    z1_body(0, 1, cA, 4)
    for j in range(4): k(f"v_cvt_pk_bf16_f32 v{ob3 + j}, v{X + 2 * j}, v{X + 2 * j + 1}")
    for mu in range(2):
        k(f"buffer_store_dwordx2 {v(ob3 + 2 * mu, 2)}, v{va2}, s[{sZ1}:{sZ1+3}], s{s_t2} offen offset:{64 * mu}")
    k(f"{Lc}:")
    st(5)
    Lp = k.label('poll'); Lnp = k.label('nopoll')
    k("s_barrier")
    k(f"s_cmp_lg_u32 s{s_wave}, 0")
    k(f"s_cbranch_scc1 {Lnp}")
    k(f"v_mov_b32 v{t1}, s{s_t3}")
    k(f"{Lp}:")
    k(f"buffer_load_dword v{t0}, v{t1}, s[{sWS}:{sWS+3}], 0 offen sc1")
    k("s_waitcnt vmcnt(0)")
    k(f"v_readfirstlane_b32 s{s_tmp}, v{t0}")
    k(f"s_cmp_lt_u32 s{s_tmp}, 16")
    k(f"s_cbranch_scc1 {Lp}")
    k(f"{Lnp}:")
    k("s_barrier")
    st(6)
    k(f"s_lshl_b32 s{s_tmp}, s{s_rb}, 15")
    k(f"s_lshl_b32 s{s_t2}, s{s_wq}, 8")
    k(f"s_add_u32 s{s_tmp}, s{s_tmp}, s{s_t2}")
    k(f"v_lshlrev_b32 v{t0}, 10, v{vg}")
    k(f"v_lshl_add_u32 v{t0}, v{vn}, 4, v{t0}")
    k(f"v_add_u32 v{t0}, s{s_tmp}, v{t0}")
    k("s_waitcnt vmcnt(0)")
    for j in range(8):
        k(f"s_mov_b32 s{s_t2}, {4096 * j}")
        k(f"buffer_load_dwordx4 {v(pl + 4 * j, 4)}, v{t0}, s[{sWS}:{sWS+3}], s{s_t2} offen sc1")
    for j in range(1, 8):
        k(f"s_waitcnt vmcnt({7 - j})")
        for c in range(4):
            k(f"v_add_f32 v{pl + c}, v{pl + c}, v{pl + 4 * j + c}")
    for op in ("v_permlane32_swap_b32", "v_permlane16_swap_b32"):
        for c in range(4): k(f"v_mov_b32 v{pl + 4 + c}, v{pl + c}")
        for c in range(4): k(f"{op} v{pl + c}, v{pl + 4 + c}")
        for c in range(4): k(f"v_add_f32 v{pl + c}, v{pl + c}, v{pl + 4 + c}")
    ln_finish(k, pl, pl + 1, 2304, t0)
    ln_finish(k, pl + 2, pl + 3, 2304, t0)
    k(f"s_lshl_b32 s{s_tmp}, s{s_wave}, 8")
    k(f"v_lshlrev_b32 v{t0}, 4, v{vn}")
    k(f"v_add_u32 v{t0}, s{s_tmp}, v{t0}")
    k(f"ds_write_b128 v{t0}, {v(pl, 4)} offset:{ZSL}")
    k(f"v_lshlrev_b32 v{t1}, 6, v{vg}")
    k(f"v_add_u32 v{t1}, s{s_tmp}, v{t1}")
    k("s_waitcnt lgkmcnt(0)")
    for j in range(4):
        k(f"ds_read_b128 {v(zs + 4 * j, 4)}, v{t1} offset:{ZSL + 16 * j}")
    k(f"s_lshl_b32 s{s_tmp}, s{s_cg}, 6")
    k(f"s_lshl_b32 s{s_t2}, s{s_rb}, 2")
    k(f"s_add_u32 s{s_tmp}, s{s_tmp}, s{s_t2}")
    k(f"s_add_u32 s{s_tmp}, s{s_tmp}, s{s_wq}")
    k(f"s_mul_i32 s{s_tmp}, s{s_tmp}, 9216")
    k(f"v_add_u32 v{va2}, s{s_tmp}, v{vl16}")
    k(f"s_mul_i32 s{s_idx}, s{s_role}, 40")
    k(f"s_mul_i32 s{s_k}, s{s_role}, 5120")
    k(f"s_mov_b32 s{s_cnt}, 0")
    k("s_waitcnt lgkmcnt(0)")
    Ld = k.label('z2b')
    k(f"{Ld}:")
    k(f"s_set_gpr_idx_on s{s_idx}, gpr_idx(SRC1)")
    k("s_nop 0")
    for j in range(4):
        k(f"v_lshlrev_b32 v{X + 2 * j}, 16, v{acc + j}")
        k(f"v_and_b32 v{X + 2 * j + 1}, 0xffff0000, v{acc + j}")
    k("s_set_gpr_idx_off")
    for r in range(8): k(f"v_sub_f32 v{X + r}, v{X + r}, v{zs + 2 * r}")
    rnd_n(k, XL, TL)
    for r in range(8): k(f"v_mul_f32 v{X + r}, v{X + r}, v{zs + 2 * r + 1}")
    for j in range(4): k(f"v_cvt_pk_bf16_f32 v{ob + j}, v{X + 2 * j}, v{X + 2 * j + 1}")
    k(f"buffer_store_dwordx4 {v(ob, 4)}, v{va2}, s[{sZ2}:{sZ2+3}], s{s_k} offen")
    k(f"s_add_u32 s{s_k}, s{s_k}, 1024")
    k(f"s_add_u32 s{s_idx}, s{s_idx}, 8")
    k(f"s_add_u32 s{s_cnt}, s{s_cnt}, 1")
    k(f"s_cmp_lt_u32 s{s_cnt}, s{s_n}")
    k(f"s_cbranch_scc1 {Ld}")
    if 'iter' in opts:
        k("s_cmp_lg_u32 s2, 77"); k(f"s_cbranch_scc1 {Lend}")
        k(f"s_cmp_lg_u32 s{s_wave}, 0"); k(f"s_cbranch_scc1 {Lend}")
        srd(k, 88, 42, 43, WS_STAMP, 256)
        k(f"v_lshlrev_b32 v251, 2, v{vlane}")
        k("buffer_store_dword v250, v251, s[88:91], 0 offen")
        k("s_endpgm")
    st.flush(Lend, t0)
    k(f"{Lend}:")
    k("s_endpgm")
    k.lds = LDS
    return k

if __name__ == "__main__":
    import sys
    opts = sys.argv[2:]
    k = gen_k1(opts=opts)
    build_file(["; k1 test"], [(k, 256, 512, k.lds)], [k], sys.argv[1])
```

```python
from common import *

def getopt(opts, key, default):
    x = [o.split('=')[1] for o in opts if o.startswith(key + '=')]
    return int(x[0]) if x else default

ZU = 9216
WSL = 16384
def gen_k2(name="k2_kernel", opts=(), side=None):
    k = Kernel(name); k.check = not [o for o in opts if o in ('nomfma', 'noload', 'stamp', 'once')]
    NOMFMA = 'nomfma' in opts
    NOLOAD = 'noload' in opts
    NU = 9; NW = 4; AHEAD = 4
    CNT = getopt(opts, 'cnt', 32)
    LAM = getopt(opts, 'LAM', 8)
    WG = getopt(opts, 'WG', 2)
    ZRING = NU * ZU
    RING = ZRING + NW * WSL
    sW, sZ, sZ1, sP, sB = 8, 12, 16, 20, 24
    s_wave, s_role, s_wq, s_t0, s_fb, s_m0z, s_m0w, s_kz, s_kw, s_cnt, s_tmp, s_off, s_offw = 28, 29, 30, 31, 32, 33, 34, 35, 36, 37, 38, 39, 44
    Lend = k.label('end'); Lload = k.label('loader'); LB = k.label('consB')
    k(f"s_cmp_ge_u32 s2, 256")
    k(f"s_cbranch_scc1 {Lend}")
    k(f"s_load_dwordx4 s[4:7], s[0:1], {KA['wsp']}")
    k(f"s_load_dwordx2 s[40:41], s[0:1], {KA['ws']}")
    va = Alloc(1, 168)
    vlane = va.get(); vt = va.get(); vt2 = va.get(); vt3 = va.get(); vn = va.get(); vg = va.get(); vl16 = va.get()
    k(f"v_lshrrev_b32 v{vt}, 6, v0")
    k(f"v_and_b32 v{vlane}, 63, v0")
    k(f"v_readfirstlane_b32 s{s_wave}, v{vt}")
    k(f"v_and_b32 v{vn}, 15, v{vlane}")
    k(f"v_lshrrev_b32 v{vg}, 4, v{vlane}")
    k(f"v_lshlrev_b32 v{vl16}, 4, v{vlane}")
    k(f"s_lshr_b32 s{s_role}, s{s_wave}, 2")
    k(f"s_and_b32 s{s_wq}, s{s_wave}, 3")
    k(f"s_and_b32 s{s_tmp}, s2, 1")
    k(f"s_lshl_b32 s{s_tmp}, s{s_tmp}, 3")
    k(f"s_bfe_u32 s{s_t0}, s2, 0x30003")
    k(f"s_add_u32 s{s_t0}, s{s_t0}, s{s_tmp}")
    k(f"s_lshl_b32 s{s_t0}, s{s_t0}, 7")
    k(f"s_bfe_u32 s{s_tmp}, s2, 0x20001")
    k(f"s_lshl_b32 s{s_tmp}, s{s_tmp}, 2")
    k(f"s_lshr_b32 s{s_fb}, s2, 6")
    k(f"s_add_u32 s{s_fb}, s{s_fb}, s{s_tmp}")
    k(f"s_mov_b32 s{s_off}, 0")
    k(f"s_mov_b32 s{s_offw}, 0")
    k(f"s_mov_b32 s{s_cnt}, 0")
    st = Stamps(k, 'stamp' in opts, s_wave)
    for i_ in range(7): st(i_)
    save = va.n
    k(f"s_cmp_eq_u32 s{s_role}, 2")
    k(f"s_cbranch_scc1 {Lload}")

    vz = va.get(20, 4); vb = va.get(2, 2); vo1 = va.get(); vo2 = va.get(); vtrow = va.get()
    acc = va.get(40, 4)
    vZ = va.get(); vWb = va.get(); vW = va.get(); vW1 = va.get()
    ring = va.get(40, 4)
    wreg = va.get(16, 4)
    k(f"v_xor_b32 v{vt}, v{vg}, v{vn}")
    k(f"v_and_b32 v{vt}, 7, v{vt}")
    k(f"v_lshlrev_b32 v{vt}, 4, v{vt}")
    k(f"v_lshl_add_u32 v{vt}, v{vn}, 7, v{vt}")
    k(f"s_lshl_b32 s{s_tmp}, s{s_wq}, 12")
    k(f"s_add_u32 s{s_tmp}, s{s_tmp}, {ZRING}")
    k(f"v_add_u32 v{vWb}, s{s_tmp}, v{vt}")
    for i in range(40):
        k(f"v_mov_b32 v{acc+i}, 0")
    k(f"s_lshl_b32 s{s_tmp}, s{s_wq}, 5")
    k(f"s_add_u32 s{s_tmp}, s{s_tmp}, s{s_t0}")
    k(f"v_add_u32 v{vtrow}, s{s_tmp}, v{vn}")
    k(f"v_lshlrev_b32 v{vtrow}, 1, v{vtrow}")
    k(f"s_lshr_b32 s{s_tmp}, s{s_tmp}, 4")
    k(f"s_lshl_b32 s{s_tmp}, s{s_tmp}, 3")
    k(f"s_lshr_b32 s42, s{s_fb}, 1")
    k(f"s_add_u32 s{s_tmp}, s{s_tmp}, s42")
    k(f"s_mul_i32 s{s_tmp}, s{s_tmp}, 9216")
    k(f"s_and_b32 s42, s{s_fb}, 1")
    k(f"s_lshl_b32 s43, s42, 12")
    k(f"s_add_u32 s43, s43, s{s_tmp}")
    k(f"s_lshl_b32 s45, s{s_role}, 11")
    k(f"s_add_u32 s43, s43, s45")
    k(f"v_add_u32 v{vo1}, s43, v{vl16}")
    k(f"s_lshl_b32 s42, s42, 3")
    k(f"s_add_u32 s42, s42, s{s_tmp}")
    k(f"s_add_u32 s42, s42, 8192")
    k(f"v_add_u32 v{vo2}, s42, v{vl16}")
    k(f"s_mov_b32 s46, {8 * 9216}")
    k("s_waitcnt lgkmcnt(0)")
    srd(k, sZ1, 40, 41, WS_Z1, 2048 * 2304 * 2)
    srd(k, sP, 40, 41, WS_P, 2048 * 2304 * 2)
    srd(k, sB, 6, 7, 0, 4096)
    k(f"s_cmp_eq_u32 s{s_role}, 1")
    k(f"s_cbranch_scc1 {LB}")

    def consumer(tiles):
        NT = len(tiles)
        R = 2 * NT
        NRD = NT + 2
        NM = 2 * NT
        cov = {'c': -1}
        def rd(q):
            u, j = divmod(q, NRD)
            if j == 0:
                if u % 2 == 0:
                    if u > 0 and cov['c'] < (u - 1) * NRD + 1:
                        k(f"s_waitcnt lgkmcnt({q - ((u - 1) * NRD + 1) - 1})")
                        cov['c'] = (u - 1) * NRD + 1
                    k("s_barrier")
                    k(f"v_add_u32 v{vW}, s{s_offw}, v{vWb}")
            if j == 1 and u % 2 == 0:
                k(f"v_xor_b32 v{vW1}, 64, v{vW}")
            if j == 2:
                k(f"v_add_u32 v{vZ}, s{s_off}, v{vl16}")
            if j == 3:
                k(f"s_add_u32 s{s_off}, s{s_off}, {ZU}")
                if u % 2 == 0: k(f"s_add_u32 s{s_offw}, s{s_offw}, {WSL}")
            if j == 4:
                k(f"s_cmp_eq_u32 s{s_off}, {ZRING}")
                k(f"s_cselect_b32 s{s_off}, 0, s{s_off}")
            if j == 5 and u % 2 == 0:
                k(f"s_and_b32 s{s_offw}, s{s_offw}, {NW * WSL - 1}")
            if j < 2:
                k(f"ds_read_b128 {v(wreg + ((u % 2) * 2 + j) * 4, 4)}, v{vW1 if u % 2 else vW} offset:{j * 2048}")
            else:
                k(f"ds_read_b128 {v(ring + 4 * ((u * NT + j - 2) % R), 4)}, v{vZ} offset:{tiles[j - 2] * 1024}")
        def need(m):
            u, r = divmod(m, NM)
            return u * NRD + 2 + r // 2
        iss = need(LAM - 1) + 1
        for m in range(2 * NM * 3):
            if iss <= need(m + LAM): iss += 1
            if (m + 1) % (2 * NM) == 0: steady = iss - ((m + 1) // (2 * NM)) * 2 * NRD
        for q in range(steady):
            rd(q)
        for nu in range(2):
            so = "0" if nu == 0 else "s46"
            for a_ in range(2):
                k(f"buffer_load_dwordx4 {v(vz + 8 * nu + 4 * a_, 4)}, v{vo1}, s[{sZ1}:{sZ1+3}], {so} offen offset:{1024 * a_}")
            if NT == 5:
                k(f"buffer_load_dwordx2 {v(vz + 16 + 2 * nu, 2)}, v{vo2}, s[{sZ1}:{sZ1+3}], {so} offen")
            k(f"buffer_load_ushort v{vb + nu}, v{vtrow}, s[{sB}:{sB+3}], 0 offen offset:{32 * nu}")
        st(2)
        if st.on: k("s_waitcnt lgkmcnt(0)")
        issued = steady
        Lloop = k.label('loop')
        k(f"{Lloop}:")
        for h in range(2):
            for i in range(NT):
                m0 = h * NM + i * 2
                if need(m0) > cov['c']:
                    tgt = min(need(min(m0 + 2 * (WG - 1), h * NM + NM - 1)), issued - 1)
                    k(f"s_waitcnt lgkmcnt({issued - tgt - 1})")
                    cov['c'] = tgt
                A = v(ring + 4 * ((h * NT + i) % R), 4)
                for nu in range(2):
                    B = v(wreg + (h * 2 + nu) * 4, 4)
                    C = v(acc + (i * 2 + nu) * 4, 4)
                    if not NOMFMA:
                        k(f"v_mfma_f32_16x16x32_bf16 {C}, {A}, {B}, {C}")
                    if issued <= need(m0 + nu + LAM):
                        u2, j2 = divmod(issued, NRD)
                        if j2 >= 2:
                            assert (u2 * NT + j2 - 2) - R < h * NT + i, "ring too small"
                        rd(issued); issued += 1
        assert issued == steady + 2 * NRD
        k(f"s_add_u32 s{s_cnt}, s{s_cnt}, 1")
        k(f"s_cmp_lt_u32 s{s_cnt}, {CNT}")
        k(f"s_cbranch_scc1 {Lloop}")
        st(3)
        k("s_waitcnt vmcnt(0) lgkmcnt(0)")
        st(5)
        for nu in range(2):
            k(f"v_lshlrev_b32 v{vb + nu}, 16, v{vb + nu}")
        T = ring
        for nu in range(2):
            so = "0" if nu == 0 else "s46"
            for i in range(NT):
                X = [acc + (i * 2 + nu) * 4 + r for r in range(4)]
                zi = (vz + 8 * nu + 4 * (i // 2) + 2 * (i % 2)) if i < 4 else (vz + 16 + 2 * nu)
                tq = T + 8 * (i % 2)
                for pr in range(2): k(f"v_cvt_pk_bf16_f32 v{tq + pr}, v{X[2 * pr]}, v{X[2 * pr + 1]}")
                for pr in range(2):
                    k(f"v_lshlrev_b32 v{X[2 * pr]}, 16, v{tq + pr}")
                    k(f"v_and_b32 v{X[2 * pr + 1]}, 0xffff0000, v{tq + pr}")
                for r in range(4): k(f"v_add_f32 v{X[r]}, v{X[r]}, v{vb + nu}")
                for pr in range(2): k(f"v_cvt_pk_bf16_f32 v{tq + pr}, v{X[2 * pr]}, v{X[2 * pr + 1]}")
                for pr in range(2):
                    k(f"v_lshlrev_b32 v{X[2 * pr]}, 16, v{tq + pr}")
                    k(f"v_and_b32 v{X[2 * pr + 1]}, 0xffff0000, v{tq + pr}")
                    k(f"v_lshlrev_b32 v{tq + 2 + 2 * pr}, 16, v{zi + pr}")
                    k(f"v_and_b32 v{tq + 3 + 2 * pr}, 0xffff0000, v{zi + pr}")
                for r in range(4): k(f"v_mul_f32 v{X[r]}, v{X[r]}, v{tq + 2 + r}")
                for pr in range(2): k(f"v_cvt_pk_bf16_f32 v{zi + pr}, v{X[2 * pr]}, v{X[2 * pr + 1]}")
                if i < 4 and i % 2 == 1:
                    k(f"buffer_store_dwordx4 {v(vz + 8 * nu + 4 * (i // 2), 4)}, v{vo1}, s[{sP}:{sP+3}], {so} offen offset:{1024 * (i // 2)}")
                if i == 4:
                    k(f"buffer_store_dwordx2 {v(zi, 2)}, v{vo2}, s[{sP}:{sP+3}], {so} offen")
        st(6)
        st.flush(Lend, 2)
        k("s_endpgm")
    consumer([0, 1, 2, 3, 8])
    k(f"{LB}:")
    consumer([4, 5, 6, 7])

    k(f"{Lload}:")
    va.n = save
    vDz = va.get(); vDw = [va.get() for _ in range(8)]
    BIAS = 4096
    LW = k.label('wload')
    k("s_waitcnt lgkmcnt(0)")
    k(f"s_cmp_ge_u32 s{s_wq}, 2")
    k(f"s_cbranch_scc1 {LW}")
    def loader_loop(dma, n):
        RAMP = [int(c) for c in str(getopt(opts, 'ramp', 212))]
        issued = 0
        for q, cntd in enumerate(RAMP):
            for u in range(cntd):
                dma(); issued += 1
            assert issued >= q + 1 and issued <= max(AHEAD, q - 1 + AHEAD)
            k(f"s_waitcnt vmcnt({n * (issued - (q + 1))})")
            k("s_barrier")
        nb = len(RAMP)
        assert issued == nb + AHEAD - 2, (issued, nb)
        k(f"s_mov_b32 s{s_cnt}, {issued}")
        Lloop = k.label('lloop')
        k(f"{Lloop}:")
        if 'once' not in opts:
            dma()
        k(f"s_add_u32 s{s_cnt}, s{s_cnt}, 1")
        k(f"s_cmp_lt_u32 s{s_cnt}, {CNT}")
        k(f"s_waitcnt vmcnt({n * (AHEAD - 2)})")
        k("s_barrier")
        k(f"s_cbranch_scc1 {Lloop}")
        for q in range(CNT - AHEAD + 2, CNT + 1):
            k(f"s_waitcnt vmcnt({n * max(CNT - 1 - q, 0)})")
            k("s_barrier")
        k("s_endpgm")
    srd(k, sZ, 40, 41, WS_Z2T, 2304 * 2048 * 2)
    k(f"s_mul_i32 s{s_tmp}, s{s_fb}, 589824")
    k(f"v_add_u32 v{vDz}, s{s_tmp}, v{vl16}")
    k(f"s_mul_i32 s{s_kz}, s{s_wq}, {ZU}")
    k(f"s_mov_b32 s{s_off}, s{s_kz}")
    def dmaz():
        if NOLOAD:
            return
        k(f"s_mov_b32 m0, s{s_off}")
        k(f"s_add_u32 s{s_m0z}, s{s_kz}, 4096")
        for j in range(4):
            k(f"buffer_load_dwordx4 v{vDz}, s[{sZ}:{sZ+3}], s{s_kz} offen offset:{j * 1024} lds")
        k(f"s_add_u32 m0, s{s_off}, 4096")
        k(f"s_add_u32 s{s_m0w}, s{s_kz}, 8192")
        for j in range(4):
            k(f"buffer_load_dwordx4 v{vDz}, s[{sZ}:{sZ+3}], s{s_m0z} offen offset:{j * 1024} lds")
        k(f"s_add_u32 m0, s{s_off}, 8192")
        k(f"s_add_u32 s{s_off}, s{s_off}, {2 * ZU}")
        k(f"buffer_load_dwordx4 v{vDz}, s[{sZ}:{sZ+3}], s{s_m0w} offen lds")
        k(f"s_add_u32 s{s_kz}, s{s_kz}, {2 * ZU}")
        k(f"s_cmp_ge_u32 s{s_off}, {ZRING}")
        k(f"s_cselect_b32 s{s_tmp}, {ZRING}, 0")
        k(f"s_sub_u32 s{s_off}, s{s_off}, s{s_tmp}")
        if CNT != 32:
            k(f"s_cmp_ge_u32 s{s_kz}, 589824")
            k(f"s_cselect_b32 s{s_tmp}, 589824, 0")
            k(f"s_sub_u32 s{s_kz}, s{s_kz}, s{s_tmp}")
    loader_loop(dmaz, 9)
    k(f"{LW}:")
    srd(k, sW, 4, 5, -BIAS, 2048 * 2048 * 2 + BIAS)
    k(f"s_mov_b32 s{s_kw}, 0")
    k(f"s_sub_u32 s{s_tmp}, s{s_wq}, 2")
    k(f"s_lshl_b32 s{s_m0w}, s{s_tmp}, 13")
    k(f"s_add_u32 s{s_m0w}, s{s_m0w}, {ZRING}")
    k(f"s_lshl_b32 s{s_tmp}, s{s_tmp}, 6")
    k(f"s_add_u32 s{s_tmp}, s{s_tmp}, s{s_t0}")
    k(f"v_lshrrev_b32 v{vt}, 3, v{vlane}")
    k(f"v_xor_b32 v{vt2}, v{vt}, v{vlane}")
    k(f"v_and_b32 v{vt2}, 7, v{vt2}")
    k(f"v_add_u32 v{vt}, s{s_tmp}, v{vt}")
    k(f"v_lshlrev_b32 v{vt}, 12, v{vt}")
    k(f"v_lshl_add_u32 v{vt}, v{vt2}, 4, v{vt}")
    for j in range(8):
        k(f"v_add_u32 v{vDw[j]}, {BIAS + j * 8 * 4096 - (j % 4) * 1024}, v{vt}")
    def dmaw():
        if NOLOAD:
            return
        k(f"s_add_u32 m0, s{s_m0w}, s{s_offw}")
        k(f"s_add_u32 s{s_tmp}, s{s_m0w}, 4096")
        for j in range(4):
            k(f"buffer_load_dwordx4 v{vDw[j]}, s[{sW}:{sW+3}], s{s_kw} offen offset:{j * 1024} lds")
        k(f"s_add_u32 m0, s{s_tmp}, s{s_offw}")
        k(f"s_add_u32 s{s_offw}, s{s_offw}, {WSL}")
        k(f"s_and_b32 s{s_offw}, s{s_offw}, {NW * WSL - 1}")
        for j in range(4, 8):
            k(f"buffer_load_dwordx4 v{vDw[j]}, s[{sW}:{sW+3}], s{s_kw} offen offset:{(j % 4) * 1024} lds")
        k(f"s_add_u32 s{s_kw}, s{s_kw}, 128")
        if CNT != 32:
            k(f"s_and_b32 s{s_kw}, s{s_kw}, 0xfff")
    loader_loop(dmaw, 8)
    k(f"{Lend}:")
    k("s_endpgm")
    k.lds = RING
    k.threads = 768
    return k

if __name__ == "__main__":
    import sys
    opts = sys.argv[2:]
    k = gen_k2(opts=opts)
    build_file(["; k2 test"], [(k, 256, 768, k.lds)], [k], sys.argv[1])
```

```python
from common import *
from k2 import getopt
from k1 import XSTAT, SYNC, f2u, OOB, rnd_n
from kc import conv_wave, CONV_LDS

CY = SYNC + 0x4000
LOG2E = 1.4426950408889634

def gen_k3(name="k3_kernel", opts=()):
    k = Kernel(name); k.check = not [o for o in opts if o in ('stamp',)]
    FUSED = 'noconv' not in opts
    PART = 0
    XT = 4 * CONV_LDS
    YT = XT + 10240
    LDS = YT + 10240
    sP, sWF, sX, sY, sO, sWS = 8, 12, 16, 20, 24, 44
    s_wave, s_tb, s_db, s_cnt, s_tmp, s_t2, s_k, s_d0, s_dt0, s_t0, s_nt = 28, 29, 30, 31, 32, 33, 34, 35, 36, 37, 38
    Lend = k.label('end'); Lconv = k.label('conv'); L4 = k.label('nt4')
    k("s_cmp_ge_u32 s2, 256"); k(f"s_cbranch_scc1 {Lend}")
    k(f"s_load_dwordx2 s[4:5], s[0:1], {KA['q']}")
    k(f"s_load_dwordx2 s[6:7], s[0:1], {KA['out']}")
    k(f"s_load_dwordx2 s[40:41], s[0:1], {KA['ws']}")
    k(f"s_load_dwordx4 s[48:51], s[0:1], {KA['ssmk']}")
    va = Alloc(1)
    vlane = va.get(); vn = va.get(); vg = va.get(); vt = va.get(); vt2 = va.get(); vl16 = va.get()
    k(f"v_lshrrev_b32 v{vt}, 6, v0"); k(f"v_and_b32 v{vlane}, 63, v0"); k(f"v_readfirstlane_b32 s{s_wave}, v{vt}")
    k(f"v_and_b32 v{vn}, 15, v{vlane}"); k(f"v_lshrrev_b32 v{vg}, 4, v{vlane}"); k(f"v_lshlrev_b32 v{vl16}, 4, v{vlane}")
    k(f"s_and_b32 s{s_tmp}, s2, 3"); k(f"s_lshl_b32 s{s_tmp}, s{s_tmp}, 3")
    k(f"s_bfe_u32 s{s_tb}, s2, 0x30003"); k(f"s_add_u32 s{s_tb}, s{s_tb}, s{s_tmp}")
    k(f"s_bfe_u32 s{s_tmp}, s2, 0x10002"); k(f"s_lshl_b32 s{s_tmp}, s{s_tmp}, 2")
    k(f"s_lshr_b32 s{s_db}, s2, 6"); k(f"s_add_u32 s{s_db}, s{s_db}, s{s_tmp}")
    k(f"s_lshr_b32 s{s_tmp}, s{s_db}, 1"); k(f"s_mul_i32 s{s_dt0}, s{s_tmp}, 9")
    k(f"s_and_b32 s{s_t2}, s{s_db}, 1"); k(f"s_mul_i32 s{s_tmp}, s{s_t2}, 5"); k(f"s_add_u32 s{s_dt0}, s{s_dt0}, s{s_tmp}")
    k(f"s_lshl_b32 s{s_d0}, s{s_dt0}, 4")
    k(f"s_lshl_b32 s{s_t0}, s{s_tb}, 6")
    st = Stamps(k, 'stamp' in opts, s_wave)
    for i_ in range(7): st(i_)
    k("s_waitcnt lgkmcnt(0)")
    srd(k, sWS, 40, 41, WS_STAT, 0x200000)
    srd(k, sY, 40, 41, WS_YT, 576 * 4096)
    save = va.n
    k(f"s_cmp_ge_u32 s{s_wave}, 4"); k(f"s_cbranch_scc1 {Lconv}")

    srd(k, sP, 40, 41, WS_P, 2048 * 2304 * 2)
    srd(k, sWF, 40, 41, WS_WOT, 2304 * 1152)
    srd(k, sX, 4, 5, 0, 2048 * 1152)
    srd(k, sO, 6, 7, 0, 2048 * 1152)
    vP = [va.get() for _ in range(4)]; vW = [va.get() for _ in range(5)]
    vst = va.get(2, 2)
    acc = va.get(80, 4)
    buf = va.get(108, 4)
    k(f"s_mul_i32 s{s_k}, s{s_wave}, {18 * 1024}")
    k(f"s_mul_i32 s{s_tmp}, s{s_tb}, {4 * 73728}")
    for j in range(4):
        k(f"v_add_u32 v{vP[j]}, s{s_tmp}, v{vl16}")
        if j < 3: k(f"s_add_u32 s{s_tmp}, s{s_tmp}, 73728")
    k(f"s_mul_i32 s{s_tmp}, s{s_dt0}, 73728")
    for j in range(5):
        k(f"v_add_u32 v{vW[j]}, s{s_tmp}, v{vl16}")
        if j < 4: k(f"s_add_u32 s{s_tmp}, s{s_tmp}, 73728")
    k(f"s_cmp_eq_u32 s{s_t2}, 1"); k(f"s_cbranch_scc1 {L4}")

    def gemm(NT):
        NL = 4 + NT
        def loads(slot, blk):
            L = []
            for j in range(max(4, NT)):
                if j < NT: L.append(f"buffer_load_dwordx4 {v(buf + slot * 36 + 16 + 4 * j, 4)}, v{vW[j]}, s[{sWF}:{sWF+3}], s{s_k} offen offset:{1024 * blk}")
                if j < 4: L.append(f"buffer_load_dwordx4 {v(buf + slot * 36 + 4 * j, 4)}, v{vP[j]}, s[{sP}:{sP+3}], s{s_k} offen offset:{1024 * blk}")
            return L
        for sl in range(3):
            for x in loads(sl, sl): k(x)
        k(f"s_add_u32 s{s_k}, s{s_k}, 3072")
        W16 = 2 * NT
        k(f"s_mov_b32 s52, {65536 // 10 + 1}")
        for j in range(3):
            k(f"v_add_u32 v{vt}, {64 * j}, v{vlane}")
            k(f"v_mul_lo_u32 v{vt2}, v{vt}, s52")
            k(f"v_lshrrev_b32 v{vt2}, 16, v{vt2}")
            k(f"v_mul_u32_u24 v{acc}, 10, v{vt2}")
            k(f"v_sub_u32 v{acc}, v{vt}, v{acc}")
            k(f"v_mul_u32_u24 v{vt2}, 1152, v{vt2}")
            k(f"v_lshl_add_u32 v{vt2}, v{acc}, 4, v{vt2}")
            k(f"v_cmp_gt_u32 vcc, {W16}, v{acc}")
            k(f"v_mov_b32 v{acc + 1}, {OOB}")
            k(f"v_cndmask_b32 v{vt2}, v{acc + 1}, v{vt2}, vcc")
            k(f"s_lshl_b32 s{s_tmp}, s{s_wave}, 4"); k(f"s_add_u32 s{s_tmp}, s{s_tmp}, s{s_t0}")
            k(f"s_mul_i32 s{s_tmp}, s{s_tmp}, 1152"); k(f"s_lshl_b32 s53, s{s_d0}, 1"); k(f"s_add_u32 s{s_tmp}, s{s_tmp}, s53")
            k(f"s_mul_i32 s53, s{s_wave}, 2560"); k(f"s_add_u32 m0, s53, {XT + 1024 * j}")
            if j == 2: k("s_mov_b32 exec_hi, 0")
            k(f"buffer_load_dwordx4 v{vt2}, s[{sX}:{sX+3}], s{s_tmp} offen lds")
            if j == 2: k("s_mov_b32 exec_hi, -1")
        k(f"s_lshl_b32 s{s_tmp}, s{s_wave}, 4"); k(f"s_add_u32 s{s_tmp}, s{s_tmp}, s{s_t0}")
        k(f"s_lshl_b32 s{s_tmp}, s{s_tmp}, 3"); k(f"s_add_u32 s{s_tmp}, s{s_tmp}, {XSTAT - WS_STAT}")
        k(f"v_lshlrev_b32 v{vt}, 3, v{vn}")
        k(f"buffer_load_dwordx2 {v(vst, 2)}, v{vt}, s[{sWS}:{sWS+3}], s{s_tmp} offen")
        for i in range(16 * NT): k(f"v_mov_b32 v{acc + i}, 0")
        k(f"s_mov_b32 s{s_cnt}, 0")
        first = {'f': True}
        L = k.label('gloop')
        k(f"s_waitcnt vmcnt({2 * NL + 4})")
        st(2)
        k(f"s_waitcnt vmcnt({0})") if False else None
        k(f"{L}:")
        for sl in range(3):
            k(f"s_waitcnt vmcnt({2 * NL})")
            nl = loads(sl, sl)
            li = 0
            mf = [(dl, tl) for dl in range(NT) for tl in range(4)]
            for mi, (dl, tl) in enumerate(mf):
                C = v(acc + (tl * NT + dl) * 4, 4)
                k(f"v_mfma_f32_16x16x32_bf16 {C}, {v(buf + sl * 36 + 16 + 4 * dl, 4)}, {v(buf + sl * 36 + 4 * tl, 4)}, {C}")
            for x in nl: k(x)
        k(f"s_add_u32 s{s_cnt}, s{s_cnt}, 1")
        k(f"s_add_u32 s{s_k}, s{s_k}, 3072")
        k(f"s_cmp_ge_u32 s{s_cnt}, 5")
        k(f"s_cselect_b32 s{s_k}, {OOB}, s{s_k}")
        k(f"s_cmp_lt_u32 s{s_cnt}, 6")
        k(f"s_cbranch_scc1 {L}")
        st(3)
        k("s_waitcnt vmcnt(0)")
        k("s_barrier")
        k(f"s_mul_i32 s{s_tmp}, s{s_wave}, 20480")
        k(f"v_add_u32 v{vt}, s{s_tmp}, v{vl16}")
        for i in range(4 * NT):
            if i == 14: k("s_waitcnt lgkmcnt(6)")
            tl, dl = divmod(i, NT)
            k(f"ds_write_b128 v{vt}, {v(acc + 4 * i, 4)} offset:{(tl * 5 + dl) * 1024}")
        if FUSED:
            Lp = k.label('poll')
            k(f"s_lshl_b32 s{s_tmp}, s{s_dt0}, 8"); k(f"s_add_u32 s{s_tmp}, s{s_tmp}, {CY - WS_STAT}")
            k(f"v_lshlrev_b32 v{vt2}, 8, v{vlane}")
            k(f"v_mov_b32 v{buf}, {OOB}")
            k(f"v_cmp_gt_u32 vcc, {NT}, v{vlane}")
            k(f"v_cndmask_b32 v{vt2}, v{buf}, v{vt2}, vcc")
            k(f"{Lp}:")
            k(f"buffer_load_dword v{buf}, v{vt2}, s[{sWS}:{sWS+3}], s{s_tmp} offen sc1")
            k("s_waitcnt vmcnt(0)")
            k(f"v_cmp_gt_u32 vcc, 16, v{buf}")
            k(f"s_and_b32 s53, vcc_lo, {(1 << NT) - 1}")
            k(f"s_cmp_lg_u32 s53, 0")
            k(f"s_cbranch_scc1 {Lp}")
        k(f"v_lshrrev_b32 v{vt2}, 1, v{vlane}")
        k(f"v_lshlrev_b32 v{buf}, 12, v{vt2}")
        k(f"v_and_b32 v{buf + 1}, 1, v{vlane}")
        k(f"v_lshl_add_u32 v{buf}, v{buf + 1}, 4, v{buf}")
        k(f"s_lshl_b32 s{s_tmp}, s{s_d0}, 12")
        k(f"s_lshl_b32 s53, s{s_wave}, 5"); k(f"s_add_u32 s{s_tmp}, s{s_tmp}, s53")
        k(f"s_lshl_b32 s53, s{s_t0}, 1"); k(f"s_add_u32 s{s_tmp}, s{s_tmp}, s53")
        nj = (16 * NT + 31) // 32
        for j in range(nj):
            if j == 2 and NT == 5: k("s_mov_b32 exec_hi, 0")
            k(f"buffer_load_dwordx4 {v(buf + 4 + 4 * j, 4)}, v{buf}, s[{sY}:{sY+3}], s{s_tmp} offen sc1")
            if j == 2 and NT == 5: k("s_mov_b32 exec_hi, -1")
            if j + 1 < nj: k(f"s_add_u32 s{s_tmp}, s{s_tmp}, {32 * 4096}")
        k(f"s_mul_i32 s53, s{s_wave}, 2560")
        k(f"v_add_u32 v{vt2}, s53, v{vl16}")
        k(f"v_add_u32 v{vt2}, {YT}, v{vt2}")
        for j in range(nj):
            k(f"s_waitcnt vmcnt({nj - 1 - j})")
            if j == 2 and NT == 5: k("s_mov_b32 exec_hi, 0")
            k(f"ds_write_b128 v{vt2}, {v(buf + 4 + 4 * j, 4)} offset:{1024 * j}")
            if j == 2 and NT == 5: k("s_mov_b32 exec_hi, -1")
        k("s_waitcnt lgkmcnt(0)")
        k("s_barrier")
        st(4)
        X = buf; Y = buf + 4; O = buf + 8; T = buf + 12; S = buf + 16; rd_ = buf + 24
        k(f"s_mul_i32 s{s_tmp}, s{s_wave}, 5120")
        k(f"v_add_u32 v{vt}, s{s_tmp}, v{vl16}")
        k(f"v_add_u32 v{vP[1]}, 61440, v{vt}")
        k(f"v_lshrrev_b32 v{vt2}, 2, v{vn}")
        k(f"v_lshl_add_u32 v{vt2}, v{vg}, 2, v{vt2}")
        k(f"v_lshlrev_b32 v{vt2}, 5, v{vt2}")
        k(f"v_and_b32 v{T}, 3, v{vn}")
        k(f"v_lshl_add_u32 v{vt2}, v{T}, 3, v{vt2}")
        k(f"v_add_u32 v{vt2}, s53, v{vt2}")
        k(f"v_add_u32 v{vW[1]}, {YT}, v{vt2}")
        vx = vW[2]
        k(f"v_mul_u32_u24 v{vx}, 160, v{vn}")
        k(f"v_lshl_add_u32 v{vx}, v{vg}, 3, v{vx}")
        k(f"v_add_u32 v{vx}, s53, v{vx}")
        k(f"v_add_u32 v{vx}, {XT}, v{vx}")
        k(f"s_mov_b32 s52, {hex(f2u(-LOG2E))}")
        for dl in range(NT):
            for w in range(4):
                k(f"ds_read_b128 {v(rd_ + 4 * w, 4)}, v{vt if w < 3 else vP[1]} offset:{(w % 3) * 20480 + dl * 1024}")
            k(f"ds_read_b64_tr_b16 {v(S, 2)}, v{vW[1]} offset:{dl * 512}")
            k(f"ds_read_b64 {v(S + 2, 2)}, v{vW[2]} offset:{dl * 32}")
            k("s_waitcnt lgkmcnt(0)")
            for r in range(4): k(f"v_add_f32 v{O + r}, v{rd_ + r}, v{rd_ + 4 + r}")
            for r in range(4): k(f"v_add_f32 v{T + r}, v{rd_ + 8 + r}, v{rd_ + 12 + r}")
            for r in range(4): k(f"v_add_f32 v{O + r}, v{O + r}, v{T + r}")
            OL = [O + r for r in range(4)]; TL = [T + r for r in range(4)]
            XL = [X + r for r in range(4)]; YL = [Y + r for r in range(4)]
            rnd_n(k, OL, TL)
            for r in range(4): k(f"v_mul_f32 v{T + r}, s52, v{O + r}")
            for r in range(4): k(f"v_exp_f32 v{T + r}, v{T + r}")
            for j in range(2):
                k(f"v_lshlrev_b32 v{Y + 2 * j}, 16, v{S + j}"); k(f"v_and_b32 v{Y + 2 * j + 1}, 0xffff0000, v{S + j}")
                k(f"v_lshlrev_b32 v{X + 2 * j}, 16, v{S + 2 + j}"); k(f"v_and_b32 v{X + 2 * j + 1}, 0xffff0000, v{S + 2 + j}")
            for r in range(4): k(f"v_add_f32 v{T + r}, 1.0, v{T + r}")
            for r in range(4): k(f"v_rcp_f32 v{T + r}, v{T + r}")
            XN = [rd_ + r for r in range(4)]; T2 = [rd_ + 4 + r for r in range(4)]
            for r in range(4): k(f"v_sub_f32 v{XN[r]}, v{X + r}, v{vst}")
            for r in range(4): k(f"v_mul_f32 v{O + r}, v{O + r}, v{T + r}")
            rnd_n(k, XN, T2)
            rnd_n(k, OL, TL)
            for r in range(4): k(f"v_mul_f32 v{XN[r]}, v{XN[r]}, v{vst + 1}")
            rnd_n(k, XN, T2)
            for r in range(4): k(f"v_mul_f32 v{XN[r]}, v{XN[r]}, v{Y + r}")
            rnd_n(k, XN, T2)
            for r in range(4): k(f"v_mul_f32 v{XN[r]}, v{XN[r]}, v{O + r}")
            rnd_n(k, XN, T2)
            for r in range(4): k(f"v_add_f32 v{XN[r]}, v{XN[r]}, v{X + r}")
            k(f"v_cvt_pk_bf16_f32 v{S + 4}, v{XN[0]}, v{XN[1]}")
            k(f"v_cvt_pk_bf16_f32 v{S + 5}, v{XN[2]}, v{XN[3]}")
            k(f"ds_write_b64 v{vW[2]}, {v(S + 4, 2)} offset:{dl * 32}")
        k("s_waitcnt lgkmcnt(0)")
        st(5)
        k(f"s_mov_b32 s52, {65536 // 10 + 1}")
        k(f"s_lshl_b32 s{s_tmp}, s{s_wave}, 4"); k(f"s_add_u32 s{s_tmp}, s{s_tmp}, s{s_t0}")
        k(f"s_mul_i32 s{s_tmp}, s{s_tmp}, 1152"); k(f"s_lshl_b32 s{s_k}, s{s_d0}, 1"); k(f"s_add_u32 s{s_tmp}, s{s_tmp}, s{s_k}")
        k(f"v_add_u32 v{vW[3]}, s53, v{vl16}")
        k(f"v_add_u32 v{vW[3]}, {XT}, v{vW[3]}")
        for j in range(3):
            k(f"ds_read_b128 {v(rd_ + 4 * j, 4)}, v{vW[3]} offset:{1024 * j}")
        for j in range(3):
            k(f"v_add_u32 v{vt}, {64 * j}, v{vlane}")
            k(f"v_mul_lo_u32 v{vt2}, v{vt}, s52")
            k(f"v_lshrrev_b32 v{vt2}, 16, v{vt2}")
            k(f"v_mul_u32_u24 v{T}, 10, v{vt2}")
            k(f"v_sub_u32 v{T}, v{vt}, v{T}")
            k(f"v_mul_u32_u24 v{vt2}, 1152, v{vt2}")
            k(f"v_lshl_add_u32 v{vt2}, v{T}, 4, v{vt2}")
            k(f"v_cmp_gt_u32 vcc, {W16}, v{T}")
            k(f"v_mov_b32 v{T + 1}, {OOB}")
            k(f"v_cndmask_b32 v{vt2}, v{T + 1}, v{vt2}, vcc")
            if j == 2:
                k(f"v_cmp_gt_u32 vcc, 32, v{vlane}")
                k(f"v_cndmask_b32 v{vt2}, v{T + 1}, v{vt2}, vcc")
            k(f"s_waitcnt lgkmcnt({2 - j})")
            k(f"buffer_store_dwordx4 {v(rd_ + 4 * j, 4)}, v{vt2}, s[{sO}:{sO+3}], s{s_tmp} offen")
        st(6)
        st.flush(Lend, vt)
        k("s_endpgm")
    k.gemm = gemm
    gemm(5)
    k(f"{L4}:")
    gemm(4)

    k(f"{Lconv}:")
    if FUSED:
        va.n = save
        k(f"s_sub_u32 s52, s{s_wave}, 4")
        k(f"s_lshl_b32 s53, s{s_tb}, 2"); k(f"s_lshr_b32 s{s_tmp}, s{s_db}, 1"); k(f"s_add_u32 s53, s53, s{s_tmp}")
        k(f"s_lshl_b32 s54, s53, 2"); k(f"s_add_u32 s54, s54, s52")
        k(f"s_add_u32 s55, s53, 512")
        k(f"s_cmp_lt_u32 s53, 64"); k(f"s_cselect_b32 s55, s55, 9999")
        k(f"s_cmp_eq_u32 s52, 0"); k(f"s_cselect_b32 s55, s55, 9999")
        k(f"s_cmp_eq_u32 s{s_t2}, 1"); k(f"s_cselect_b32 s54, s54, s55")
        k(f"s_cmp_ge_u32 s54, 576"); k(f"s_cbranch_scc1 {Lend}")
        srd(k, 56, 48, 49, 0, 576 * 4096)
        srd(k, 60, 40, 41, WS_KVT, 576 * 4096)
        srd(k, 64, 50, 51, 0, 1152)
        k(f"s_mul_i32 s55, s52, {CONV_LDS}")
        conv_wave(k, va, 54, 55, 56, 60, 64, sY, vlane, vn, vg, s_tmp, s_cnt, sc1=True)
        k("s_waitcnt vmcnt(0)")
        k(f"s_lshr_b32 s{s_tmp}, s54, 4"); k(f"s_lshl_b32 s{s_tmp}, s{s_tmp}, 8"); k(f"s_add_u32 s{s_tmp}, s{s_tmp}, {CY - WS_STAT}")
        k(f"v_mov_b32 v{vt}, s{s_tmp}"); k(f"v_mov_b32 v{vt2}, 1")
        k("s_mov_b64 exec, 1")
        k(f"buffer_atomic_add v{vt2}, v{vt}, s[{sWS}:{sWS+3}], 0 offen sc1")
        st.flush(Lend, vt)
    k(f"{Lend}:"); k("s_endpgm")
    k.lds = LDS
    return k
```

```python
from common import *
from k2 import getopt

CST = 4160
CONV_LDS = 4 * CST + 4608
def conv_wave(k, va, s_d, s_lb, sH, sU, sD, sY, vlane, vn, vg, s_tmp, s_cnt, sc1=False, opts=()):
    UB = 4 * CST
    t = va.get(); t2 = va.get(); vA = va.get(); vB = va.get(); vd = va.get()
    acc = va.get(32, 4); fa = va.get(64, 4); fb = va.get(64, 4)
    k(f"v_lshlrev_b32 v{t}, 4, v{vlane}")
    k(f"s_lshl_b32 s{s_tmp}, s{s_d}, 12")
    k(f"s_add_u32 m0, s{s_lb}, {UB}")
    k("s_nop 0")
    for j in range(4):
        k(f"buffer_load_dwordx4 v{t}, s[{sU}:{sU+3}], s{s_tmp} offen offset:{1024 * j} lds")
    for c in range(4):
        k(f"s_add_u32 m0, s{s_lb}, {c * CST + 32}")
        if c: k(f"s_add_u32 s{s_tmp}, s{s_tmp}, 2")
        else: k("s_nop 0")
        for j in range(4):
            k(f"buffer_load_dwordx4 v{t}, s[{sH}:{sH+3}], s{s_tmp} offen offset:{1024 * j} lds")
    k(f"s_lshl_b32 s{s_tmp}, s{s_d}, 1")
    k(f"v_mov_b32 v{t2}, s{s_tmp}")
    k(f"buffer_load_ushort v{vd}, v{t2}, s[{sD}:{sD+3}], 0 offen")
    for i in range(32): k(f"v_mov_b32 v{acc + i}, 0")
    k(f"v_lshlrev_b32 v{t2}, 3, v{vlane}")
    k(f"v_add_u32 v{t2}, s{s_lb}, v{t2}")
    k(f"ds_write_b64 v{t2}, {v(acc, 2)} offset:{UB + 4096}")
    k(f"v_bfe_u32 v{t2}, v{vlane}, 2, 2")
    k(f"v_mul_u32_u24 v{t2}, {CST}, v{t2}")
    k(f"v_and_b32 v{t}, 3, v{vlane}")
    k(f"v_lshl_add_u32 v{t2}, v{t}, 3, v{t2}")
    k(f"v_add_u32 v{t2}, s{s_lb}, v{t2}")
    k(f"ds_write_b64 v{t2}, {v(acc, 2)}")
    k(f"v_lshl_add_u32 v{t2}, v{vg}, 3, v{vn}")
    k(f"v_add_u32 v{t2}, 1, v{t2}")
    k(f"v_and_b32 v{vA}, 3, v{t2}")
    k(f"v_mul_u32_u24 v{vA}, {CST}, v{vA}")
    k(f"v_lshrrev_b32 v{t2}, 2, v{t2}")
    k(f"v_lshl_add_u32 v{vA}, v{t2}, 3, v{vA}")
    k(f"v_add_u32 v{vA}, s{s_lb}, v{vA}")
    k(f"v_lshlrev_b32 v{vB}, 5, v{vn}")
    k(f"v_lshlrev_b32 v{t2}, 4, v{vg}")
    k(f"v_sub_u32 v{vB}, v{t2}, v{vB}")
    k(f"s_add_u32 s{s_tmp}, s{s_lb}, {UB + 4064 - 3584}")
    k(f"v_add_u32 v{vB}, s{s_tmp}, v{vB}")
    k(f"v_lshlrev_b32 v{t2}, 1, v{t}")
    k(f"v_add_u32 v{t2}, s{s_lb}, v{t2}")
    k(f"v_mul_u32_u24 v{t}, {CST}, v{t}")
    k(f"v_add_u32 v{t}, s{s_lb}, v{t}")
    k("s_waitcnt vmcnt(0) lgkmcnt(0)")
    k(f"ds_read_b64 {v(fa, 2)}, v{t2} offset:24")
    k("s_waitcnt lgkmcnt(0)")
    k(f"ds_write_b64 v{t}, {v(fa, 2)} offset:24")
    k("s_waitcnt lgkmcnt(0)")
    def reads(buf, off):
        L = []
        for i in range(8):
            L.append(f"ds_read_b128 {v(fb + buf * 32 + 4 * i, 4)}, v{vB} offset:{512 * (7 - i) + off}")
            L.append(f"ds_read_b64 {v(fa + buf * 32 + 4 * i, 2)}, v{vA} offset:{512 * i + off}")
            L.append(f"ds_read_b64 {v(fa + buf * 32 + 4 * i + 2, 2)}, v{vA} offset:{512 * i + off + 8}")
        return L
    order = sorted([(q, p) for q in range(8) for p in range(8) if q + p <= 7], key=lambda x: (max(x), x[0] + x[1]))
    PRE = 12
    first = reads(0, 0)
    for x in first[:PRE]: k(x)
    k(f"s_mov_b32 s{s_cnt}, 0")
    L = k.label('cloop')
    k(f"{L}:")
    for half in range(2):
        stream = reads(half, 64 * half)[PRE:] + reads(1 - half, 64 * (half + 1))[:PRE]
        issued = PRE; got = 0
        for mi, (q, p) in enumerate(order):
            needn = 3 * max(q, p) + 3
            while issued < needn:
                if issued - got >= 15:
                    k(f"s_waitcnt lgkmcnt(13)"); got = issued - 13
                k(stream[issued - PRE]); issued += 1
            if needn > got:
                k(f"s_waitcnt lgkmcnt({issued - needn})")
                got = needn
            C = v(acc + 4 * (q + p), 4)
            k(f"v_mfma_f32_16x16x32_bf16 {C}, {v(fa + half * 32 + 4 * q, 4)}, {v(fb + half * 32 + 4 * p, 4)}, {C}")
            n = 2 if issued < 24 else 1
            for _ in range(n):
                if issued < 24 + PRE and issued - got < 14:
                    k(stream[issued - PRE]); issued += 1
        while issued < 24 + PRE:
            k(stream[issued - PRE]); issued += 1
    k(f"v_add_u32 v{vA}, 128, v{vA}")
    k(f"v_add_u32 v{vB}, 128, v{vB}")
    k(f"s_add_u32 s{s_cnt}, s{s_cnt}, 1")
    k(f"s_cmp_lt_u32 s{s_cnt}, 4")
    k(f"s_cbranch_scc1 {L}")
    k("s_waitcnt lgkmcnt(0)")
    k(f"v_lshlrev_b32 v{t}, 5, v{vn}")
    k(f"v_lshl_add_u32 v{t}, v{vg}, 3, v{t}")
    k(f"s_add_u32 s{s_tmp}, s{s_lb}, {UB + 4088 - 3584}")
    k(f"v_sub_u32 v{t2}, s{s_tmp}, v{t}")
    for nt in range(8):
        k(f"ds_read_b64 {v(fa + 2 * nt, 2)}, v{t2} offset:{512 * (7 - nt)}")
    k(f"v_lshlrev_b32 v{vd}, 16, v{vd}")
    k(f"s_lshl_b32 s{s_tmp}, s{s_d}, 12")
    k("s_waitcnt lgkmcnt(0)")
    for nt in range(8):
        Y = [acc + 4 * nt + r for r in range(4)]
        U = [fb + 4 * (nt % 2) + r for r in range(4)]
        T = fb + 8 + 2 * (nt % 2)
        k(f"v_and_b32 v{U[0]}, 0xffff0000, v{fa + 2 * nt + 1}")
        k(f"v_lshlrev_b32 v{U[1]}, 16, v{fa + 2 * nt + 1}")
        k(f"v_and_b32 v{U[2]}, 0xffff0000, v{fa + 2 * nt}")
        k(f"v_lshlrev_b32 v{U[3]}, 16, v{fa + 2 * nt}")
        for r in range(4): k(f"v_mul_f32 v{U[r]}, v{U[r]}, v{vd}")
        rnd2(k, U[0], U[1], T); rnd2(k, U[2], U[3], T + 1)
        rnd2(k, Y[0], Y[1], T); rnd2(k, Y[2], Y[3], T + 1)
        for r in range(4): k(f"v_add_f32 v{Y[r]}, v{Y[r]}, v{U[r]}")
        k(f"v_cvt_pk_bf16_f32 v{fb + 16 + 2 * nt}, v{Y[0]}, v{Y[1]}")
        k(f"v_cvt_pk_bf16_f32 v{fb + 17 + 2 * nt}, v{Y[2]}, v{Y[3]}")
        k(f"buffer_store_dwordx2 {v(fb + 16 + 2 * nt, 2)}, v{t}, s[{sY}:{sY+3}], s{s_tmp} offen offset:{512 * nt}{' sc1' if sc1 else ''}")

def gen_kc(name="kc_kernel", opts=()):
    k = Kernel(name)
    Lend = k.label('end')
    k("s_cmp_ge_u32 s2, 144"); k(f"s_cbranch_scc1 {Lend}")
    k(f"s_load_dwordx4 s[4:7], s[0:1], {KA['ssmk']}")
    k(f"s_load_dwordx2 s[44:45], s[0:1], {KA['ws']}")
    va = Alloc(1)
    vlane = va.get(); vn = va.get(); vg = va.get(); vt = va.get()
    k(f"v_lshrrev_b32 v{vt}, 6, v0"); k(f"v_and_b32 v{vlane}, 63, v0"); k(f"v_readfirstlane_b32 s30, v{vt}")
    k(f"v_and_b32 v{vn}, 15, v{vlane}"); k(f"v_lshrrev_b32 v{vg}, 4, v{vlane}")
    st = Stamps(k, 'stamp' in opts, 30)
    for i_ in range(7): st(i_)
    k("s_waitcnt lgkmcnt(0)")
    srd(k, 8, 4, 5, 0, 576 * 4096)
    srd(k, 12, 44, 45, WS_KVT, 576 * 4096)
    srd(k, 16, 6, 7, 0, 1152)
    srd(k, 20, 44, 45, WS_YT, 576 * 4096)
    k("s_lshl_b32 s31, s2, 2"); k("s_add_u32 s31, s31, s30")
    k(f"s_mul_i32 s32, s30, {CONV_LDS}")
    conv_wave(k, va, 31, 32, 8, 12, 16, 20, vlane, vn, vg, 36, 37)
    st.flush(Lend, 2)
    k(f"{Lend}:"); k("s_endpgm")
    k.lds = 4 * CONV_LDS
    if 'stamp' in opts: k.check = False
    return k

if __name__ == "__main__":
    import sys
    from k0 import gen_k0
    k0 = gen_k0(); kc = gen_kc(opts=sys.argv[2:])
    build_file(["; k0+kc test"], [(k0, 288, 256, k0.lds), (kc, 144, 256, kc.lds)], [k0, kc], sys.argv[1])
```

```python
import sys
from common import *
from k0 import gen_k0
from k1 import gen_k1
from k2 import gen_k2
from k3 import gen_k3
HEADER = open('recurrent_scan__ssm_conv_h3__mixer_gmlp__prompt.s.ref').read().split('; Override launch')[0].rstrip('\n').split('\n')
def build(path, opts=()):
    k0 = gen_k0(); k1 = gen_k1(opts=[o[3:] for o in opts if o.startswith('k1:')]); k2 = gen_k2(opts=[o[3:] for o in opts if o.startswith('k2:')]); k3 = gen_k3(opts=[o[3:] for o in opts if o.startswith('k3:')])
    build_file(HEADER, [(k1, 256, 512, k1.lds), (k2, 256, 768, k2.lds), (k3, 256, 512, k3.lds)], [k1, k2, k3], path)
if __name__ == "__main__":
    build(sys.argv[1], sys.argv[2:])
```

```python
from asmgen import *

WS_Z1   = 0x0000000
WS_Z2T  = 0x1000000
WS_P    = 0x2000000
WS_XN   = 0x3000000
WS_KVT  = 0x3400000
WS_YT   = 0x3800000
WS_WOT  = 0x3C00000
WS_STAT = 0x4000000
WS_STAMP = 0x4800000
WS_SIZE = 268435456

KA = dict(q=0, k=8, v=16, shk=24, ssmk=32, ssmD=40, bx=48, win=56, wsp=64, bsp=72, wout=80, out=88, dbg=96, ws=104)

def srd(k, sr, base_lo, base_hi, off, size):
    if off == 0:
        k(f"s_mov_b32 s{sr}, s{base_lo}")
        k(f"s_mov_b32 s{sr+1}, s{base_hi}")
    elif off > 0:
        k(f"s_add_u32 s{sr}, s{base_lo}, {off}")
        k(f"s_addc_u32 s{sr+1}, s{base_hi}, 0")
    else:
        k(f"s_sub_u32 s{sr}, s{base_lo}, {-off}")
        k(f"s_subb_u32 s{sr+1}, s{base_hi}, 0")
    k(f"s_mov_b32 s{sr+2}, {size}")
    k(f"s_mov_b32 s{sr+3}, 0x20000")

def rnd2(k, x0, x1, tmp):
    k(f"v_cvt_pk_bf16_f32 v{tmp}, v{x0}, v{x1}")
    k(f"v_lshlrev_b32 v{x0}, 16, v{tmp}")
    k(f"v_and_b32 v{x1}, 0xffff0000, v{tmp}")


class Stamps:
    def __init__(self, k, on, s_wave, wg=77, span=None):
        self.k = k; self.on = on; self.n = 0; self.s_wave = s_wave; self.wg = wg; self.span = span
        if span is not None:
            k(f"s_load_dwordx2 s[68:69], s[0:1], {KA['ws']}")
            k("s_memrealtime s[96:97]")
        if on:
            k(f"s_load_dwordx2 s[68:69], s[0:1], {KA['ws']}")
            k("s_memrealtime s[96:97]")
    def __call__(self, idx):
        if self.on:
            self.k(f"s_memtime s[{70 + 2 * idx}:{71 + 2 * idx}]")
    def flush(self, Lend, vtmp):
        if self.span is not None:
            span_end(self.k, True, self.s_wave, 2, self.span)
        if not self.on: return
        k = self.k
        k("s_waitcnt vmcnt(0)")
        k("s_memtime s[84:85]")
        k("s_memrealtime s[98:99]")
        k("s_waitcnt lgkmcnt(0)")
        k("s_sub_u32 s98, s98, s96")
        k(f"s_cmp_lg_u32 s2, {self.wg}")
        k(f"s_cbranch_scc1 {Lend}")
        srd(k, 88, 68, 69, WS_STAMP, 256)
        k(f"s_lshl_b32 s92, s{self.s_wave}, 5")
        k(f"v_mov_b32 v{vtmp}, s92")
        k("s_mov_b64 exec, 1")
        for i in range(1, 8):
            k(f"s_sub_u32 s93, s{70 + 2 * i}, s70")
            k(f"v_mov_b32 v{vtmp + 1}, s93")
            k(f"buffer_store_dword v{vtmp + 1}, v{vtmp}, s[88:91], 0 offen offset:{4 * i}")
        k(f"v_mov_b32 v{vtmp + 1}, s98")
        k(f"buffer_store_dword v{vtmp + 1}, v{vtmp}, s[88:91], 0 offen")


def span_begin(k, on):
    if on:
        k(f"s_load_dwordx2 s[68:69], s[0:1], {KA['ws']}")
        k("s_memrealtime s[96:97]")
def span_end(k, on, s_wave, vt, slot):
    if not on: return
    k("s_waitcnt vmcnt(0)")
    k("s_memrealtime s[98:99]")
    k("s_waitcnt lgkmcnt(0)")
    srd(k, 88, 68, 69, WS_STAMP + 0x1000 + slot * 0x10000, 0x10000)
    k(f"s_lshl_b32 s92, s2, 4"); k(f"s_add_u32 s92, s92, s{s_wave}"); k("s_lshl_b32 s92, s92, 3")
    k(f"v_mov_b32 v{vt}, s92"); k(f"v_mov_b32 v{vt + 1}, s96"); k(f"v_mov_b32 v{vt + 2}, s98")
    k("s_mov_b64 exec, 1")
    k(f"buffer_store_dword v{vt + 1}, v{vt}, s[88:91], 0 offen")
    k(f"buffer_store_dword v{vt + 2}, v{vt}, s[88:91], 0 offen offset:4")
```

```python
from common import *
OOB = 0x7ff00000

def kv_job(k, Q, base, s_tile, sK, sV, sSH, sKV, vlane, LB, S, s_wq):
    va = Alloc(base, 168)
    s_tmp, s_t2, sa_ = S[0], S[1], S[2]
    t = va.get(); t2 = va.get(); vrow = va.get(); vch = va.get(); voff = va.get(); voob = va.get()
    kk = va.get(60, 4); w = va.get(32, 4)
    acc_ = va.get(8, 4); pr = va.get(8, 4); tp = va.get(4, 4)
    k(f"s_lshr_b32 s{s_tmp}, s{s_tile}, 3"); k(f"s_lshl_b32 s{s_tmp}, s{s_tmp}, 6")
    k(f"s_and_b32 s{s_t2}, s{s_tile}, 7"); k(f"s_mul_i32 s{s_t2}, s{s_t2}, 72")
    k(f"v_mul_u32_u24 v{vrow}, 7282, v{vlane}")
    k(f"v_lshrrev_b32 v{vrow}, 16, v{vrow}")
    k(f"v_mul_u32_u24 v{vch}, 9, v{vrow}")
    k(f"v_sub_u32 v{vch}, v{vlane}, v{vch}")
    k(f"s_mul_i32 s{sa_}, s{s_wq}, 7")
    k(f"v_add_u32 v{vrow}, s{sa_}, v{vrow}")
    k(f"v_cmp_eq_u32 vcc, 63, v{vlane}")
    k(f"v_cndmask_b32 v{vrow}, v{vrow}, 64, vcc")
    k(f"v_add_u32 v{t}, s{s_tmp}, v{vrow}")
    k(f"v_mul_u32_u24 v{voff}, 1152, v{t}")
    k(f"v_lshl_add_u32 v{voff}, v{vch}, 4, v{voff}")
    k(f"s_lshl_b32 s{sa_}, s{s_t2}, 1")
    k(f"v_add_u32 v{voff}, s{sa_}, v{voff}")
    k(f"v_mov_b32 v{voob}, {OOB}")
    k(f"v_lshlrev_b32 v{t2}, 6, v{vch}")
    k(f"s_lshl_b32 s{sa_}, s{s_t2}, 3")
    for j in range(4):
        Q(f"buffer_load_dwordx4 {v(w + 16 + 4 * j, 4)}, v{t2}, s[{sSH}:{sSH+3}], s{sa_} offen offset:{16 * j}", "kv")
    for it in range(3):
        k(f"s_mov_b32 s{sa_}, {it * 28 * 1152}")
        k(f"v_cmp_gt_u32 vcc, {64 - 28 * it}, v{vrow}")
        k(f"v_cndmask_b32 v{acc_}, v{voob}, v{voff}, vcc")
        Q(f"buffer_load_dwordx4 {v(kk + it * 20 + 16, 4)}, v{acc_}, s[{sV}:{sV+3}], s{sa_} offen", "kv")
    k(f"s_mul_i32 s{sa_}, s{s_tmp}, 1152"); k(f"s_lshl_b32 s{S[3]}, s{s_t2}, 1"); k(f"s_add_u32 s{sa_}, s{sa_}, s{S[3]}")
    k(f"s_cmp_eq_u32 s{s_tmp}, 0"); k(f"s_cselect_b32 s{S[3]}, 27, 0")
    for j in range(3):
        k(f"s_mul_i32 s{S[4]}, s{s_wq}, 192"); k(f"s_add_u32 s{S[4]}, s{S[4]}, {64 * j}")
        k(f"v_add_u32 v{t}, s{S[4]}, v{vlane}")
        k(f"v_mul_u32_u24 v{t2}, 7282, v{t}")
        k(f"v_lshrrev_b32 v{t2}, 16, v{t2}")
        k(f"v_mul_u32_u24 v{pr}, 9, v{t2}")
        k(f"v_sub_u32 v{pr}, v{t}, v{pr}")
        k(f"v_mul_u32_u24 v{t2}, 1152, v{t2}")
        k(f"v_lshl_add_u32 v{t2}, v{pr}, 4, v{t2}")
        k(f"v_cmp_gt_u32 vcc, s{S[3]}, v{t}")
        k(f"v_cndmask_b32 v{t2}, v{t2}, v{voob}, vcc")
        k(f"v_cmp_lt_u32 vcc, 602, v{t}")
        k(f"v_cndmask_b32 v{t2}, v{t2}, v{voob}, vcc")
        k(f"s_lshl_b32 s{S[4]}, s{S[4]}, 4"); k(f"s_add_u32 m0, s{S[4]}, {LB}")
        Q(f"buffer_load_dwordx4 v{t2}, s[{sK}:{sK+3}], s{sa_} offen lds", "kv")
    yield 'L'
    yield 'L'
    Q.wait("kv")
    yield 'B'
    k(f"v_min_u32 v{t}, 63, v{vrow}")
    k(f"v_mul_u32_u24 v{t2}, 144, v{t}")
    k(f"v_lshl_add_u32 v{t2}, v{vch}, 4, v{t2}")
    k(f"v_add_u32 v{t2}, {LB}, v{t2}")
    for it in range(3):
        for j in range(4):
            k(f"ds_read_b128 {v(kk + it * 20 + 4 * j, 4)}, v{t2} offset:{(28 * it + 3 - j) * 144}")
    k("s_waitcnt lgkmcnt(0)")
    yield 'B'
    for e in range(8):
        k(f"v_mov_b32 v{pr + e}, v{w + 16 + 2 * e}"); k(f"v_mov_b32 v{acc_ + e}, v{w + 17 + 2 * e}")
    for j in range(4):
        for e in range(8):
            src_ = (pr if j < 2 else acc_) + e
            d_ = w + 8 * j + e
            if j % 2 == 0:
                k(f"v_and_b32 v{d_}, 0xffff, v{src_}" if e % 2 == 0 else f"v_lshlrev_b32 v{d_}, 16, v{src_}")
            else:
                k(f"v_lshrrev_b32 v{d_}, 16, v{src_}" if e % 2 == 0 else f"v_and_b32 v{d_}, 0xffff0000, v{src_}")
    k(f"s_mov_b32 s{S[3]}, 0x3f803f80")
    k(f"v_lshlrev_b32 v{voff}, 4, v{vch}")
    k(f"v_add_u32 v{voff}, {LB}, v{voff}")
    for it in range(3):
        K_ = kk + it * 20
        for e in range(8): k(f"v_dot2_f32_bf16 v{acc_ + e}, v{K_ + 12 + e // 2}, v{w + 24 + e}, 0")
        for j in (2, 1, 0):
            for e in range(8): k(f"v_dot2_f32_bf16 v{pr + e}, v{K_ + 4 * j + e // 2}, v{w + 8 * j + e}, 0")
            for e in range(8): k(f"v_cvt_pk_bf16_f32 v{pr + e}, v{pr + e}, v{acc_ + e}")
            for e in range(8): k(f"v_dot2_f32_bf16 v{acc_ + e}, v{pr + e}, s{S[3]}, 0")
        for c in range(4):
            k(f"v_and_b32 v{pr + 2 * c}, 0xffff, v{K_ + 16 + c}")
            k(f"v_and_b32 v{pr + 2 * c + 1}, 0xffff0000, v{K_ + 16 + c}")
        for c in range(4): k(f"v_cvt_pk_bf16_f32 v{tp + c}, v{acc_ + 2 * c}, v{acc_ + 2 * c + 1}")
        for e in range(8): k(f"v_dot2_f32_bf16 v{acc_ + e}, v{tp + e // 2}, v{pr + e}, 0")
        k(f"v_sub_u32 v{t}, {63 - 28 * it}, v{vrow}")
        k(f"v_cmp_gt_u32 vcc, {64 - 28 * it}, v{vrow}")
        k(f"v_cndmask_b32 v{t}, 64, v{t}, vcc")
        k(f"v_mul_u32_u24 v{t}, 144, v{t}")
        k(f"v_add_u32 v{t2}, v{t}, v{voff}")
        for c in range(4): k(f"v_cvt_pk_bf16_f32 v{K_ + c}, v{acc_ + 2 * c}, v{acc_ + 2 * c + 1}")
        k(f"ds_write_b128 v{t2}, {v(K_, 4)}")
    k("s_waitcnt lgkmcnt(0)")
    yield 'B'
    k(f"v_and_b32 v{vch}, 15, v{vlane}"); k(f"v_lshrrev_b32 v{vrow}, 4, v{vlane}")
    k(f"v_lshrrev_b32 v{t}, 2, v{vch}")
    k(f"v_lshl_add_u32 v{t}, v{vrow}, 3, v{t}")
    k(f"v_mul_u32_u24 v{t}, 144, v{t}")
    k(f"v_and_b32 v{t2}, 3, v{vch}")
    k(f"v_lshl_add_u32 v{t}, v{t2}, 3, v{t}")
    k(f"s_and_b32 s{sa_}, s{s_wq}, 1"); k(f"s_mul_i32 s{S[3]}, s{sa_}, {32 * 144}")
    k(f"s_lshr_b32 s{S[4]}, s{s_wq}, 1"); k(f"s_lshl_b32 s{S[4]}, s{S[4]}, 5"); k(f"s_add_u32 s{S[3]}, s{S[3]}, s{S[4]}")
    k(f"s_add_u32 s{S[3]}, s{S[3]}, {LB}")
    k(f"v_add_u32 v{t}, s{S[3]}, v{t}")
    for j in range(3):
        k(f"ds_read_b64_tr_b16 {v(kk + 4 * j, 2)}, v{t} offset:{64 * j}")
        k(f"ds_read_b64_tr_b16 {v(kk + 4 * j + 2, 2)}, v{t} offset:{64 * j + 4 * 144}")
    k(f"s_lshr_b32 s{S[4]}, s{S[4]}, 1")
    k(f"v_add_u32 v{vch}, s{S[4]}, v{vch}")
    k(f"v_add_u32 v{t2}, s{s_t2}, v{vch}")
    k(f"v_lshlrev_b32 v{t2}, 12, v{t2}")
    k(f"v_lshl_add_u32 v{t2}, v{vrow}, 4, v{t2}")
    k(f"s_sub_u32 s{s_tmp}, 1984, s{s_tmp}"); k(f"s_lshl_b32 s{s_tmp}, s{s_tmp}, 1")
    k(f"s_lshl_b32 s{sa_}, s{sa_}, 6"); k(f"s_add_u32 s{s_tmp}, s{s_tmp}, s{sa_}")
    k(f"v_add_u32 v{t2}, s{s_tmp}, v{t2}")
    k(f"v_cmp_gt_u32 vcc, 8, v{vch}")
    k(f"v_cndmask_b32 v{t}, v{voob}, v{t2}, vcc")
    k(f"s_mov_b32 s{sa_}, {32 * 4096}")
    k(f"s_mov_b32 s{s_tmp}, {64 * 4096}")
    k("s_waitcnt lgkmcnt(0)")
    Q(f"buffer_store_dwordx4 {v(kk, 4)}, v{t2}, s[{sKV}:{sKV+3}], 0 offen", "st")
    Q(f"buffer_store_dwordx4 {v(kk + 4, 4)}, v{t2}, s[{sKV}:{sKV+3}], s{sa_} offen", "st")
    Q(f"buffer_store_dwordx4 {v(kk + 8, 4)}, v{t}, s[{sKV}:{sKV+3}], s{s_tmp} offen", "st")
    yield 'B'

class Rec:
    def __init__(self): self.ev = []
    def __call__(self, text): self.ev.append(('i', text))
class RecQ:
    def __init__(self, r): self.r = r
    def __call__(self, text, tag=None): self.r.ev.append(('q', text, tag))
    def wait(self, tag): self.r.ev.append(('w', tag))
def chunk(ev, N):
    out = [[]]; n = 0
    for i, e in enumerate(ev):
        if e[0] == 'brk':
            out.append([]); n = 0; continue
        prev = out[-1][-1] if out[-1] else None
        sticky = prev is not None and prev[0] == 'i' and (prev[1].startswith('v_cmp') or prev[1].startswith('s_cmp') or prev[1].startswith('s_cselect') or prev[1].startswith('ds_') or ' m0,' in prev[1])
        if n >= N and not sticky:
            out.append([]); n = 0
        out[-1].append(e); n += 1
    return out

def wo_loads(k, Q, base, s_tile, sWO, vlane, S, s_wq):
    va = Alloc(base, 168)
    s_kb, s_dq, a0, a1, a2, a3, a4, a5 = S
    t = va.get(); t2 = va.get(); t3 = va.get(); ld = va.get(12, 4); fr = va.get(12, 4)
    k(f"s_lshr_b32 s{s_kb}, s{s_tile}, 2")
    k(f"s_and_b32 s{s_dq}, s{s_tile}, 3")
    k(f"s_mul_i32 s{a0}, s{s_kb}, 7282")
    k(f"s_lshr_b32 s{a0}, s{a0}, 16")
    k(f"s_mul_i32 s{a1}, s{a0}, 9")
    k(f"s_sub_u32 s{a1}, s{s_kb}, s{a1}")
    k(f"s_lshr_b32 s{a2}, s{a1}, 2")
    k(f"s_lshl_b32 s{a3}, s{a0}, 1")
    k(f"s_add_u32 s{a2}, s{a2}, s{a3}")
    k(f"s_mul_i32 s{a2}, s{a2}, 144")
    k(f"s_and_b32 s{a4}, s{a1}, 3")
    k(f"s_lshl_b32 s{a4}, s{a4}, 5")
    k(f"s_add_u32 s{a2}, s{a2}, s{a4}")
    k(f"s_mul_i32 s{a3}, s{a3}, 144")
    k(f"s_add_u32 s{a3}, s{a3}, 128")
    k(f"s_cmp_eq_u32 s{a1}, 8")
    k(f"s_cselect_b32 s{a2}, s{a3}, s{a2}")
    k(f"s_cselect_b32 s{a3}, 144, 16")
    k(f"s_mul_i32 s{a4}, s{s_dq}, 288")
    for j in range(3):
        k(f"s_lshl_b32 s{a5}, s{s_wq}, 6")
        k(f"s_add_u32 s{a5}, s{a5}, {256 * j}")
        k(f"v_add_u32 v{t}, s{a5}, v{vlane}")
        k(f"v_mul_u32_u24 v{t2}, 3641, v{t}")
        k(f"v_lshrrev_b32 v{t2}, 16, v{t2}")
        k(f"v_mul_u32_u24 v{t3}, 18, v{t2}")
        k(f"v_sub_u32 v{t3}, v{t}, v{t3}")
        k(f"v_lshrrev_b32 v{fr}, 4, v{t2}")
        k(f"v_mul_lo_u32 v{fr}, v{fr}, s{a3}")
        k(f"v_and_b32 v{t2}, 15, v{t2}")
        k(f"v_add3_u32 v{t2}, v{t2}, v{fr}, s{a2}")
        k(f"v_mul_u32_u24 v{t2}, 1152, v{t2}")
        k(f"v_lshl_add_u32 v{t2}, v{t3}, 4, v{t2}")
        k(f"v_add_u32 v{t2}, s{a4}, v{t2}")
        if j == 2:
            k(f"v_cmp_gt_u32 vcc, 576, v{t}")
            k(f"v_mov_b32 v{t3}, {OOB}")
            k(f"v_cndmask_b32 v{t2}, v{t3}, v{t2}, vcc")
        Q(f"buffer_load_dwordx4 {v(ld + 4 * j, 4)}, v{t2}, s[{sWO}:{sWO+3}], 0 offen", "wo")
    return (t, t2, t3, ld, fr)

def wo_job(k, Q, state, sWF, vlane, vn, vg, LB, S, s_wq):
    t, t2, t3, ld, fr = state
    s_kb, s_dq, a0, a1, a2, a3, a4, a5 = S
    Q.wait("wo")
    k(f"s_lshl_b32 s{a5}, s{s_wq}, 10")
    k(f"s_add_u32 s{a5}, s{a5}, {LB}")
    k(f"v_lshlrev_b32 v{t}, 4, v{vlane}")
    k(f"v_add_u32 v{t}, s{a5}, v{t}")
    for j in range(3):
        k(f"ds_write_b128 v{t}, {v(ld + 4 * j, 4)} offset:{4096 * j}")
    k("s_waitcnt lgkmcnt(0)")
    yield 'B'
    k(f"v_lshrrev_b32 v{t}, 2, v{vn}")
    k(f"v_lshl_add_u32 v{t}, v{vg}, 2, v{t}")
    k(f"v_mul_u32_u24 v{t}, 288, v{t}")
    k(f"v_and_b32 v{t2}, 3, v{vn}")
    k(f"v_lshl_add_u32 v{t}, v{t2}, 3, v{t}")
    k(f"v_add_u32 v{t}, {LB}, v{t}")
    k(f"s_lshl_b32 s{a5}, s{s_wq}, 5")
    k(f"v_add_u32 v{t2}, s{a5}, v{t}")
    for j in range(2):
        k(f"ds_read_b64_tr_b16 {v(fr + 4 * j, 2)}, v{t2} offset:{128 * j}")
        k(f"ds_read_b64_tr_b16 {v(fr + 4 * j + 2, 2)}, v{t2} offset:{128 * j + 16 * 288}")
    k(f"ds_read_b64_tr_b16 {v(fr + 8, 2)}, v{t} offset:256")
    k(f"ds_read_b64_tr_b16 {v(fr + 10, 2)}, v{t} offset:{256 + 16 * 288}")
    k(f"s_mul_i32 s{a5}, s{s_dq}, {9 * 72}")
    k(f"s_add_u32 s{a5}, s{a5}, s{s_kb}")
    k(f"s_lshl_b32 s{a5}, s{a5}, 10")
    k(f"v_lshlrev_b32 v{t3}, 4, v{vlane}")
    k(f"v_add_u32 v{t3}, s{a5}, v{t3}")
    k(f"s_mul_i32 s{a0}, s{s_wq}, {72 * 1024}")
    k(f"s_add_u32 s{a1}, s{a0}, {4 * 72 * 1024}")
    k(f"s_cmp_eq_u32 s{s_wq}, 0")
    k(f"s_cselect_b32 s{a2}, {8 * 72 * 1024}, {OOB}") if False else None
    k(f"s_mov_b32 s{a2}, {OOB}")
    k(f"s_cselect_b32 s{a2}, {8 * 72 * 1024}, s{a2}")
    k("s_waitcnt lgkmcnt(0)")
    Q(f"buffer_store_dwordx4 {v(fr, 4)}, v{t3}, s[{sWF}:{sWF+3}], s{a0} offen", "st")
    Q(f"buffer_store_dwordx4 {v(fr + 4, 4)}, v{t3}, s[{sWF}:{sWF+3}], s{a1} offen", "st")
    Q(f"buffer_store_dwordx4 {v(fr + 8, 4)}, v{t3}, s[{sWF}:{sWF+3}], s{a2} offen", "st")

def kv8_loads(k, R, extra, s_tile, s_w8, s_wq, sK, sV, sSH, vlane, S):
    s0, d0, sa_ = S[0], S[1], S[2]
    t, t2, t3 = R['t'], R['t2'], R['t3']
    k(f"s_lshr_b32 s{s0}, s{s_tile}, 3"); k(f"s_lshl_b32 s{s0}, s{s0}, 6")
    k(f"s_and_b32 s{d0}, s{s_tile}, 7"); k(f"s_mul_i32 s{d0}, s{d0}, 72")
    n = 0
    for ex in range(2 if extra else 1):
        K_ = R['K2'] if ex else R['K']; W_ = R['W2'] if ex else R['W']
        if ex == 0:
            k(f"s_lshl_b32 s{sa_}, s{s_w8}, 3"); k(f"s_add_u32 s{sa_}, s{sa_}, s{s0}")
            k(f"v_lshrrev_b32 v{t}, 3, v{vlane}"); k(f"v_add_u32 v{t}, s{sa_}, v{t}")
            k(f"v_and_b32 v{t2}, 7, v{vlane}")
        else:
            k(f"s_lshl_b32 s{sa_}, s{s_wq}, 4"); k(f"s_add_u32 s{sa_}, s{sa_}, s{s0}")
            k(f"v_and_b32 v{t}, 15, v{vlane}"); k(f"v_add_u32 v{t}, s{sa_}, v{t}")
            k(f"v_mov_b32 v{t2}, 8")
        k(f"v_mul_u32_u24 v{t3}, 1152, v{t}")
        k(f"v_lshl_add_u32 v{t3}, v{t2}, 4, v{t3}")
        k(f"s_lshl_b32 s{sa_}, s{d0}, 1")
        k(f"buffer_load_dwordx4 {v(K_ + 16, 4)}, v{t3}, s[{sV}:{sV+3}], s{sa_} offen"); n += 1
        k(f"buffer_load_dwordx4 {v(K_, 4)}, v{t3}, s[{sK}:{sK+3}], s{sa_} offen offset:3456"); n += 1
        for j in range(1, 4):
            k(f"v_cmp_gt_u32 vcc, {j}, v{t}")
            k(f"v_mov_b32 v{t2}, {OOB}")
            k(f"v_cndmask_b32 v{t2}, v{t3}, v{t2}, vcc")
            k(f"buffer_load_dwordx4 {v(K_ + 4 * j, 4)}, v{t2}, s[{sK}:{sK+3}], s{sa_} offen offset:{(3 - j) * 1152}"); n += 1
    return n

def kv8_compute(k, R, extra, s_w8, s_wq, vlane, LB, S, sONE):
    sa_ = S[2]
    t, t2 = R['t'], R['t2']; w = R['w']; acc_ = R['acc']; pr = R['pr']; tp = R['tp']
    for ex in range(2 if extra else 1):
        K_ = R['K2'] if ex else R['K']; W_ = R['W']
        if ex == 0:
            k(f"v_and_b32 v{t2}, 7, v{vlane}"); k(f"v_lshlrev_b32 v{t2}, 6, v{t2}")
        else:
            k(f"v_mov_b32 v{t2}, 512")
        for j in range(4): k(f"ds_read_b128 {v(W_ + 4 * j, 4)}, v{t2} offset:{LB + 16 * j}")
        k("s_waitcnt lgkmcnt(0)")
        for j in range(4):
            for e in range(8):
                src_ = W_ + 2 * e + (j >> 1); d_ = w + 8 * j + e
                if j % 2 == 0: k(f"v_and_b32 v{d_}, 0xffff, v{src_}" if e % 2 == 0 else f"v_lshlrev_b32 v{d_}, 16, v{src_}")
                else: k(f"v_lshrrev_b32 v{d_}, 16, v{src_}" if e % 2 == 0 else f"v_and_b32 v{d_}, 0xffff0000, v{src_}")
        for e in range(8): k(f"v_dot2_f32_bf16 v{acc_ + e}, v{K_ + 12 + e // 2}, v{w + 24 + e}, 0")
        for j in (2, 1, 0):
            for e in range(8): k(f"v_dot2_f32_bf16 v{pr + e}, v{K_ + 4 * j + e // 2}, v{w + 8 * j + e}, 0")
            for e in range(8): k(f"v_cvt_pk_bf16_f32 v{pr + e}, v{pr + e}, v{acc_ + e}")
            for e in range(8): k(f"v_dot2_f32_bf16 v{acc_ + e}, v{pr + e}, s{sONE}, 0")
        for c in range(4):
            k(f"v_and_b32 v{pr + 2 * c}, 0xffff, v{K_ + 16 + c}")
            k(f"v_and_b32 v{pr + 2 * c + 1}, 0xffff0000, v{K_ + 16 + c}")
        for c in range(4): k(f"v_cvt_pk_bf16_f32 v{tp + c}, v{acc_ + 2 * c}, v{acc_ + 2 * c + 1}")
        for e in range(8): k(f"v_dot2_f32_bf16 v{acc_ + e}, v{tp + e // 2}, v{pr + e}, 0")
        if ex == 0:
            k(f"s_lshl_b32 s{sa_}, s{s_w8}, 3"); k(f"s_sub_u32 s{sa_}, 63, s{sa_}")
            k(f"v_lshrrev_b32 v{t}, 3, v{vlane}"); k(f"v_sub_u32 v{t}, s{sa_}, v{t}")
            k(f"v_and_b32 v{t2}, 7, v{vlane}"); k(f"v_lshlrev_b32 v{t2}, 4, v{t2}")
        else:
            k(f"s_lshl_b32 s{sa_}, s{s_wq}, 4"); k(f"s_sub_u32 s{sa_}, 63, s{sa_}")
            k(f"v_and_b32 v{t}, 15, v{vlane}"); k(f"v_sub_u32 v{t}, s{sa_}, v{t}")
            k(f"v_mov_b32 v{t2}, 128")
        k(f"v_mul_u32_u24 v{t}, 144, v{t}")
        k(f"v_add3_u32 v{t2}, v{t}, v{t2}, s{S[3]}")
        for c in range(4): k(f"v_cvt_pk_bf16_f32 v{K_ + c}, v{acc_ + 2 * c}, v{acc_ + 2 * c + 1}")
        k(f"ds_write_b128 v{t2}, {v(K_, 4)}")

def kv8_store(k, R, s_w8, vlane, vn, vg, sKV, S):
    s0, d0, sa_ = S[0], S[1], S[2]
    t, t2 = R['t'], R['t2']; o = R['K']; t3 = R['t3']
    k(f"v_lshrrev_b32 v{t}, 2, v{vn}")
    k(f"v_lshl_add_u32 v{t}, v{vg}, 3, v{t}")
    k(f"v_mul_u32_u24 v{t}, 144, v{t}")
    k(f"v_and_b32 v{t2}, 3, v{vn}")
    k(f"v_lshl_add_u32 v{t}, v{t2}, 3, v{t}")
    k(f"s_and_b32 s{sa_}, s{s_w8}, 1"); k(f"s_mul_i32 s{S[4]}, s{sa_}, {32 * 144}"); k(f"s_add_u32 s{S[3]}, s{S[3]}, s{S[4]}")
    k(f"s_lshr_b32 s{S[4]}, s{s_w8}, 1"); k(f"s_lshl_b32 s{S[4]}, s{S[4]}, 5"); k(f"s_add_u32 s{S[3]}, s{S[3]}, s{S[4]}")
    k(f"v_add_u32 v{t}, s{S[3]}, v{t}")
    for j in range(2):
        k(f"ds_read_b64_tr_b16 {v(o + 4 * j, 2)}, v{t} offset:{128 * j}")
        k(f"ds_read_b64_tr_b16 {v(o + 4 * j + 2, 2)}, v{t} offset:{128 * j + 4 * 144}")
    k(f"s_lshr_b32 s{S[4]}, s{S[4]}, 1")
    k(f"v_add_u32 v{t3}, s{S[4]}, v{vn}")
    k(f"v_add_u32 v{t2}, s{d0}, v{t3}")
    k(f"v_lshlrev_b32 v{t2}, 12, v{t2}")
    k(f"v_lshl_add_u32 v{t2}, v{vg}, 4, v{t2}")
    k(f"s_sub_u32 s{s0}, 1984, s{s0}"); k(f"s_lshl_b32 s{s0}, s{s0}, 1")
    k(f"s_lshl_b32 s{sa_}, s{sa_}, 6"); k(f"s_add_u32 s{s0}, s{s0}, s{sa_}")
    k(f"v_add_u32 v{t2}, s{s0}, v{t2}")
    k(f"v_cmp_gt_u32 vcc, 8, v{t3}")
    k(f"v_mov_b32 v{t3}, {OOB}")
    k(f"v_cndmask_b32 v{t3}, v{t3}, v{t2}, vcc")
    k(f"s_mov_b32 s{sa_}, {64 * 4096}")
    k("s_waitcnt lgkmcnt(0)")
    k(f"buffer_store_dwordx4 {v(o, 4)}, v{t2}, s[{sKV}:{sKV+3}], 0 offen")
    k(f"buffer_store_dwordx4 {v(o + 4, 4)}, v{t3}, s[{sKV}:{sKV+3}], s{sa_} offen")
```

```python
from common import *
from k2 import getopt
import jobs
import struct

ZU = 9216; XS = 16384
STAT2 = WS_STAT
XSTAT = WS_STAT + 0x100000
CSP   = WS_STAT + 0x140000
SYNC  = WS_STAT + 0x1C0000
D0 = -2.302208198; D1 = -0.1029432397
OOB = 0x7ff00000
def f2u(x): return struct.unpack('<I', struct.pack('<f', x))[0]

def rnd_n(k, xs, ts):
    for j in range(0, len(xs), 2): k(f"v_cvt_pk_bf16_f32 v{ts[j // 2]}, v{xs[j]}, v{xs[j + 1]}")
    for j in range(0, len(xs), 2):
        k(f"v_lshlrev_b32 v{xs[j]}, 16, v{ts[j // 2]}")
        k(f"v_and_b32 v{xs[j + 1]}, 0xffff0000, v{ts[j // 2]}")

def ln_finish(k, vs, vq, n, t0):
    k(f"v_mul_f32 v{vs}, {hex(f2u(1.0 / n))}, v{vs}")
    k(f"v_mul_f32 v{vq}, {hex(f2u(1.0 / n))}, v{vq}")
    k(f"v_fma_f32 v{vq}, -v{vs}, v{vs}, v{vq}")
    k(f"v_max_f32 v{vq}, 0, v{vq}")
    rnd2(k, vs, vq, t0)
    k(f"v_add_f32 v{vq}, {hex(f2u(1e-5))}, v{vq}")
    k(f"v_cvt_pk_bf16_f32 v{t0}, v{vq}, v{vq}")
    k(f"v_lshlrev_b32 v{vq}, 16, v{t0}")
    k(f"v_sqrt_f32 v{vq}, v{vq}")
    k(f"v_cvt_pk_bf16_f32 v{t0}, v{vq}, v{vq}")
    k(f"v_lshlrev_b32 v{vq}, 16, v{t0}")
    k(f"v_rcp_f32 v{vq}, v{vq}")

class VMQ:
    def __init__(self, k): self.k = k; self.q = []; self.done = -1
    def __call__(self, text, tag=None):
        self.k(text); self.q.append(tag)
    def wait(self, tag):
        self.waitidx(max(i for i, t in enumerate(self.q) if t == tag))
    def waitidx(self, idx):
        if idx <= self.done: return
        self.k(f"s_waitcnt vmcnt({len(self.q) - 1 - idx})")
        self.done = idx

def gen_k1(name="k1_kernel", opts=()):
    k = Kernel(name); k.check = not [o for o in opts if o in ('stamp', 'nomfma')]
    NU = 9; NX = 4
    LAM = getopt(opts, 'LAM', 8)
    CS = 0; XM = 1280; XR = 1792; ZSL = 2304; LCNT = 1152; CSL = 3328
    WBASE = 4608
    ZRING = NU * ZU
    XBASE = WBASE + ZRING
    LDS = XBASE + NX * XS
    sX, sWi, sZ1, sZ2, sDB, sWS = 8, 12, 16, 20, 44, 48
    s_wave, s_role, s_wq, s_r0, s_cg, s_cnt, s_tmp, s_off, s_offx, s_t2, s_k, s_rb, sONE, s_rot, s_idx, s_n, s_t3, s_mb = \
        28, 29, 30, 31, 32, 33, 34, 35, 36, 37, 38, 39, 53, 56, 57, 58, 59, 52
    Lend = k.label('end'); LB = k.label('B'); Lz1 = k.label('z1epi')
    k(f"s_cmp_ge_u32 s2, 256")
    k(f"s_cbranch_scc1 {Lend}")
    k(f"s_load_dwordx2 s[4:5], s[0:1], {KA['q']}")
    k(f"s_load_dwordx2 s[6:7], s[0:1], {KA['win']}")
    k(f"s_load_dwordx4 s[40:43], s[0:1], {KA['dbg']}")
    vlane, vt, vt2, vt3, vn, vg, vl16 = 1, 2, 3, 4, 5, 6, 7
    acc2 = 8; acc1 = 80
    vtr, vXb, vWa, vX, vX1 = 248, 249, 250, 251, 252
    A2 = lambda i, mu: acc2 + (i * 2 + mu) * 4
    A1 = lambda i, mu: acc1 + (i * 2 + mu) * 4
    k(f"v_lshrrev_b32 v{vt}, 6, v0")
    k(f"v_and_b32 v{vlane}, 63, v0")
    k(f"v_readfirstlane_b32 s{s_wave}, v{vt}")
    k(f"v_and_b32 v{vn}, 15, v{vlane}")
    k(f"v_lshrrev_b32 v{vg}, 4, v{vlane}")
    k(f"v_lshlrev_b32 v{vl16}, 4, v{vlane}")
    k(f"s_lshr_b32 s{s_role}, s{s_wave}, 2")
    k(f"s_and_b32 s{s_wq}, s{s_wave}, 3")
    k(f"s_and_b32 s{s_tmp}, s2, 1")
    k(f"s_lshl_b32 s{s_tmp}, s{s_tmp}, 3")
    k(f"s_bfe_u32 s{s_rb}, s2, 0x30003")
    k(f"s_add_u32 s{s_rb}, s{s_rb}, s{s_tmp}")
    k(f"s_lshl_b32 s{s_r0}, s{s_rb}, 7")
    k(f"s_bfe_u32 s{s_tmp}, s2, 0x20001")
    k(f"s_lshl_b32 s{s_tmp}, s{s_tmp}, 2")
    k(f"s_lshr_b32 s{s_cg}, s2, 6")
    k(f"s_add_u32 s{s_cg}, s{s_cg}, s{s_tmp}")
    k(f"s_sub_u32 s{s_tmp}, s{s_rb}, 9")
    k(f"s_cmp_lt_u32 s{s_rb}, 9")
    k(f"s_cselect_b32 s{s_rot}, s{s_rb}, s{s_tmp}")
    k(f"s_mov_b32 s{s_off}, 0"); k(f"s_mov_b32 s{s_offx}, 0"); k(f"s_mov_b32 s{s_cnt}, 0")
    k(f"s_mov_b32 s{sONE}, 0x3f803f80")
    k(f"v_lshrrev_b32 v{vt}, 2, v{vn}")
    k(f"v_and_b32 v{vt2}, 1, v{vg}")
    k(f"v_lshl_add_u32 v{vt}, v{vt2}, 2, v{vt}")
    k(f"v_lshrrev_b32 v{vt2}, 1, v{vg}")
    k(f"v_lshl_add_u32 v{vt}, v{vt2}, 4, v{vt}")
    k(f"v_mul_u32_u24 v{vt}, 288, v{vt}")
    k(f"v_and_b32 v{vt2}, 3, v{vn}")
    k(f"v_lshl_add_u32 v{vtr}, v{vt2}, 3, v{vt}")
    k(f"v_add_u32 v{vtr}, {WBASE}, v{vtr}")
    k(f"v_lshrrev_b32 v{vt}, 2, v{vn}")
    k(f"v_and_b32 v{vt2}, 3, v{vn}")
    k(f"v_lshl_add_u32 v{vt}, v{vt}, 3, v{vt2}")
    k(f"v_lshlrev_b32 v{vt}, 7, v{vt}")
    k(f"v_xor_b32 v{vt2}, v{vg}, v{vn}")
    k(f"v_and_b32 v{vt2}, 7, v{vt2}")
    k(f"v_lshl_add_u32 v{vt}, v{vt2}, 4, v{vt}")
    k(f"s_lshl_b32 s{s_tmp}, s{s_wq}, 12")
    k(f"s_add_u32 s{s_tmp}, s{s_tmp}, {XBASE}")
    k(f"v_add_u32 v{vXb}, s{s_tmp}, v{vt}")
    st = Stamps(k, 'stamp' in opts, s_wave, span=(1 if 'span' in opts else None))
    if 'span' in opts: k.check = False
    for i_ in range(7): st(i_)
    BIAS = 4096
    def w_voffsets(regs, js, colbase_s):
        k(f"s_mov_b32 s54, 3641")
        for r, (j, jimm) in zip(regs, js):
            if isinstance(j, int): k(f"v_add_u32 v{vt}, {64 * j}, v{vlane}")
            else: k(f"v_add_u32 v{vt}, s{j[0]}, v{vlane}"); k(f"v_add_u32 v{vt}, {64 * j[1]}, v{vt}"); k(f"v_min_u32 v{vt}, v{vt}, v{vX}")
            k(f"v_mul_lo_u32 v{vt2}, v{vt}, s54")
            k(f"v_lshrrev_b32 v{vt2}, 16, v{vt2}")
            k(f"v_mul_u32_u24 v{vt3}, 18, v{vt2}")
            k(f"v_sub_u32 v{vt}, v{vt}, v{vt3}")
            k(f"v_and_b32 v{vt3}, 0x13, v{vt2}")
            k(f"v_and_b32 v{r}, 4, v{vt2}")
            k(f"v_lshl_or_b32 v{vt3}, v{r}, 1, v{vt3}")
            k(f"v_and_b32 v{r}, 8, v{vt2}")
            k(f"v_lshrrev_b32 v{r}, 1, v{r}")
            k(f"v_or_b32 v{vt3}, v{vt3}, v{r}")
            k(f"v_mul_u32_u24 v{vt3}, 9216, v{vt3}")
            k(f"v_lshl_add_u32 v{vt3}, v{vt}, 4, v{vt3}")
            k(f"v_add_u32 v{vt3}, s{colbase_s}, v{vt3}")
            k(f"v_add_u32 v{r}, {BIAS - jimm}, v{vt3}")
    def colsum_part(hb_, cs_, part, ubase_=0):
        k(f"s_lshr_b32 s{s_tmp}, s{s_wq}, 1"); k(f"s_mul_i32 s{s_tmp}, s{s_tmp}, {ZU}")
        k(f"s_and_b32 s{s_t3}, s{s_wq}, 1"); k(f"s_mul_i32 s{s_t3}, s{s_t3}, 160")
        k(f"s_add_u32 s{s_tmp}, s{s_tmp}, s{s_t3}")
        if ubase_: k(f"s_add_u32 s{s_tmp}, s{s_tmp}, {ubase_}")
        k(f"v_add_u32 v{vt}, s{s_tmp}, v{vtr}")
        for t in range(5):
            for half in range(2):
                k(f"ds_read_b64_tr_b16 {v(hb_ + 4 * t + 2 * half, 2)}, v{vt} offset:{t * 32 + half * 2304}")
        for t in range(5): k(f"v_mov_b32 v{cs_ + t}, 0")
        k(f"s_lshl_b32 s{s_t3}, s{s_t3}, 1")
        k(f"s_lshr_b32 s{s_tmp}, s{s_wq}, 1"); k(f"s_mul_i32 s{s_tmp}, s{s_tmp}, 640"); k(f"s_add_u32 s{s_t3}, s{s_t3}, s{s_tmp}")
        k(f"v_lshlrev_b32 v{vt2}, 2, v{vn}")
        k(f"v_add_u32 v{vt2}, s{s_t3}, v{vt2}")
        k("s_waitcnt lgkmcnt(0)")
        for c in range(4):
            for t in range(5):
                k(f"v_dot2_f32_bf16 v{cs_ + t}, v{hb_ + 4 * t + c}, s{sONE}, v{cs_ + t}")
        for op in ("v_permlane32_swap_b32", "v_permlane16_swap_b32"):
            for t in range(5): k(f"v_mov_b32 v{hb_ + t}, v{cs_ + t}")
            for t in range(5): k(f"{op} v{cs_ + t}, v{hb_ + t}")
            for t in range(5): k(f"v_add_f32 v{cs_ + t}, v{cs_ + t}, v{hb_ + t}")
        for t in range(5):
            k(f"ds_write_b32 v{vt2}, v{cs_ + t} offset:{CSL + 64 * t}")
    def publish_cs(r4, part, ta, tb_, Qf=None):
        k(f"ds_read_b128 {v(r4, 4)}, v{vl16} offset:{CSL}")
        k(f"ds_read_b128 {v(r4 + 4, 4)}, v{vl16} offset:{CSL + 640}")
        k(f"s_lshl_b32 s{s_tmp}, s{s_cg}, 1"); k(f"s_add_u32 s{s_tmp}, s{s_tmp}, {part}"); k(f"s_mul_i32 s{s_tmp}, s{s_tmp}, 9")
        k(f"s_add_u32 s{s_tmp}, s{s_tmp}, s{s_rot}"); k(f"s_mul_i32 s{s_tmp}, s{s_tmp}, 576"); k(f"s_add_u32 s{s_tmp}, s{s_tmp}, {CSP - WS_STAT}")
        k(f"s_cmp_lt_u32 s{s_rb}, 9"); k(f"s_cselect_b32 s{s_tmp}, s{s_tmp}, {OOB}")
        k(f"s_cmp_eq_u32 s{s_wq}, 0"); k(f"s_cselect_b32 s{s_tmp}, s{s_tmp}, {OOB}")
        k(f"v_mov_b32 v{tb_}, {OOB}")
        k(f"v_cmp_gt_u32 vcc, 36, v{vlane}")
        k(f"v_cndmask_b32 v{ta}, v{tb_}, v{vl16}, vcc")
        k("s_waitcnt lgkmcnt(0)")
        for c in range(4): k(f"v_add_f32 v{r4 + c}, v{r4 + c}, v{r4 + 4 + c}")
        (Qf or k)(f"buffer_store_dwordx4 {v(r4, 4)}, v{ta}, s[{sWS}:{sWS+3}], s{s_tmp} offen sc1")
    def load_cs(base, part, ta, tb_, Qf):
        k(f"s_lshl_b32 s{s_tmp}, s{s_cg}, 1"); k(f"s_add_u32 s{s_tmp}, s{s_tmp}, {part}"); k(f"s_mul_i32 s{s_tmp}, s{s_tmp}, {9 * 576}")
        k(f"s_add_u32 s{s_tmp}, s{s_tmp}, {CSP - WS_STAT}")
        k(f"s_add_u32 s61, s{s_tmp}, {7 * 576}")
        k(f"v_mov_b32 v{tb_}, {OOB}")
        k(f"v_cmp_gt_u32 vcc, 36, v{vlane}")
        k(f"v_cndmask_b32 v{ta}, v{tb_}, v{vl16}, vcc")
        for j in range(9):
            txt = f"buffer_load_dwordx4 {v(base + 4 * j, 4)}, v{ta}, s[{sWS}:{sWS+3}], s{s_tmp if j < 7 else 61} offen offset:{576 * (j % 7)} sc1"
            if Qf: Qf(txt, "ld")
            else: k(txt)
    def reduce_cs(base, part, ta, waittxt):
        if waittxt: k(waittxt)
        for j in range(1, 9):
            for c in range(4): k(f"v_add_f32 v{base + c}, v{base + c}, v{base + 4 * j + c}")
        k(f"v_cmp_gt_u32 vcc, 36, v{vlane}")
        k(f"s_and_saveexec_b64 s[62:63], vcc")
        k(f"ds_write_b128 v{vl16}, {v(base, 4)} offset:{CS + 576 * part}")
        k(f"s_mov_b64 exec, -1")
    k(f"s_cmp_eq_u32 s{s_role}, 1")
    k(f"s_cbranch_scc1 {LB}")

    ring = 80; R = 9; xreg = 116
    for i in range(72): k(f"v_mov_b32 v{acc2 + i}, 0")
    vDA = [132 + j for j in range(9)]
    k(f"s_mul_i32 s{s_t2}, s{s_cg}, 288")
    w_voffsets(vDA, [(j, (j % 4) * 1024) for j in range(9)], s_t2)
    NRD = 20; NM = 18
    cov = {'c': -1}
    def rdA(q):
        u, j = divmod(q, NRD)
        if j == 0 and u % 2 == 0:
            if u > 0 and cov['c'] < (u - 1) * NRD + 1:
                k(f"s_waitcnt lgkmcnt({q - ((u - 1) * NRD + 1) - 1})"); cov['c'] = (u - 1) * NRD + 1
            k("s_barrier")
            k(f"v_add_u32 v{vX}, s{s_offx}, v{vXb}")
        if j == 1 and u % 2 == 0: k(f"v_xor_b32 v{vX1}, 64, v{vX}")
        if j == 2: k(f"v_add_u32 v{vWa}, s{s_off}, v{vtr}")
        if j == 5: k(f"s_add_u32 s{s_off}, s{s_off}, {ZU}")
        if j == 7:
            k(f"s_cmp_eq_u32 s{s_off}, {ZRING}"); k(f"s_cselect_b32 s{s_off}, 0, s{s_off}")
        if j == 9 and u % 2 == 0: k(f"s_add_u32 s{s_offx}, s{s_offx}, {XS}")
        if j == 11 and u % 2 == 0: k(f"s_and_b32 s{s_offx}, s{s_offx}, {NX * XS - 1}")
        if j < 2:
            k(f"ds_read_b128 {v(xreg + ((u % 2) * 2 + j) * 4, 4)}, v{vX1 if u % 2 else vX} offset:{j * 512}")
        else:
            t, half = divmod(j - 2, 2)
            k(f"ds_read_b64_tr_b16 {v(ring + 4 * (t % R) + 2 * half, 2)}, v{vWa} offset:{t * 32 + half * 2304}")
    def need(m, nrd=NRD, pre=2):
        u, r = divmod(m, NM)
        return u * nrd + pre + (r // 2) * 2 + 1
    def sched(iss, m, nrd=NRD, pre=2):
        n = 0
        while iss + n <= need(m + LAM, nrd, pre) and n < 2: n += 1
        return n
    iss = need(LAM - 1) + 1
    for m in range(36 * 3):
        iss += sched(iss, m)
        if (m + 1) % 36 == 0: steady = iss - ((m + 1) // 36) * 2 * NRD
    k("s_waitcnt lgkmcnt(0)")
    srd(k, sWi, 6, 7, -BIAS, 576 * 4608 * 2 + BIAS)
    srd(k, sWS, 42, 43, WS_STAT, 0x200000)
    for q in range(steady): rdA(q)
    st(2)
    if st.on: k("s_waitcnt lgkmcnt(0)")
    issued = steady
    Lloop = k.label('loop')
    k(f"{Lloop}:")
    for u in range(2):
        for t in range(9):
            m0 = u * NM + t * 2
            if need(m0) > cov['c']:
                tgt = min(need(min(m0 + 2, u * NM + NM - 1)), issued - 1)
                k(f"s_waitcnt lgkmcnt({issued - tgt - 1})"); cov['c'] = tgt
            for mu in range(2):
                C = v(A2(t, mu), 4)
                if 'nomfma' not in opts:
                    k(f"v_mfma_f32_16x16x32_bf16 {C}, {v(xreg + (u * 2 + mu) * 4, 4)}, {v(ring + 4 * (t % R), 4)}, {C}")
                for _ in range(sched(issued, m0 + mu)):
                    u2, j2 = divmod(issued, NRD)
                    if j2 >= 2: assert (u2 * 9 + (j2 - 2) // 2) - R < u * 9 + t
                    assert issued - cov['c'] <= 15
                    rdA(issued); issued += 1
    assert issued == steady + 2 * NRD
    if 'iter' in opts:
        k("s_memtime s[94:95]")
        k("s_waitcnt lgkmcnt(0)")
        k("s_sub_u32 s94, s94, s70")
        k(f"s_mov_b32 m0, s{s_cnt}")
        k(f"v_writelane_b32 v247, s94, m0")
    k(f"s_add_u32 s{s_cnt}, s{s_cnt}, 1")
    k(f"s_cmp_lt_u32 s{s_cnt}, 9")
    k(f"s_cbranch_scc1 {Lloop}")
    st(3)
    ea = Alloc(152, 248)
    xm = ea.get(8, 4); xr = ea.get(8, 4); d0r = ea.get(8, 4); d1r = ea.get(8, 4); zS = ea.get(8, 4); zQ = ea.get(8, 4); X = ea.get(8, 4); T = ea.get(8, 4)
    csv = ea.get(12, 4); one = ea.get(2, 2); va1 = ea.get(); va2 = ea.get(); va3 = ea.get(); t0 = ea.get(); t1 = ea.get()
    sa = zS; cA = xm; cB = xm + 4; zs = xm
    P2 = lambda r: v(r, 2)
    def z2_setup(tiles):
        k(f"s_lshl_b32 s{s_tmp}, s{s_wq}, 7")
        k(f"v_lshlrev_b32 v{va1}, 5, v{vg}")
        k(f"v_add_u32 v{va1}, s{s_tmp}, v{va1}")
        for j in range(2):
            k(f"ds_read_b128 {v(xm + 4 * j, 4)}, v{va1} offset:{XM + 16 * j}")
            k(f"ds_read_b128 {v(xr + 4 * j, 4)}, v{va1} offset:{XR + 16 * j}")
        k(f"v_lshlrev_b32 v{va2}, 2, v{vn}")
        for j, i in enumerate(tiles):
            k(f"ds_read_b32 v{csv + 2 * j}, v{va2} offset:{CS + 64 * i}")
        for j in range(8): k(f"v_mov_b32 v{zS + j}, 0"); k(f"v_mov_b32 v{zQ + j}, 0")
        k(f"v_mov_b32 v{one}, 1.0"); k(f"v_mov_b32 v{one + 1}, 1.0")
        k("s_waitcnt lgkmcnt(0)")
        for j in range(len(tiles)): k(f"v_mov_b32 v{csv + 2 * j + 1}, v{csv + 2 * j}")
        for r in range(8):
            k(f"v_mul_f32 v{d0r + r}, {hex(f2u(D0))}, v{xr + r}")
            k(f"v_mul_f32 v{d1r + r}, v{xr + r}, v{xr + r}")
        for r in range(8): k(f"v_mul_f32 v{d1r + r}, v{d1r + r}, v{xr + r}")
        for r in range(8): k(f"v_mul_f32 v{d1r + r}, {hex(f2u(D1))}, v{d1r + r}")
    def z2_tile(i, j):
        a_ = A2(i, 0)
        c_ = csv + 2 * j
        E = range(0, 8, 2)
        for r in E: k(f"v_pk_fma_f32 {P2(a_ + r)}, {P2(xm + r)}, {P2(c_)}, {P2(a_ + r)} neg_lo:[1,0,0] neg_hi:[1,0,0]")
        for r in E: k(f"v_pk_mul_f32 {P2(T + r)}, {P2(a_ + r)}, {P2(a_ + r)}")
        for r in E: k(f"v_pk_fma_f32 {P2(T + r)}, {P2(T + r)}, {P2(d1r + r)}, {P2(d0r + r)}")
        for r in E: k(f"v_pk_mul_f32 {P2(T + r)}, {P2(T + r)}, {P2(a_ + r)}")
        for r in range(8): k(f"v_exp_f32 v{T + r}, v{T + r}")
        for r in E: k(f"v_pk_add_f32 {P2(T + r)}, {P2(T + r)}, {P2(one)}")
        for r in range(8): k(f"v_rcp_f32 v{T + r}, v{T + r}")
        for r in E: k(f"v_pk_mul_f32 {P2(a_ + r)}, {P2(a_ + r)}, {P2(T + r)}")
        for r in E: k(f"v_pk_add_f32 {P2(zS + r)}, {P2(zS + r)}, {P2(a_ + r)}")
        for r in E: k(f"v_pk_fma_f32 {P2(zQ + r)}, {P2(a_ + r)}, {P2(a_ + r)}, {P2(zQ + r)}")
    def z2_publish():
        for sh in (8, 4, 2, 1):
            for j in range(8):
                k(f"v_add_f32_dpp v{zS + j}, v{zS + j}, v{zS + j} row_ror:{sh} row_mask:0xf bank_mask:0xf")
                k(f"v_add_f32_dpp v{zQ + j}, v{zQ + j}, v{zQ + j} row_ror:{sh} row_mask:0xf bank_mask:0xf")
        for r in range(8):
            k(f"v_mul_f32 v{X + r}, v{xr + r}, v{xr + r}")
            k(f"v_mul_f32 v{d0r + 2 * r}, v{zS + r}, v{xr + r}")
        for r in range(8): k(f"v_mul_f32 v{d0r + 2 * r + 1}, v{zQ + r}, v{X + r}")
        k(f"s_lshl_b32 s{s_tmp}, s{s_rb}, 4"); k(f"s_add_u32 s{s_tmp}, s{s_tmp}, s{s_cg}")
        k(f"s_lshl_b32 s{s_tmp}, s{s_tmp}, 1"); k(f"s_add_u32 s{s_tmp}, s{s_tmp}, s{s_role}")
        k(f"s_lshl_b32 s{s_tmp}, s{s_tmp}, 10")
        k(f"v_lshl_add_u32 v{t0}, v{va1}, 1, s{s_tmp}")
        k(f"v_mov_b32 v{t1}, {OOB}")
        k(f"v_cmp_eq_u32 vcc, 0, v{vn}")
        k(f"v_cndmask_b32 v{t0}, v{t1}, v{t0}, vcc")
        for j in range(4):
            k(f"buffer_store_dwordx4 {v(d0r + 4 * j, 4)}, v{t0}, s[{sWS}:{sWS+3}], 0 offen offset:{16 * j} sc1")
    def z2_arrive(nlater):
        k(f"s_waitcnt vmcnt({nlater})")
        k(f"v_mov_b32 v{t0}, {LCNT}")
        k(f"v_mov_b32 v{t1}, 1")
        k("s_mov_b64 exec, 1")
        k(f"ds_add_rtn_u32 v{t0}, v{t0}, v{t1}")
        k("s_waitcnt lgkmcnt(0)")
        k(f"v_readfirstlane_b32 s{s_tmp}, v{t0}")
        k(f"s_lshl_b32 s{s_t3}, s{s_rb}, 8")
        k(f"s_add_u32 s{s_t3}, s{s_t3}, {SYNC - WS_STAT + 4096}")
        k(f"s_cmp_eq_u32 s{s_tmp}, 7")
        k(f"s_cselect_b32 s{s_tmp}, s{s_t3}, {OOB}")
        k(f"v_mov_b32 v{t0}, s{s_tmp}")
        k(f"buffer_atomic_add v{t1}, v{t0}, s[{sWS}:{sWS+3}], 0 offen sc1")
        k("s_mov_b64 exec, -1")
    TA = [0, 1, 2, 3, 4, 5]; TB = [6, 7, 8]
    HO2 = [A2(i, mu) for i in TB for mu in range(2)]
    hbA = 92; csA = 112; plA = 120
    k("s_waitcnt lgkmcnt(0)")
    k(f"s_lshl_b32 s{s_k}, s{s_rot}, 1"); k(f"s_add_u32 s{s_k}, s{s_k}, s{s_wq}"); k(f"s_add_u32 s{s_k}, s{s_k}, 6")
    def around(r):
        k(f"s_cmp_ge_u32 s{s_k}, 18"); k(f"s_cselect_b32 s{s_tmp}, 18, 0"); k(f"s_sub_u32 s{s_k}, s{s_k}, s{s_tmp}")
        k(f"s_mul_i32 s{s_off}, s{s_k}, {32 * 9216}")
        k(f"s_add_u32 s{s_k}, s{s_k}, 4")
        k(f"s_mul_i32 s{s_t3}, s{s_wq}, {ZU}")
        if r == 0:
            k(f"s_add_u32 s{s_t3}, s{s_t3}, {XBASE}")
        elif r == 1:
            k(f"s_add_u32 s{s_t3}, s{s_t3}, {XBASE + 4 * ZU}")
            k(f"s_cmp_eq_u32 s{s_wq}, 3"); k(f"s_cselect_b32 s{s_t3}, {WBASE + 6 * ZU}, s{s_t3}")
        else:
            k(f"s_add_u32 s{s_t3}, s{s_t3}, {WBASE + 7 * ZU}")
            k(f"s_cmp_ge_u32 s{s_wq}, 2"); k(f"s_cselect_b32 s{s_tmp}, {9 * ZU}, 0"); k(f"s_sub_u32 s{s_t3}, s{s_t3}, s{s_tmp}")
        for j in range(9):
            if j % 4 == 0: k(f"s_add_u32 m0, s{s_t3}, {(j // 4) * 4096}")
            k(f"buffer_load_dwordx4 v{vDA[j]}, s[{sWi}:{sWi+3}], s{s_off} offen offset:{(j % 4) * 1024} lds")
    around(0)
    z2_setup(TA)
    k(f"s_lshl_b32 s60, s{s_cg}, 8"); k(f"s_add_u32 s60, s60, {SYNC - WS_STAT + 12288}")
    around(1)
    SEG = [int(c) - 1 for c in str(getopt(opts, 'seg', 1236))]
    def seg(n):
        if n == 0:
            k("s_waitcnt vmcnt(9)")
            k("s_barrier")
            around(2)
            k(f"s_mul_i32 s{s_tmp}, s{s_wq}, 6144"); k(f"s_add_u32 s{s_tmp}, s{s_tmp}, {WBASE + 2 * ZU}")
            k(f"v_add_u32 v{vt3}, s{s_tmp}, v{vl16}")
            for j, r in enumerate(HO2): k(f"ds_write_b128 v{vt3}, {v(r, 4)} offset:{j * 1024}")
            k("s_waitcnt lgkmcnt(3)")
            colsum_part(hbA, csA, 1, ZRING)
        if n == 1:
            k("s_waitcnt vmcnt(9) lgkmcnt(0)")
            k("s_barrier")
            publish_cs(plA, 1, t0, t1)
        if n == 2:
            k("s_waitcnt vmcnt(0)")
            k("s_barrier")
            k(f"s_cmp_lt_u32 s{s_rb}, 9"); k(f"s_cselect_b32 s{s_tmp}, s60, {OOB}")
            k(f"s_cmp_eq_u32 s{s_wq}, 0"); k(f"s_cselect_b32 s{s_tmp}, s{s_tmp}, {OOB}")
            k(f"v_mov_b32 v{t0}, s{s_tmp}"); k(f"v_mov_b32 v{t1}, 1")
            k("s_mov_b64 exec, 1")
            k(f"buffer_atomic_add v{t1}, v{t0}, s[{sWS}:{sWS+3}], 0 offen sc1")
            k("s_mov_b64 exec, -1")
            if 'nopf' not in opts:
                k(f"s_load_dwordx2 s[64:65], s[0:1], {KA['wsp']}")
                k(f"s_lshl_b32 s{s_tmp}, s2, 2"); k(f"s_add_u32 s{s_tmp}, s{s_tmp}, s{s_wq}"); k(f"s_lshl_b32 s{s_tmp}, s{s_tmp}, 13")
                k(f"v_lshlrev_b32 v{t0}, 7, v{vlane}")
                k("s_waitcnt lgkmcnt(0)")
                srd(k, 24, 64, 65, 0, 2048 * 4096)
                k(f"buffer_load_dword v{plA}, v{t0}, s[24:27], s{s_tmp} offen")
            k(f"s_load_dwordx2 s[64:65], s[0:1], {KA['shk']}")
            k(f"s_and_b32 s{s_tmp}, s2, 7"); k(f"s_mul_i32 s{s_tmp}, s{s_tmp}, 576")
            k(f"s_mov_b32 m0, {ZSL}")
            k("s_waitcnt lgkmcnt(0)")
            srd(k, 24, 64, 65, 0, 576 * 8)
            k(f"buffer_load_dwordx4 v{vl16}, s[24:27], s{s_tmp} offen lds")
        if n == 3:
            Lp1 = k.label('pc1')
            k(f"v_mov_b32 v{t1}, s60")
            k(f"{Lp1}:")
            k(f"buffer_load_dword v{t0}, v{t1}, s[{sWS}:{sWS+3}], 0 offen sc1")
            k("s_waitcnt vmcnt(0)")
            k(f"v_readfirstlane_b32 s{s_tmp}, v{t0}")
            k(f"s_cmp_lt_u32 s{s_tmp}, 9")
            k(f"s_cbranch_scc1 {Lp1}")
            load_cs(80, 1, t0, t1, None)
    for j, i in enumerate(TA + [None]):
        for n, sg in enumerate(SEG):
            if sg == j: seg(n)
        if 'iter' in opts:
            k("s_memtime s[94:95]"); k("s_waitcnt lgkmcnt(0)"); k("s_sub_u32 s94, s94, s70")
            k(f"v_writelane_b32 v247, s94, {9 + j}")
        if i is not None: z2_tile(i, j)
    reduce_cs(80, 1, t0, "s_waitcnt vmcnt(0)")
    z2_publish()
    st(4)
    k("s_waitcnt lgkmcnt(0)")
    HO = [A1(i, mu) for i in range(4, 9) for mu in range(2)]
    k(f"s_mul_i32 s{s_tmp}, s{s_wq}, 10240")
    k(f"s_add_u32 s{s_tmp}, s{s_tmp}, {XBASE}")
    k(f"v_add_u32 v{vt}, s{s_tmp}, v{vl16}")
    k("s_barrier")
    for j, r in enumerate(HO):
        k(f"ds_read_b128 {v(r, 4)}, v{vt} offset:{j * 1024}")
    k(f"s_branch {Lz1}")

    k(f"{LB}:")
    XR_ = lambda u, mu: (8 + (u * 2 + mu) * 4) if u < 9 else (152 + ((u - 9) * 2 + mu) * 4)
    tb = Alloc(80, 152)
    vD = [tb.get() for _ in range(9)]
    hb = tb.get(36, 4); csa = tb.get(5); vxs = tb.get(2, 2); vj = tb.get(); vsy = tb.get(); vfl = tb.get(); vone = tb.get(); vfs = tb.get()
    j1b = 200
    LX = k.label('xload'); Ljoin = k.label('bjoin')
    k(f"v_xor_b32 v{vX1}, 64, v{vXb}")
    k(f"v_mov_b32 v{hb}, 0"); k(f"v_mov_b32 v{hb + 1}, 0"); k(f"v_mov_b32 v{hb + 2}, 0"); k(f"v_mov_b32 v{hb + 3}, 0")
    k(f"v_mov_b32 v{vt}, {LCNT}")
    k(f"ds_write_b32 v{vt}, v{hb}")
    k("s_waitcnt lgkmcnt(0)")
    srd(k, sX, 4, 5, -BIAS, 2048 * 576 * 2 + BIAS)
    srd(k, sWS, 42, 43, WS_STAT, 0x200000)
    srd(k, sDB, 40, 41, 0, 256)
    def capture(b):
        for h in range(2):
            for mu in range(2):
                k(f"ds_read_b128 {v(XR_(2 * b + h, mu), 4)}, v{vX1 if h else vXb} offset:{(b % NX) * XS + mu * 512}")
    RAMP = {-1: 2, 0: 1, 1: 2}
    PL = {}; iss_ = 0
    for b_ in range(-1, 9):
        n = RAMP.get(b_, 1); PL[b_] = list(range(iss_, iss_ + n)); iss_ += n
        assert iss_ <= max(4, b_ + 4)
    assert PL[8][-1] == 11
    def side_setup(Q):
        k(f"s_lshl_b32 s{s_tmp}, s{s_cg}, 3"); k(f"s_add_u32 s{s_tmp}, s{s_tmp}, s{s_r0}")
        k(f"s_lshl_b32 s{s_t3}, s{s_wq}, 1"); k(f"s_add_u32 s{s_tmp}, s{s_tmp}, s{s_t3}")
        k(f"v_lshrrev_b32 v{vt}, 5, v{vlane}")
        k(f"v_add_u32 v{vj}, s{s_tmp}, v{vt}")
        k(f"v_mul_u32_u24 v{vt}, 1152, v{vj}")
        k(f"v_and_b32 v{vt2}, 31, v{vlane}")
        k(f"v_lshl_add_u32 v{vt}, v{vt2}, 4, v{vt}")
        k(f"v_add_u32 v{vt}, {BIAS}, v{vt}")
        k(f"v_cmp_gt_u32 vcc, 8, v{vt2}")
        k(f"v_mov_b32 v{vt2}, {OOB}")
        k(f"v_cndmask_b32 v{vt3}, v{vt2}, v{vt}, vcc")
        for j in range(3):
            Q(f"buffer_load_dwordx4 {v(j1b + 4 * j, 4)}, v{vt if j < 2 else vt3}, s[{sX}:{sX+3}], 0 offen offset:{512 * j}", "j1")
        k(f"s_lshl_b32 s{s_tmp}, s{s_rb}, 8"); k(f"s_lshl_b32 s{s_t3}, s{s_cg}, 8")
        k(f"v_mov_b32 v{vsy}, s{s_tmp}"); k(f"v_mov_b32 v{vt}, s{s_t3}")
        k(f"v_cmp_lt_u32 vcc, 1, v{vlane}")
        k(f"v_cndmask_b32 v{vsy}, v{vsy}, v{vt}, vcc")
        k(f"v_lshl_add_u32 v{vsy}, v{vlane}, 12, v{vsy}")
        k(f"v_add_u32 v{vsy}, {SYNC - WS_STAT}, v{vsy}")
        k(f"s_lshl_b32 s{s_tmp}, s{s_rb}, 2"); k(f"s_lshl_b32 s{s_t3}, s{s_cg}, 2"); k(f"s_add_u32 s{s_t3}, s{s_t3}, 64")
        k(f"v_mov_b32 v{vfl}, s{s_tmp}"); k(f"v_mov_b32 v{vt}, s{s_t3}")
        k(f"v_cndmask_b32 v{vfl}, v{vfl}, v{vt}, vcc")
        k(f"v_cmp_gt_u32 vcc, 4, v{vlane}")
        k(f"v_cndmask_b32 v{vfl}, v{vt2}, v{vfl}, vcc")
        k(f"v_cndmask_b32 v{vsy}, v{vt2}, v{vsy}, vcc")
        k(f"s_cmp_eq_u32 s{s_cg}, 0"); k(f"s_cselect_b32 s60, 3, 0")
        k(f"s_cmp_eq_u32 s{s_rb}, 0"); k(f"s_cselect_b32 s{s_tmp}, 12, 0")
        k(f"s_or_b32 s60, s60, s{s_tmp}")
        k(f"s_cmp_eq_u32 s{s_wq}, 2"); k(f"s_cselect_b32 s60, s60, 0")
        k(f"s_mov_b32 s61, 0")
        k(f"v_cndmask_b32 v{vt3}, v{vt2}, v{vsy}, s[60:61]")
        k(f"v_cndmask_b32 v{vfs}, v{vt2}, v{vfl}, s[60:61]")
        k(f"v_mov_b32 v{vone}, 0")
        Q(f"buffer_store_dword v{vone}, v{vt3}, s[{sWS}:{sWS+3}], 0 offen sc1", "init")
    def poll_until(Q, addr_v, srd_, tag):
        Lr = k.label('re'); Lok = k.label('ok')
        Q.wait(tag)
        k(f"{Lr}:")
        k(f"v_cmp_lt_u32 vcc, v{vt3}, v{vt2}")
        k(f"s_and_b32 s{s_tmp}, vcc_lo, 15")
        k(f"s_cmp_eq_u32 s{s_tmp}, 0")
        k(f"s_cbranch_scc1 {Lok}")
        k("s_sleep 2")
        k(f"buffer_load_dword v{vt3}, v{addr_v}, s[{srd_}:{srd_+3}], 0 offen sc1")
        k("s_waitcnt vmcnt(0)")
        k(f"s_branch {Lr}")
        k(f"{Lok}:")
    def side(Q, b, isx):
        if b == 0:
            colsum_part(hb, csa, 0)
        if b == 1:
            k(f"v_mov_b32 v{vone}, 1")
            Q(f"buffer_store_dword v{vone}, v{vfs}, s[{sDB}:{sDB+3}], 0 offen sc1", "flag")
            publish_cs(hb, 0, vt, vt2, lambda t_: Q(t_, "cs"))
            for c in range(8, 12): k(f"v_mov_b32 v{hb + c}, 0")
            for j in range(12):
                k(f"v_dot2_f32_bf16 v{hb + 8 + (j % 2)}, v{j1b + j}, s{sONE}, v{hb + 8 + (j % 2)}")
                k(f"v_dot2_f32_bf16 v{hb + 10 + (j % 2)}, v{j1b + j}, v{j1b + j}, v{hb + 10 + (j % 2)}")
            k(f"v_add_f32 v{vxs}, v{hb + 8}, v{hb + 9}")
            k(f"v_add_f32 v{vxs + 1}, v{hb + 10}, v{hb + 11}")
        if b == 2:
            for sh in (8, 4, 2, 1):
                for c in range(2):
                    k(f"v_add_f32_dpp v{vxs + c}, v{vxs + c}, v{vxs + c} row_ror:{sh} row_mask:0xf bank_mask:0xf")
            for c in range(2): k(f"v_mov_b32 v{hb + 4 + c}, v{vxs + c}")
            for c in range(2): k(f"v_permlane16_swap_b32 v{vxs + c}, v{hb + 4 + c}")
            for c in range(2): k(f"v_add_f32 v{vxs + c}, v{vxs + c}, v{hb + 4 + c}")
            ln_finish(k, vxs, vxs + 1, 576, vt)
            k(f"v_lshlrev_b32 v{vt}, 3, v{vj}")
            k(f"v_add_u32 v{vt}, {XSTAT - WS_STAT}, v{vt}")
            k(f"v_and_b32 v{vt2}, 31, v{vlane}")
            k(f"v_cmp_eq_u32 vcc, 0, v{vt2}")
            k(f"v_mov_b32 v{vt2}, {OOB}")
            k(f"v_cndmask_b32 v{vt}, v{vt2}, v{vt}, vcc")
            Q(f"buffer_store_dwordx2 {v(vxs, 2)}, v{vt}, s[{sWS}:{sWS+3}], 0 offen sc1", "xs")
            Q(f"buffer_load_dword v{vt3}, v{vfl}, s[{sDB}:{sDB+3}], 0 offen sc1", "fl")
        if b == 3:
            k(f"v_mov_b32 v{vt2}, 1")
            poll_until(Q, vfl, sDB, "fl")
            k(f"s_cmp_lt_u32 s{s_rb}, 9"); k(f"s_cselect_b32 s60, 4, 0")
            k(f"s_cmp_eq_u32 s{s_wq}, 0"); k(f"s_cselect_b32 s60, s60, 0"); k(f"s_or_b32 s60, s60, 1"); k(f"s_mov_b32 s61, 0")
            k(f"v_mov_b32 v{vt2}, {OOB}")
            k(f"v_cndmask_b32 v{vt}, v{vt2}, v{vsy}, s[60:61]")
            Q(f"buffer_atomic_add v{vone}, v{vt}, s[{sWS}:{sWS+3}], 0 offen sc1", "arr")
        if not isx: return
        if b == 5:
            Q(f"buffer_load_dword v{vt3}, v{vsy}, s[{sWS}:{sWS+3}], 0 offen sc1", "cnt")
        if b == 6:
            k(f"v_mov_b32 v{vt2}, 0")
            k(f"v_cmp_eq_u32 vcc, 0, v{vlane}"); k(f"v_cndmask_b32 v{vt2}, v{vt2}, 64, vcc")
            k(f"v_cmp_eq_u32 vcc, 2, v{vlane}"); k(f"v_cndmask_b32 v{vt2}, v{vt2}, 9, vcc")
            poll_until(Q, vsy, sWS, "cnt")
            k(f"s_sub_u32 s{s_tmp}, s{s_wq}, 2"); k(f"s_lshl_b32 s{s_tmp}, s{s_tmp}, 6")
            k(f"s_add_u32 s{s_tmp}, s{s_tmp}, s{s_r0}")
            k(f"s_lshl_b32 s{s_tmp}, s{s_tmp}, 3")
            k(f"s_add_u32 s{s_tmp}, s{s_tmp}, {XSTAT - WS_STAT}")
            k(f"v_lshlrev_b32 v{vt}, 3, v{vlane}")
            Q(f"buffer_load_dwordx2 {v(vxs, 2)}, v{vt}, s[{sWS}:{sWS+3}], s{s_tmp} offen sc1", "ld")
            load_cs(hb, 0, vt, vt2, Q)
        if b == 8:
            Q.wait("ld")
            reduce_cs(hb, 0, vt, None)
            k(f"s_sub_u32 s{s_tmp}, s{s_wq}, 2"); k(f"s_lshl_b32 s{s_tmp}, s{s_tmp}, 8")
            k(f"v_lshlrev_b32 v{vt}, 2, v{vlane}")
            k(f"v_add_u32 v{vt}, s{s_tmp}, v{vt}")
            k(f"ds_write_b32 v{vt}, v{vxs} offset:{XM}")
            k(f"ds_write_b32 v{vt}, v{vxs + 1} offset:{XR}")
    def bloop(Q, issue, pre, isx):
        issue(PL[-1][0]); side_setup(Q); issue(PL[-1][1])
        for b in range(9):
            Q.wait(f"{pre}{b}")
            k("s_waitcnt lgkmcnt(0)")
            k("s_barrier")
            for s_ in PL[b]: issue(s_)
            capture(b)
            side(Q, b, isx)
        k("s_waitcnt vmcnt(0)")
    k(f"s_cmp_ge_u32 s{s_wq}, 2")
    k(f"s_cbranch_scc1 {LX}")
    Q = VMQ(k)
    srd(k, sWi, 6, 7, -BIAS, 576 * 4608 * 2 + BIAS)
    k(f"s_mul_i32 s{s_t2}, s{s_cg}, 288")
    k(f"s_add_u32 s{s_t2}, s{s_t2}, 4608")
    w_voffsets(vD, [(j, (j % 4) * 1024) for j in range(9)], s_t2)
    k(f"s_lshl_b32 s{s_k}, s{s_rot}, 1"); k(f"s_add_u32 s{s_k}, s{s_k}, s{s_wq}"); k(f"s_mul_i32 s{s_k}, s{s_k}, {32 * 9216}")
    k(f"s_mul_i32 s{s_mb}, s{s_wq}, {ZU}")
    def wissue(step):
        if step == 9:
            for j in range(9): k(f"v_subrev_u32 v{vD[j]}, 4608, v{vD[j]}")
        b0 = (2 * step) % 9
        if b0 == 8:
            k(f"s_cmp_eq_u32 s{s_wq}, 0"); k(f"s_cselect_b32 s{s_t3}, {8 * ZU}, 0"); k(f"s_add_u32 s{s_t3}, s{s_t3}, {WBASE}")
        else:
            k(f"s_add_u32 s{s_t3}, s{s_mb}, {WBASE + b0 * ZU}")
        for j in range(9):
            if j % 4 == 0: k(f"s_add_u32 m0, s{s_t3}, {(j // 4) * 4096}")
            Q(f"buffer_load_dwordx4 v{vD[j]}, s[{sWi}:{sWi+3}], s{s_k} offen offset:{(j % 4) * 1024} lds", f"w{step}")
        k(f"s_add_u32 s{s_k}, s{s_k}, {64 * 9216}")
        k(f"s_cmp_ge_u32 s{s_k}, {576 * 9216}"); k(f"s_cselect_b32 s{s_tmp}, {576 * 9216}, 0"); k(f"s_sub_u32 s{s_k}, s{s_k}, s{s_tmp}")
    bloop(Q, wissue, "w", False)
    k(f"s_branch {Ljoin}")
    k(f"{LX}:")
    Q2 = VMQ(k)
    k(f"s_sub_u32 s{s_tmp}, s{s_wq}, 2")
    k(f"s_lshl_b32 s{s_t2}, s{s_tmp}, 13")
    k(f"s_add_u32 s{s_t2}, s{s_t2}, {XBASE}")
    k(f"s_lshl_b32 s{s_tmp}, s{s_tmp}, 6")
    k(f"s_add_u32 s{s_tmp}, s{s_tmp}, s{s_r0}")
    k(f"s_lshl_b32 s{s_k}, s{s_rot}, 7")
    k(f"v_lshrrev_b32 v{vt}, 3, v{vlane}")
    k(f"v_and_b32 v{vt2}, 3, v{vt}")
    k(f"v_xor_b32 v{vt2}, v{vt2}, v{vlane}")
    k(f"v_and_b32 v{vt2}, 7, v{vt2}")
    k(f"v_add_u32 v{vt}, s{s_tmp}, v{vt}")
    k(f"v_mul_u32_u24 v{vt}, 1152, v{vt}")
    for j in range(8):
        k(f"v_xor_b32 v{vt3}, {4 * (j & 1)}, v{vt2}")
        k(f"v_lshl_add_u32 v{vt3}, v{vt3}, 4, v{vt}")
        k(f"v_add_u32 v{vD[j]}, {BIAS + j * 8 * 1152 - (j % 4) * 1024}, v{vt3}")
    def xissue(it):
        if it > 8: return
        base = (it % NX) * XS
        for j in range(8):
            if j % 4 == 0: k(f"s_add_u32 m0, s{s_t2}, {base + (j // 4) * 4096}")
            Q2(f"buffer_load_dwordx4 v{vD[j]}, s[{sX}:{sX+3}], s{s_k} offen offset:{(j % 4) * 1024} lds", f"x{it}")
        k(f"s_add_u32 s{s_k}, s{s_k}, 128")
        k(f"s_cmp_eq_u32 s{s_k}, 1152")
        k(f"s_cselect_b32 s{s_k}, 0, s{s_k}")
    bloop(Q2, xissue, "x", True)
    k(f"{Ljoin}:")
    for i in range(72): k(f"v_mov_b32 v{acc1 + i}, 0")
    k("s_waitcnt lgkmcnt(0)")
    ringB = 224; RB = 6
    NRB = 18
    covB = {'c': -1}
    def ubase(u):
        if u < 6: return u * ZU
        if u < 13: return ZRING + (u - 6) * ZU
        return {13: 6, 14: 7, 15: 8, 16: 0, 17: 1}[u] * ZU
    def rdB(q):
        u, j = divmod(q, NRB)
        if j == 0 and u in (0, 6, 10, 14):
            if u > 0 and covB['c'] < u * NRB - NRB - 1:
                k(f"s_waitcnt lgkmcnt({q - (u * NRB - NRB - 1) - 1})"); covB['c'] = u * NRB - NRB - 1
            k("s_barrier")
        if u >= 18: return
        if j == 0: k(f"v_add_u32 v{vWa}, {ubase(u)}, v{vtr}")
        t, half = divmod(j, 2)
        k(f"ds_read_b64_tr_b16 {v(ringB + 4 * ((u * 9 + t) % RB) + 2 * half, 2)}, v{vWa} offset:{t * 32 + half * 2304}")
    LAMB = 6
    def needB(m):
        u, r = divmod(m, NM)
        return u * NRB + (r // 2) * 2 + 1
    issued = 0
    while issued <= needB(LAMB - 1):
        rdB(issued); issued += 1
    st(2)
    TOTB = 18 * NRB
    for u in range(18):
        for t in range(9):
            m0 = u * NM + t * 2
            if needB(m0) > covB['c']:
                tgt = needB(m0)
                k(f"s_waitcnt lgkmcnt({min(issued, TOTB) - tgt - 1})"); covB['c'] = tgt
            for mu in range(2):
                C = v(A1(t, mu), 4)
                if 'nomfma' not in opts:
                    k(f"v_mfma_f32_16x16x32_bf16 {C}, {v(ringB + 4 * ((u * 9 + t) % RB), 4)}, {v(XR_(u, mu), 4)}, {C}")
                n = 0
                while issued <= min(needB(m0 + mu + LAMB), TOTB) and n < 2:
                    if issued < TOTB:
                        assert issued // 2 - RB < u * 9 + t
                    rdB(issued); issued += 1; n += 1
    assert issued == TOTB + 1
    st(3)
    k(f"s_mul_i32 s{s_tmp}, s{s_wq}, 10240")
    k(f"s_add_u32 s{s_tmp}, s{s_tmp}, {XBASE}")
    k(f"v_add_u32 v{vt}, s{s_tmp}, v{vl16}")
    for j, r in enumerate(HO):
        k(f"ds_write_b128 v{vt}, {v(r, 4)} offset:{j * 1024}")
    srd(k, sWS, 42, 43, WS_STAT, 0x200000)
    k(f"s_mul_i32 s{s_tmp}, s{s_wq}, 6144"); k(f"s_add_u32 s{s_tmp}, s{s_tmp}, {WBASE + 2 * ZU}")
    k(f"v_add_u32 v{vt}, s{s_tmp}, v{vl16}")
    k("s_waitcnt lgkmcnt(4)")
    for j, r in enumerate(HO2): k(f"ds_read_b128 {v(r, 4)}, v{vt} offset:{j * 1024}")
    k("s_waitcnt lgkmcnt(0)")
    z2_setup(TB)
    for j, i in enumerate(TB): z2_tile(i, j)
    z2_publish()
    st(4)
    k("s_barrier")

    k(f"{Lz1}:")
    ob = [csv, csv + 4]
    srd(k, sZ1, 42, 43, WS_Z1, 2048 * 2304 * 2)
    srd(k, sZ2, 42, 43, WS_Z2T, 2048 * 2304 * 2)
    k(f"v_lshrrev_b32 v{t0}, 2, v{vn}")
    k(f"v_and_b32 v{t1}, 3, v{vn}")
    k(f"v_lshl_add_u32 v{t0}, v{t0}, 3, v{t1}")
    k(f"s_lshl_b32 s{s_tmp}, s{s_wq}, 7")
    k(f"v_lshlrev_b32 v{va3}, 2, v{t0}")
    k(f"v_add_u32 v{va3}, s{s_tmp}, v{va3}")
    for mu in range(2):
        k(f"ds_read_b32 v{sa + 8 * mu}, v{va3} offset:{XM + 16 * mu}")
        k(f"ds_read_b32 v{sa + 8 * mu + 2}, v{va3} offset:{XR + 16 * mu}")
    k(f"s_lshl_b32 s{s_tmp}, s{s_rb}, 3")
    k(f"s_lshl_b32 s{s_t2}, s{s_wq}, 1")
    k(f"s_add_u32 s{s_tmp}, s{s_tmp}, s{s_t2}")
    k(f"s_lshl_b32 s{s_tmp}, s{s_tmp}, 3")
    k(f"s_lshr_b32 s{s_t2}, s{s_cg}, 1")
    k(f"s_add_u32 s{s_tmp}, s{s_tmp}, s{s_t2}")
    k(f"s_mul_i32 s{s_tmp}, s{s_tmp}, 9216")
    k(f"v_add_u32 v{va2}, s{s_tmp}, v{vl16}")
    k(f"v_add_u32 v{va1}, {8 * 9216}, v{va2}")
    k(f"s_and_b32 s{s_t2}, s{s_cg}, 1")
    k(f"s_lshl_b32 s{s_k}, s{s_t2}, 12")
    k(f"s_lshl_b32 s{s_t2}, s{s_t2}, 3")
    k(f"s_add_u32 s{s_t2}, s{s_t2}, 8192")
    k(f"v_lshlrev_b32 v{va3}, 4, v{vg}")
    k("s_waitcnt lgkmcnt(0)")
    for mu in range(2):
        b_ = sa + 8 * mu
        k(f"v_mul_f32 v{b_ + 4}, {hex(f2u(D0))}, v{b_ + 2}")
        k(f"v_mul_f32 v{b_ + 6}, v{b_ + 2}, v{b_ + 2}")
        k(f"v_mul_f32 v{b_ + 6}, v{b_ + 6}, v{b_ + 2}")
        k(f"v_mul_f32 v{b_ + 6}, {hex(f2u(D1))}, v{b_ + 6}")
        for e in range(0, 8, 2): k(f"v_mov_b32 v{b_ + e + 1}, v{b_ + e}")
    def z1_item(qa, qb, mA, mB, ca, cb, out):
        Qd = [(qa, mA, ca), (qa + 2, mA, ca + 2), (qb, mB, cb), (qb + 2, mB, cb + 2)]
        lo = "op_sel:[0,0,0] op_sel_hi:[0,1,1]"
        for j, (q_, m_, c_) in enumerate(Qd):
            k(f"v_pk_fma_f32 {P2(q_)}, {P2(sa + 8 * m_)}, {P2(c_)}, {P2(q_)} neg_lo:[1,0,0] neg_hi:[1,0,0]")
        for j, (q_, m_, c_) in enumerate(Qd): k(f"v_pk_mul_f32 {P2(T + 2 * j)}, {P2(q_)}, {P2(q_)}")
        for j, (q_, m_, c_) in enumerate(Qd):
            k(f"v_pk_fma_f32 {P2(T + 2 * j)}, {P2(T + 2 * j)}, {P2(sa + 8 * m_ + 6)}, {P2(sa + 8 * m_ + 4)}")
        for j, (q_, m_, c_) in enumerate(Qd): k(f"v_pk_mul_f32 {P2(T + 2 * j)}, {P2(T + 2 * j)}, {P2(q_)}")
        for r in range(8): k(f"v_exp_f32 v{T + r}, v{T + r}")
        for j, (q_, m_, c_) in enumerate(Qd): k(f"v_pk_mul_f32 {P2(q_)}, {P2(q_)}, {P2(sa + 8 * m_ + 2)}")
        for j in range(4): k(f"v_pk_add_f32 {P2(T + 2 * j)}, {P2(T + 2 * j)}, {P2(one)}")
        for r in range(8): k(f"v_rcp_f32 v{T + r}, v{T + r}")
        for j, (q_, m_, c_) in enumerate(Qd): k(f"v_pk_mul_f32 {P2(q_)}, {P2(q_)}, {P2(T + 2 * j)}")
        for j, (q_, m_, c_) in enumerate(Qd): k(f"v_cvt_pk_bf16_f32 v{out + j}, v{q_}, v{q_ + 1}")
    def poll_issue():
        k(f"v_mov_b32 v{t1}, s{s_t3}")
        k(f"buffer_load_dword v{t0}, v{t1}, s[{sWS}:{sWS+3}], 0 offen sc1")
    def z1_epi(pairs, last, after_arrive=None):
        for a_ in pairs:
            k(f"ds_read_b128 {v(cA, 4)}, v{va3} offset:{CS + 576 + 128 * a_}")
            k(f"ds_read_b128 {v(cB, 4)}, v{va3} offset:{CS + 576 + 128 * a_ + 64}")
            k("s_waitcnt lgkmcnt(0)")
            for mu in range(2):
                z1_item(A1(2 * a_, mu), A1(2 * a_ + 1, mu), mu, mu, cA, cB, ob[mu])
                k(f"buffer_store_dwordx4 {v(ob[mu], 4)}, v{va1 if mu else va2}, s[{sZ1}:{sZ1+3}], s{s_k} offen offset:{1024 * a_}")
                if a_ == pairs[0] and mu == 0:
                    z2_arrive(1)
                    if after_arrive: after_arrive()
        if last:
            k(f"ds_read_b128 {v(cA, 4)}, v{va3} offset:{CS + 576 + 512}")
            k("s_waitcnt lgkmcnt(0)")
            z1_item(A1(8, 0), A1(8, 1), 0, 1, cA, cA, X)
            for mu in range(2):
                k(f"buffer_store_dwordx2 {v(X + 2 * mu, 2)}, v{va1 if mu else va2}, s[{sZ1}:{sZ1+3}], s{s_t2} offen")
    LzB = k.label('z1B'); Lfin = k.label('fin')
    KV = 'nokv' not in opts
    KS = [60, 61, 62, 63, 64]
    if KV:
        k(f"s_load_dwordx4 s[8:11], s[0:1], {KA['k']}")
        k("s_waitcnt lgkmcnt(0)")
        srd(k, 24, 10, 11, 0, 2048 * 1152)
        srd(k, 12, 8, 9, -3456, 2048 * 1152 + 3456)
        srd(k, 8, 42, 43, WS_KVT, 576 * 4096)
    RA = dict(K=80, W=100 - 4 + 4, t=vt, t2=vt2, t3=vt3)
    RA = dict(K=80, W=132, t=vt, t2=vt2, t3=vt3)
    k(f"s_cmp_eq_u32 s{s_role}, 1")
    k(f"s_cbranch_scc1 {LzB}")
    RA = dict(K=80, W=100, t=vt, t2=vt2, t3=vt3, w=112, acc=X, pr=T, tp=csv)
    k.kvA = True
    nkv = 0
    z1_epi([2, 3], True, (lambda: jobs.kv8_loads(k, dict(K=80, W=d0r, t=vt, t2=vt2, t3=vt3), False, 2, s_wave, s_wq, 12, 24, 44, vlane, KS)) if KV else None)
    RA = dict(K=80, W=d0r, t=vt, t2=vt2, t3=vt3, w=112, acc=X, pr=T, tp=csv)
    poll_issue()
    if KV:
        k(f"s_mov_b32 s{KS[3]}, {WBASE + 4096}")
        k("s_waitcnt vmcnt(6)")
        jobs.kv8_compute(k, RA, False, s_wave, s_wq, vlane, ZSL, KS, sONE)
        k("s_waitcnt lgkmcnt(0)")
        k("s_barrier")
        jobs.kv8_store(k, RA, s_wave, vlane, vn, vg, 8, KS)
    k(f"s_branch {Lfin}")
    k(f"{LzB}:")
    RB_ = dict(K=8, W=d0r, K2=28, W2=112, t=vt, t2=vt2, t3=vt3, w=80, acc=X, pr=T, tp=csv)
    z1_epi([0, 1], False, (lambda: jobs.kv8_loads(k, RB_, True, 2, s_wave, s_wq, 12, 24, 44, vlane, KS)) if KV else None)
    poll_issue()
    if KV:
        k(f"s_mov_b32 s{KS[3]}, {WBASE + 4096}")
        k("s_waitcnt vmcnt(4)")
        jobs.kv8_compute(k, RB_, True, s_wave, s_wq, vlane, ZSL, KS, sONE)
        k("s_waitcnt lgkmcnt(0)")
        k("s_barrier")
        jobs.kv8_store(k, RB_, s_wave, vlane, vn, vg, 8, KS)
    k(f"{Lfin}:")
    st(5)
    pl = acc1
    Lp = k.label('poll'); Lpo = k.label('pollok')
    k(f"s_waitcnt vmcnt({2 if KV else 0})")
    k(f"{Lp}:")
    k(f"v_readfirstlane_b32 s{s_tmp}, v{t0}")
    k(f"s_cmp_ge_u32 s{s_tmp}, 16")
    k(f"s_cbranch_scc1 {Lpo}")
    k(f"buffer_load_dword v{t0}, v{t1}, s[{sWS}:{sWS+3}], 0 offen sc1")
    k("s_waitcnt vmcnt(0)")
    k(f"s_branch {Lp}")
    k(f"{Lpo}:")
    st(6)
    k(f"s_lshl_b32 s{s_tmp}, s{s_rb}, 15")
    k(f"s_lshl_b32 s{s_t2}, s{s_wq}, 8")
    k(f"s_add_u32 s{s_tmp}, s{s_tmp}, s{s_t2}")
    k(f"v_lshlrev_b32 v{t0}, 10, v{vg}")
    k(f"v_lshl_add_u32 v{t0}, v{vn}, 4, v{t0}")
    k(f"v_add_u32 v{t0}, s{s_tmp}, v{t0}")
    for j in range(8):
        k(f"s_mov_b32 s{s_t2}, {4096 * j}")
        k(f"buffer_load_dwordx4 {v(pl + 4 * j, 4)}, v{t0}, s[{sWS}:{sWS+3}], s{s_t2} offen sc1")
    for j in range(1, 8):
        k(f"s_waitcnt vmcnt({7 - j})")
        for c in range(0, 4, 2): k(f"v_pk_add_f32 {P2(pl + c)}, {P2(pl + c)}, {P2(pl + 4 * j + c)}")
    for op in ("v_permlane32_swap_b32", "v_permlane16_swap_b32"):
        for c in range(4): k(f"v_mov_b32 v{pl + 4 + c}, v{pl + c}")
        for c in range(4): k(f"{op} v{pl + c}, v{pl + 4 + c}")
        for c in range(4): k(f"v_add_f32 v{pl + c}, v{pl + c}, v{pl + 4 + c}")
    ln_finish(k, pl, pl + 1, 2304, t0)
    ln_finish(k, pl + 2, pl + 3, 2304, t0)
    k(f"s_lshl_b32 s{s_tmp}, s{s_wave}, 8")
    k(f"v_lshlrev_b32 v{t0}, 4, v{vn}")
    k(f"v_add_u32 v{t0}, s{s_tmp}, v{t0}")
    k(f"ds_write_b128 v{t0}, {v(pl, 4)} offset:{WBASE}")
    k(f"v_lshlrev_b32 v{t1}, 6, v{vg}")
    k(f"v_add_u32 v{t1}, s{s_tmp}, v{t1}")
    k("s_waitcnt lgkmcnt(0)")
    for j in range(4):
        k(f"ds_read_b128 {v(zS + 4 * j, 4)}, v{t1} offset:{WBASE + 16 * j}")
    k(f"s_lshl_b32 s{s_tmp}, s{s_cg}, 6")
    k(f"s_lshl_b32 s{s_t2}, s{s_rb}, 2")
    k(f"s_add_u32 s{s_tmp}, s{s_tmp}, s{s_t2}")
    k(f"s_add_u32 s{s_tmp}, s{s_tmp}, s{s_wq}")
    k(f"s_mul_i32 s{s_tmp}, s{s_tmp}, 9216")
    k(f"v_add_u32 v{va2}, s{s_tmp}, v{vl16}")
    k("s_waitcnt lgkmcnt(0)")
    for r in range(8):
        k(f"v_mul_f32 v{X + r}, v{xr + r}, v{zS + 2 * r + 1}")
        k(f"v_mul_f32 v{T + r}, -v{zS + 2 * r}, v{zS + 2 * r + 1}")
    def z2b(tiles):
        for i in tiles:
            a_ = A2(i, 0)
            for r in range(0, 8, 2): k(f"v_pk_fma_f32 {P2(a_ + r)}, {P2(a_ + r)}, {P2(X + r)}, {P2(T + r)}")
            for j in range(4): k(f"v_cvt_pk_bf16_f32 v{a_ + j}, v{a_ + 2 * j}, v{a_ + 2 * j + 1}")
            k(f"s_movk_i32 s{s_k}, {1024 * i}")
            k(f"buffer_store_dwordx4 {v(a_, 4)}, v{va2}, s[{sZ2}:{sZ2+3}], s{s_k} offen")
    LBend = k.label('bend'); LfB = k.label('finB')
    k(f"s_cmp_eq_u32 s{s_role}, 1")
    k(f"s_cbranch_scc1 {LfB}")
    z2b(TA)
    k(f"s_branch {LBend}")
    k(f"{LfB}:")
    z2b(TB)
    if 'iter' in opts: k("s_endpgm")
    k(f"{LBend}:")
    if 'iter' in opts:
        k("s_cmp_lg_u32 s2, 77"); k(f"s_cbranch_scc1 {Lend}")
        k(f"s_cmp_lg_u32 s{s_wave}, 0"); k(f"s_cbranch_scc1 {Lend}")
        srd(k, 88, 42, 43, WS_STAMP, 256)
        k(f"v_lshlrev_b32 v246, 2, v{vlane}")
        k("buffer_store_dword v247, v246, s[88:91], 0 offen")
        k("s_endpgm")
    st.flush(Lend, t0)
    k(f"{Lend}:")
    k("s_endpgm")
    k.lds = LDS
    return k

if __name__ == "__main__":
    import sys
    opts = sys.argv[2:]
    k = gen_k1(opts=opts)
    build_file(["; k1 test"], [(k, 256, 512, k.lds)], [k], sys.argv[1])
```

```python
from common import *
import jobs

def getopt(opts, key, default):
    x = [o.split('=')[1] for o in opts if o.startswith(key + '=')]
    return int(x[0]) if x else default

ZU = 9216
WSL = 16384
def gen_k2(name="k2_kernel", opts=(), side=None):
    k = Kernel(name); k.check = not [o for o in opts if o in ('nomfma', 'noload', 'stamp', 'once')]
    NOMFMA = 'nomfma' in opts
    NOLOAD = 'noload' in opts
    NU = 9; NW = 4; AHEAD = 4
    CNT = getopt(opts, 'cnt', 32)
    LAM = getopt(opts, 'LAM', 8)
    WG = getopt(opts, 'WG', 2)
    ZRING = NU * ZU
    RING = ZRING + NW * WSL
    sW, sZ, sZ1, sP, sB = 8, 12, 16, 20, 24
    s_wave, s_role, s_wq, s_t0, s_fb, s_m0z, s_m0w, s_kz, s_kw, s_cnt, s_tmp, s_off, s_offw = 28, 29, 30, 31, 32, 33, 34, 35, 36, 37, 38, 39, 44
    Lend = k.label('end'); Lload = k.label('loader'); LB = k.label('consB')
    k(f"s_cmp_ge_u32 s2, 256")
    k(f"s_cbranch_scc1 {Lend}")
    k(f"s_load_dwordx4 s[4:7], s[0:1], {KA['wsp']}")
    k(f"s_load_dwordx2 s[40:41], s[0:1], {KA['ws']}")
    va = Alloc(1, 168)
    vlane = va.get(); vt = va.get(); vt2 = va.get(); vt3 = va.get(); vn = va.get(); vg = va.get(); vl16 = va.get()
    k(f"v_lshrrev_b32 v{vt}, 6, v0")
    k(f"v_and_b32 v{vlane}, 63, v0")
    k(f"v_readfirstlane_b32 s{s_wave}, v{vt}")
    k(f"v_and_b32 v{vn}, 15, v{vlane}")
    k(f"v_lshrrev_b32 v{vg}, 4, v{vlane}")
    k(f"v_lshlrev_b32 v{vl16}, 4, v{vlane}")
    k(f"s_lshr_b32 s{s_role}, s{s_wave}, 2")
    k(f"s_and_b32 s{s_wq}, s{s_wave}, 3")
    k(f"s_and_b32 s{s_tmp}, s2, 1")
    k(f"s_lshl_b32 s{s_tmp}, s{s_tmp}, 3")
    k(f"s_bfe_u32 s{s_t0}, s2, 0x30003")
    k(f"s_add_u32 s{s_t0}, s{s_t0}, s{s_tmp}")
    k(f"s_lshl_b32 s{s_t0}, s{s_t0}, 7")
    k(f"s_bfe_u32 s{s_tmp}, s2, 0x20001")
    k(f"s_lshl_b32 s{s_tmp}, s{s_tmp}, 2")
    k(f"s_lshr_b32 s{s_fb}, s2, 6")
    k(f"s_add_u32 s{s_fb}, s{s_fb}, s{s_tmp}")
    k(f"s_mov_b32 s{s_off}, 0")
    k(f"s_mov_b32 s{s_offw}, 0")
    k(f"s_mov_b32 s{s_cnt}, 0")
    st = Stamps(k, 'stamp' in opts, s_wave, span=(2 if 'span' in opts else None))
    if 'span' in opts: k.check = False
    for i_ in range(7): st(i_)
    save = va.n
    k(f"s_cmp_eq_u32 s{s_role}, 2")
    k(f"s_cbranch_scc1 {Lload}")

    vz = va.get(20, 4); vb = va.get(2, 2); vo1 = va.get(); vo2 = va.get(); vtrow = va.get()
    acc = va.get(40, 4)
    vZ = va.get(); vWb = va.get(); vW = va.get(); vW1 = va.get()
    ring = va.get(40, 4)
    wreg = va.get(16, 4)
    k(f"v_lshrrev_b32 v{vt3}, 2, v{vn}")
    k(f"v_and_b32 v{vt2}, 3, v{vn}")
    k(f"v_lshl_add_u32 v{vt3}, v{vt3}, 3, v{vt2}")
    k(f"v_xor_b32 v{vt}, v{vg}, v{vn}")
    k(f"v_and_b32 v{vt}, 7, v{vt}")
    k(f"v_lshlrev_b32 v{vt}, 4, v{vt}")
    k(f"v_lshl_add_u32 v{vt}, v{vt3}, 7, v{vt}")
    k(f"s_lshl_b32 s{s_tmp}, s{s_wq}, 12")
    k(f"s_add_u32 s{s_tmp}, s{s_tmp}, {ZRING}")
    k(f"v_add_u32 v{vWb}, s{s_tmp}, v{vt}")
    for i in range(40):
        k(f"v_mov_b32 v{acc+i}, 0")
    k(f"s_lshl_b32 s{s_tmp}, s{s_wq}, 5")
    k(f"s_add_u32 s{s_tmp}, s{s_tmp}, s{s_t0}")
    k(f"v_add_u32 v{vtrow}, s{s_tmp}, v{vt3}")
    k(f"v_lshlrev_b32 v{vtrow}, 1, v{vtrow}")
    k(f"s_lshr_b32 s{s_tmp}, s{s_tmp}, 4")
    k(f"s_lshl_b32 s{s_tmp}, s{s_tmp}, 3")
    k(f"s_lshr_b32 s42, s{s_fb}, 1")
    k(f"s_add_u32 s{s_tmp}, s{s_tmp}, s42")
    k(f"s_mul_i32 s{s_tmp}, s{s_tmp}, 9216")
    k(f"s_and_b32 s42, s{s_fb}, 1")
    k(f"s_lshl_b32 s43, s42, 12")
    k(f"s_add_u32 s43, s43, s{s_tmp}")
    k(f"s_lshl_b32 s45, s{s_role}, 11")
    k(f"s_add_u32 s43, s43, s45")
    k(f"v_add_u32 v{vo1}, s43, v{vl16}")
    k(f"s_lshl_b32 s42, s42, 3")
    k(f"s_add_u32 s42, s42, s{s_tmp}")
    k(f"s_add_u32 s42, s42, 8192")
    k(f"v_add_u32 v{vo2}, s42, v{vl16}")
    k(f"s_mov_b32 s46, {8 * 9216}")
    k("s_waitcnt lgkmcnt(0)")
    srd(k, sZ1, 40, 41, WS_Z1, 2048 * 2304 * 2)
    srd(k, sP, 40, 41, WS_P, 2048 * 2304 * 2)
    srd(k, sB, 6, 7, 0, 4096)
    k(f"s_cmp_eq_u32 s{s_role}, 1")
    k(f"s_cbranch_scc1 {LB}")

    def consumer(tiles):
        NT = len(tiles)
        R = 2 * NT
        NRD = NT + 2
        NM = 2 * NT
        cov = {'c': -1}
        def rd(q):
            u, j = divmod(q, NRD)
            if j == 0:
                if u % 2 == 0:
                    if u > 0 and cov['c'] < (u - 1) * NRD + 1:
                        k(f"s_waitcnt lgkmcnt({q - ((u - 1) * NRD + 1) - 1})")
                        cov['c'] = (u - 1) * NRD + 1
                    k("s_barrier")
                    k(f"v_add_u32 v{vW}, s{s_offw}, v{vWb}")
            if j == 1 and u % 2 == 0:
                k(f"v_xor_b32 v{vW1}, 64, v{vW}")
            if j == 2:
                k(f"v_add_u32 v{vZ}, s{s_off}, v{vl16}")
            if j == 3:
                k(f"s_add_u32 s{s_off}, s{s_off}, {ZU}")
                if u % 2 == 0: k(f"s_add_u32 s{s_offw}, s{s_offw}, {WSL}")
            if j == 4:
                k(f"s_cmp_eq_u32 s{s_off}, {ZRING}")
                k(f"s_cselect_b32 s{s_off}, 0, s{s_off}")
            if j == 5 and u % 2 == 0:
                k(f"s_and_b32 s{s_offw}, s{s_offw}, {NW * WSL - 1}")
            if j < 2:
                k(f"ds_read_b128 {v(wreg + ((u % 2) * 2 + j) * 4, 4)}, v{vW1 if u % 2 else vW} offset:{j * 512}")
            else:
                k(f"ds_read_b128 {v(ring + 4 * ((u * NT + j - 2) % R), 4)}, v{vZ} offset:{tiles[j - 2] * 1024}")
        def need(m):
            u, r = divmod(m, NM)
            return u * NRD + 2 + r // 2
        iss = need(LAM - 1) + 1
        for m in range(2 * NM * 3):
            if iss <= need(m + LAM): iss += 1
            if (m + 1) % (2 * NM) == 0: steady = iss - ((m + 1) // (2 * NM)) * 2 * NRD
        for q in range(steady):
            rd(q)
        for nu in range(2):
            so = "0" if nu == 0 else "s46"
            for a_ in range(2):
                k(f"buffer_load_dwordx4 {v(vz + 8 * nu + 4 * a_, 4)}, v{vo1}, s[{sZ1}:{sZ1+3}], {so} offen offset:{1024 * a_}")
            if NT == 5:
                k(f"buffer_load_dwordx2 {v(vz + 16 + 2 * nu, 2)}, v{vo2}, s[{sZ1}:{sZ1+3}], {so} offen")
            k(f"buffer_load_ushort v{vb + nu}, v{vtrow}, s[{sB}:{sB+3}], 0 offen offset:{8 * nu}")
        st(2)
        if st.on: k("s_waitcnt lgkmcnt(0)")
        issued = steady
        Lloop = k.label('loop')
        k(f"{Lloop}:")
        for h in range(2):
            for i in range(NT):
                m0 = h * NM + i * 2
                if need(m0) > cov['c']:
                    tgt = min(need(min(m0 + 2 * (WG - 1), h * NM + NM - 1)), issued - 1)
                    k(f"s_waitcnt lgkmcnt({issued - tgt - 1})")
                    cov['c'] = tgt
                A = v(ring + 4 * ((h * NT + i) % R), 4)
                for nu in range(2):
                    B = v(wreg + (h * 2 + nu) * 4, 4)
                    C = v(acc + (i * 2 + nu) * 4, 4)
                    if not NOMFMA:
                        k(f"v_mfma_f32_16x16x32_bf16 {C}, {A}, {B}, {C}")
                    if issued <= need(m0 + nu + LAM):
                        u2, j2 = divmod(issued, NRD)
                        if j2 >= 2:
                            assert (u2 * NT + j2 - 2) - R < h * NT + i, "ring too small"
                        rd(issued); issued += 1
        assert issued == steady + 2 * NRD
        if 'iter' in opts:
            k("s_memtime s[94:95]")
            k("s_waitcnt lgkmcnt(0)")
            k("s_sub_u32 s94, s94, s70")
            k(f"s_mov_b32 m0, s{s_cnt}")
            k(f"v_writelane_b32 v160, s94, m0")
        k(f"s_add_u32 s{s_cnt}, s{s_cnt}, 1")
        k(f"s_cmp_lt_u32 s{s_cnt}, {CNT}")
        k(f"s_cbranch_scc1 {Lloop}")
        st(3)
        k("s_waitcnt vmcnt(0) lgkmcnt(0)")
        st(5)
        for nu in range(2):
            k(f"v_lshlrev_b32 v{vb + nu}, 16, v{vb + nu}")
        T = ring
        for nu in range(2):
            so = "0" if nu == 0 else "s46"
            for i in range(NT):
                X = [acc + (i * 2 + nu) * 4 + r for r in range(4)]
                zi = (vz + 8 * nu + 4 * (i // 2) + 2 * (i % 2)) if i < 4 else (vz + 16 + 2 * nu)
                tq = T + 8 * (i % 2)
                for pr in range(2): k(f"v_cvt_pk_bf16_f32 v{tq + pr}, v{X[2 * pr]}, v{X[2 * pr + 1]}")
                for pr in range(2):
                    k(f"v_lshlrev_b32 v{X[2 * pr]}, 16, v{tq + pr}")
                    k(f"v_and_b32 v{X[2 * pr + 1]}, 0xffff0000, v{tq + pr}")
                for r in range(4): k(f"v_add_f32 v{X[r]}, v{X[r]}, v{vb + nu}")
                for pr in range(2): k(f"v_cvt_pk_bf16_f32 v{tq + pr}, v{X[2 * pr]}, v{X[2 * pr + 1]}")
                for pr in range(2):
                    k(f"v_lshlrev_b32 v{X[2 * pr]}, 16, v{tq + pr}")
                    k(f"v_and_b32 v{X[2 * pr + 1]}, 0xffff0000, v{tq + pr}")
                    k(f"v_lshlrev_b32 v{tq + 2 + 2 * pr}, 16, v{zi + pr}")
                    k(f"v_and_b32 v{tq + 3 + 2 * pr}, 0xffff0000, v{zi + pr}")
                for r in range(4): k(f"v_mul_f32 v{X[r]}, v{X[r]}, v{tq + 2 + r}")
                for pr in range(2): k(f"v_cvt_pk_bf16_f32 v{zi + pr}, v{X[2 * pr]}, v{X[2 * pr + 1]}")
                if i < 4 and i % 2 == 1:
                    k(f"buffer_store_dwordx4 {v(vz + 8 * nu + 4 * (i // 2), 4)}, v{vo1}, s[{sP}:{sP+3}], {so} offen offset:{1024 * (i // 2)}")
                if i == 4:
                    k(f"buffer_store_dwordx2 {v(zi, 2)}, v{vo2}, s[{sP}:{sP+3}], {so} offen")
        st(6)
        if 'iter' in opts:
            k("s_cmp_lg_u32 s2, 77"); k(f"s_cbranch_scc1 {Lend}")
            k(f"s_cmp_lg_u32 s{s_wave}, 0"); k(f"s_cbranch_scc1 {Lend}")
            srd(k, 88, 40, 41, WS_STAMP, 256)
            k(f"v_lshlrev_b32 v161, 2, v{vlane}")
            k("buffer_store_dword v160, v161, s[88:91], 0 offen")
            k("s_endpgm")
        st.flush(Lend, 2)
        k("s_endpgm")
    consumer([0, 1, 2, 3, 8])
    k(f"{LB}:")
    consumer([4, 5, 6, 7])

    k(f"{Lload}:")
    va.n = save
    vDz = va.get(); vDw = [va.get() for _ in range(8)]
    BIAS = 4096
    LW = k.label('wload')
    k(f"s_setprio {getopt(opts, 'lprio', 3)}")
    JOBS = 'nojobs' not in opts
    JLB = RING
    s_tile = 45
    if JOBS:
        k(f"s_load_dwordx4 s[60:63], s[0:1], {KA['k']}")
        k(f"s_load_dwordx4 s[64:67], s[0:1], {KA['shk']}")
        k(f"s_load_dwordx2 s[46:47], s[0:1], {KA['wout']}")
    k("s_waitcnt lgkmcnt(0)")
    if JOBS:
        from k1 import SYNC, VMQ
        srd(k, 16, 60, 61, -3456, 2048 * 1152 + 3456)
        srd(k, 20, 62, 63, 0, 2048 * 1152)
        srd(k, 24, 64, 65, 0, 576 * 8)
        srd(k, 48, 40, 41, WS_KVT, 576 * 4096)
        srd(k, 52, 46, 47, 0, 2304 * 1152)
        srd(k, 56, 40, 41, WS_WOT, 2304 * 1152)
        k(f"s_mov_b32 s{s_tile}, s2")
    k(f"s_cmp_ge_u32 s{s_wq}, 2")
    k(f"s_cbranch_scc1 {LW}")
    def loader_loop(dma, n):
        RAMP = [int(c) for c in str(getopt(opts, 'ramp', 212))]
        issued = 0
        for q, cntd in enumerate(RAMP):
            for u in range(cntd):
                dma(); issued += 1
            if q == 2 and JOBS and n == 8:
                srd(k, 12, 66, 67, 0, 576 * 4096)
                k(f"s_mul_i32 s{s_tmp}, s2, 9216"); k(f"s_sub_u32 s42, s{s_wq}, 2"); k(f"s_lshl_b32 s42, s42, 13"); k(f"s_add_u32 s{s_tmp}, s{s_tmp}, s42")
                k(f"v_lshlrev_b32 v{vt}, 7, v{vlane}")
                k(f"buffer_load_dword v{vt2}, v{vt}, s[12:15], s{s_tmp} offen")
                srd(k, 12, 40, 41, SYNC + 0x4000, 36 * 256)
                k(f"s_cmp_eq_u32 s2, 0"); k(f"s_cselect_b32 s{s_tmp}, 0, {jobs.OOB}")
                k(f"v_lshlrev_b32 v{vt}, 8, v{vlane}"); k(f"v_mov_b32 v{vt3}, 0")
                k(f"buffer_store_dword v{vt3}, v{vt}, s[12:15], s{s_tmp} offen")
            assert issued >= q + 1 and issued <= max(AHEAD, q - 1 + AHEAD)
            k(f"s_waitcnt vmcnt({n * (issued - (q + 1))})")
            k("s_barrier")
        nb = len(RAMP)
        assert issued == nb + AHEAD - 2, (issued, nb)
        k(f"s_mov_b32 s{s_cnt}, {issued}")
        if JOBS:
            srd(k, 4, 66, 67, 0, 576 * 4096) if False else None
            Q = VMQ(k)
            def dma_q():
                m_ = len(k.items)
                dma()
                Q.q += ['dma'] * sum(1 for x in k.items[m_:] if x[0] == 'i' and x[1].kind == 'vmem')
            def interval(evs):
                dma_q()
                k(f"s_add_u32 s{s_cnt}, s{s_cnt}, 1")
                for e in evs:
                    if e[0] == 'i': k(e[1])
                    elif e[0] == 'q': Q(e[1], e[2])
                    elif e[0] == 'w': Q.wait(e[1])
                idx = [i for i, t_ in enumerate(Q.q) if t_ == 'dma']
                if len(idx) > n * (AHEAD - 2): Q.waitidx(idx[-n * (AHEAD - 2) - 1])
                else: k(f"s_waitcnt vmcnt({n * (AHEAD - 2)})")
                k("s_barrier")
            WS_ = [60, 61, 62, 63, 64, 65, 46, 47]
            def record(fn):
                r = jobs.Rec(); rq = jobs.RecQ(r)
                for y in fn(r, rq): r.ev.append(('brk',))
                return r.ev
            def wo_all(r, rq):
                st_ = jobs.wo_loads(r, rq, 136, s_tile, 52, vlane, WS_, s_wq)
                yield 'L'
                yield 'L'
                yield from jobs.wo_job(r, rq, st_, 56, vlane, vn, vg, JLB, WS_, s_wq)
                yield 'B'
            NCH = getopt(opts, 'nch', 40)
            ch_kv = jobs.chunk(record(lambda r, rq: jobs.kv_job(r, rq, 20, s_tile, 16, 20, 24, 48, vlane, JLB, [42, 43, 7, 6, 5], s_wq)), NCH)
            ch_wo = jobs.chunk(record(wo_all), 70)
            ch_kv = [c for i_, c in enumerate(ch_kv) if c or i_ < len(ch_kv) - 1]
            ch_wo = [c for i_, c in enumerate(ch_wo) if c or i_ < len(ch_wo) - 1]
            print("job intervals", len(ch_kv), len(ch_wo))
            pass
            for _ in range(getopt(opts, 'jdelay', 3)): interval([])
            if 'kv2' in opts:
                for c in ch_kv: interval(c)
            Lj = k.label('jobs')
            k(f"{Lj}:")
            Q = VMQ(k)
            for c in ch_wo: interval(c)
            k(f"s_add_u32 s{s_tile}, s{s_tile}, 256")
            k(f"s_cmp_lt_u32 s{s_tile}, 288")
            k(f"s_cbranch_scc1 {Lj}")
        Lloop = k.label('lloop')
        k(f"{Lloop}:")
        if 'once' not in opts:
            dma()
        k(f"s_add_u32 s{s_cnt}, s{s_cnt}, 1")
        k(f"s_cmp_lt_u32 s{s_cnt}, {CNT}")
        k(f"s_waitcnt vmcnt({n * (AHEAD - 2)})")
        k("s_barrier")
        k(f"s_cbranch_scc1 {Lloop}")
        for q in range(CNT - AHEAD + 2, CNT + 1):
            k(f"s_waitcnt vmcnt({n * max(CNT - 1 - q, 0)})")
            k("s_barrier")
        k("s_endpgm")
    srd(k, sZ, 40, 41, WS_Z2T, 2304 * 2048 * 2)
    k(f"s_mul_i32 s{s_tmp}, s{s_fb}, 589824")
    k(f"v_add_u32 v{vDz}, s{s_tmp}, v{vl16}")
    k(f"s_mul_i32 s{s_kz}, s{s_wq}, {ZU}")
    k(f"s_mov_b32 s{s_off}, s{s_kz}")
    def dmaz():
        if NOLOAD:
            return
        k(f"s_mov_b32 m0, s{s_off}")
        k(f"s_add_u32 s{s_m0z}, s{s_kz}, 4096")
        for j in range(4):
            k(f"buffer_load_dwordx4 v{vDz}, s[{sZ}:{sZ+3}], s{s_kz} offen offset:{j * 1024} lds")
        k(f"s_add_u32 m0, s{s_off}, 4096")
        k(f"s_add_u32 s{s_m0w}, s{s_kz}, 8192")
        for j in range(4):
            k(f"buffer_load_dwordx4 v{vDz}, s[{sZ}:{sZ+3}], s{s_m0z} offen offset:{j * 1024} lds")
        k(f"s_add_u32 m0, s{s_off}, 8192")
        k(f"s_add_u32 s{s_off}, s{s_off}, {2 * ZU}")
        k(f"buffer_load_dwordx4 v{vDz}, s[{sZ}:{sZ+3}], s{s_m0w} offen lds")
        k(f"s_add_u32 s{s_kz}, s{s_kz}, {2 * ZU}")
        k(f"s_cmp_ge_u32 s{s_off}, {ZRING}")
        k(f"s_cselect_b32 s{s_tmp}, {ZRING}, 0")
        k(f"s_sub_u32 s{s_off}, s{s_off}, s{s_tmp}")
        if CNT != 32:
            k(f"s_cmp_ge_u32 s{s_kz}, 589824")
            k(f"s_cselect_b32 s{s_tmp}, 589824, 0")
            k(f"s_sub_u32 s{s_kz}, s{s_kz}, s{s_tmp}")
    loader_loop(dmaz, 9)
    k(f"{LW}:")
    srd(k, sW, 4, 5, -BIAS, 2048 * 2048 * 2 + BIAS)
    k(f"s_mov_b32 s{s_kw}, 0")
    k(f"s_sub_u32 s{s_tmp}, s{s_wq}, 2")
    k(f"s_lshl_b32 s{s_m0w}, s{s_tmp}, 13")
    k(f"s_add_u32 s{s_m0w}, s{s_m0w}, {ZRING}")
    k(f"s_lshl_b32 s{s_tmp}, s{s_tmp}, 6")
    k(f"s_add_u32 s{s_tmp}, s{s_tmp}, s{s_t0}")
    k(f"v_lshrrev_b32 v{vt}, 3, v{vlane}")
    k(f"v_and_b32 v{vt2}, 3, v{vt}")
    k(f"v_xor_b32 v{vt2}, v{vt2}, v{vlane}")
    k(f"v_and_b32 v{vt2}, 7, v{vt2}")
    k(f"v_add_u32 v{vt}, s{s_tmp}, v{vt}")
    k(f"v_lshlrev_b32 v{vt}, 12, v{vt}")
    for j in range(8):
        k(f"v_xor_b32 v{vt3}, {4 * (j & 1)}, v{vt2}")
        k(f"v_lshl_add_u32 v{vt3}, v{vt3}, 4, v{vt}")
        k(f"v_add_u32 v{vDw[j]}, {BIAS + j * 8 * 4096 - (j % 4) * 1024}, v{vt3}")
    def dmaw():
        if NOLOAD:
            return
        k(f"s_add_u32 m0, s{s_m0w}, s{s_offw}")
        k(f"s_add_u32 s{s_tmp}, s{s_m0w}, 4096")
        for j in range(4):
            k(f"buffer_load_dwordx4 v{vDw[j]}, s[{sW}:{sW+3}], s{s_kw} offen offset:{j * 1024} lds")
        k(f"s_add_u32 m0, s{s_tmp}, s{s_offw}")
        k(f"s_add_u32 s{s_offw}, s{s_offw}, {WSL}")
        k(f"s_and_b32 s{s_offw}, s{s_offw}, {NW * WSL - 1}")
        for j in range(4, 8):
            k(f"buffer_load_dwordx4 v{vDw[j]}, s[{sW}:{sW+3}], s{s_kw} offen offset:{(j % 4) * 1024} lds")
        k(f"s_add_u32 s{s_kw}, s{s_kw}, 128")
        if CNT != 32:
            k(f"s_and_b32 s{s_kw}, s{s_kw}, 0xfff")
    loader_loop(dmaw, 8)
    k(f"{Lend}:")
    k("s_endpgm")
    k.lds = RING + 14336
    k.threads = 768
    return k

if __name__ == "__main__":
    import sys
    opts = sys.argv[2:]
    k = gen_k2(opts=opts)
    build_file(["; k2 test"], [(k, 256, 768, k.lds)], [k], sys.argv[1])
```

```python
from common import *
from k2 import getopt
from k1 import XSTAT, SYNC, f2u, OOB, rnd_n
from kc import conv_wave, CONV_LDS

CY = SYNC + 0x4000
LOG2E = 1.4426950408889634

def gen_k3(name="k3_kernel", opts=()):
    k = Kernel(name); k.check = not [o for o in opts if o in ('stamp',)]
    FUSED = 'noconv' not in opts
    PART = 0
    XT = 4 * CONV_LDS
    YT = XT + 10240
    LDS = YT + 20480
    sP, sWF, sX, sY, sO, sWS = 8, 12, 16, 20, 24, 44
    s_wave, s_tb, s_db, s_cnt, s_tmp, s_t2, s_k, s_d0, s_dt0, s_t0, s_nt = 28, 29, 30, 31, 32, 33, 34, 35, 36, 37, 38
    Lend = k.label('end'); Lconv = k.label('conv'); L4 = k.label('nt4')
    k("s_cmp_ge_u32 s2, 256"); k(f"s_cbranch_scc1 {Lend}")
    k(f"s_load_dwordx2 s[4:5], s[0:1], {KA['q']}")
    k(f"s_load_dwordx2 s[6:7], s[0:1], {KA['out']}")
    k(f"s_load_dwordx2 s[40:41], s[0:1], {KA['ws']}")
    k(f"s_load_dwordx4 s[48:51], s[0:1], {KA['ssmk']}")
    va = Alloc(1)
    vlane = va.get(); vn = va.get(); vg = va.get(); vt = va.get(); vt2 = va.get(); vl16 = va.get()
    k(f"v_lshrrev_b32 v{vt}, 6, v0"); k(f"v_and_b32 v{vlane}, 63, v0"); k(f"v_readfirstlane_b32 s{s_wave}, v{vt}")
    k(f"v_and_b32 v{vn}, 15, v{vlane}"); k(f"v_lshrrev_b32 v{vg}, 4, v{vlane}"); k(f"v_lshlrev_b32 v{vl16}, 4, v{vlane}")
    k(f"s_and_b32 s{s_tmp}, s2, 3"); k(f"s_lshl_b32 s{s_tmp}, s{s_tmp}, 3")
    k(f"s_bfe_u32 s{s_tb}, s2, 0x30003"); k(f"s_add_u32 s{s_tb}, s{s_tb}, s{s_tmp}")
    k(f"s_bfe_u32 s{s_tmp}, s2, 0x10002"); k(f"s_lshl_b32 s{s_tmp}, s{s_tmp}, 2")
    k(f"s_lshr_b32 s{s_db}, s2, 6"); k(f"s_add_u32 s{s_db}, s{s_db}, s{s_tmp}")
    k(f"s_lshr_b32 s{s_tmp}, s{s_db}, 1"); k(f"s_mul_i32 s{s_dt0}, s{s_tmp}, 9")
    k(f"s_and_b32 s{s_t2}, s{s_db}, 1"); k(f"s_mul_i32 s{s_tmp}, s{s_t2}, 5"); k(f"s_add_u32 s{s_dt0}, s{s_dt0}, s{s_tmp}")
    k(f"s_lshl_b32 s{s_d0}, s{s_dt0}, 4")
    k(f"s_lshl_b32 s{s_t0}, s{s_tb}, 6")
    st = Stamps(k, 'stamp' in opts, s_wave, span=(3 if 'span' in opts else None))
    if 'span' in opts: k.check = False
    for i_ in range(7): st(i_)
    k("s_waitcnt lgkmcnt(0)")
    srd(k, sWS, 40, 41, WS_STAT, 0x200000)
    srd(k, sY, 40, 41, WS_YT, 576 * 4096)
    save = va.n
    k(f"s_cmp_ge_u32 s{s_wave}, 4"); k(f"s_cbranch_scc1 {Lconv}")

    srd(k, sP, 40, 41, WS_P, 2048 * 2304 * 2)
    srd(k, sWF, 40, 41, WS_WOT, 2304 * 1152)
    srd(k, sX, 4, 5, 0, 2048 * 1152)
    srd(k, sO, 6, 7, 0, 2048 * 1152)
    vP = [va.get() for _ in range(4)]; vW = [va.get() for _ in range(5)]
    vst = va.get(2, 2)
    acc = va.get(80, 4)
    buf = va.get(144, 4)
    k(f"s_lshr_b32 s{s_nt}, s{s_wave}, 1"); k(f"s_lshl_b32 s{s_nt}, s{s_nt}, 5"); k(f"s_and_b32 s{s_tmp}, s{s_wave}, 1"); k(f"s_lshl_b32 s{s_tmp}, s{s_tmp}, 2")
    k(f"s_add_u32 s{s_nt}, s{s_nt}, s{s_tmp}"); k(f"s_add_u32 s{s_nt}, s{s_nt}, s{s_t0}")
    k(f"s_mul_i32 s{s_k}, s{s_wave}, {18 * 1024}")
    k(f"s_mul_i32 s{s_tmp}, s{s_tb}, {4 * 73728}")
    for j in range(4):
        k(f"v_add_u32 v{vP[j]}, s{s_tmp}, v{vl16}")
        if j < 3: k(f"s_add_u32 s{s_tmp}, s{s_tmp}, 73728")
    k(f"s_mul_i32 s{s_tmp}, s{s_dt0}, 73728")
    for j in range(5):
        k(f"v_add_u32 v{vW[j]}, s{s_tmp}, v{vl16}")
        if j < 4: k(f"s_add_u32 s{s_tmp}, s{s_tmp}, 73728")
    if FUSED and 'nobar' not in opts: k("s_barrier")
    k(f"s_cmp_eq_u32 s{s_t2}, 1"); k(f"s_cbranch_scc1 {L4}")

    def gemm(NT):
        NL = 4 + NT
        def loads(slot, blk):
            L = []
            for j in range(max(4, NT)):
                if j < NT: L.append(f"buffer_load_dwordx4 {v(buf + slot * 36 + 16 + 4 * j, 4)}, v{vW[j]}, s[{sWF}:{sWF+3}], s{s_k} offen offset:{1024 * blk}")
                if j < 4: L.append(f"buffer_load_dwordx4 {v(buf + slot * 36 + 4 * j, 4)}, v{vP[j]}, s[{sP}:{sP+3}], s{s_k} offen offset:{1024 * blk}")
            return L
        for sl in range(3):
            for x in loads(sl, sl): k(x)
        W16 = 2 * NT
        k(f"s_mov_b32 s52, {65536 // 10 + 1}")
        for j in range(3):
            k(f"v_add_u32 v{vt}, {64 * j}, v{vlane}")
            k(f"v_mul_lo_u32 v{vt2}, v{vt}, s52")
            k(f"v_lshrrev_b32 v{vt2}, 16, v{vt2}")
            k(f"v_mul_u32_u24 v{acc}, 10, v{vt2}")
            k(f"v_sub_u32 v{acc}, v{vt}, v{acc}")
            k(f"v_and_b32 v{acc + 1}, 12, v{vt2}")
            k(f"v_add_u32 v{vt2}, v{vt2}, v{acc + 1}")
            k(f"v_mul_u32_u24 v{vt2}, 1152, v{vt2}")
            k(f"v_lshl_add_u32 v{vt2}, v{acc}, 4, v{vt2}")
            k(f"v_cmp_gt_u32 vcc, {W16}, v{acc}")
            k(f"v_mov_b32 v{acc + 1}, {OOB}")
            k(f"v_cndmask_b32 v{vt2}, v{acc + 1}, v{vt2}, vcc")
            k(f"s_mov_b32 s{s_tmp}, s{s_nt}")
            k(f"s_mul_i32 s{s_tmp}, s{s_tmp}, 1152"); k(f"s_lshl_b32 s53, s{s_d0}, 1"); k(f"s_add_u32 s{s_tmp}, s{s_tmp}, s53")
            k(f"s_mul_i32 s53, s{s_wave}, 2560"); k(f"s_add_u32 m0, s53, {XT + 1024 * j}")
            if j == 2: k("s_mov_b32 exec_hi, 0")
            k(f"buffer_load_dwordx4 v{vt2}, s[{sX}:{sX+3}], s{s_tmp} offen lds")
            if j == 2: k("s_mov_b32 exec_hi, -1")
        k(f"s_mov_b32 s{s_tmp}, s{s_nt}")
        k(f"s_lshl_b32 s{s_tmp}, s{s_tmp}, 3"); k(f"s_add_u32 s{s_tmp}, s{s_tmp}, {XSTAT - WS_STAT}")
        k(f"v_and_b32 v{vt}, 12, v{vn}"); k(f"v_add_u32 v{vt}, v{vt}, v{vn}")
        k(f"v_lshlrev_b32 v{vt}, 3, v{vt}")
        k(f"buffer_load_dwordx2 {v(vst, 2)}, v{vt}, s[{sWS}:{sWS+3}], s{s_tmp} offen")
        for i in range(16 * NT): k(f"v_mov_b32 v{acc + i}, 0")
        k(f"s_mov_b32 s{s_cnt}, 0")
        def block(i, imm, extra=0, do_load=True):
            sl = i % 4
            k(f"s_waitcnt vmcnt({2 * NL + extra})")
            nl = loads((i + 3) % 4, imm) if do_load else []
            mf = [(dl, tl) for dl in range(NT) for tl in range(4)]
            for mi, (dl, tl) in enumerate(mf):
                if mi < len(nl): k(nl[mi])
                C = v(acc + (tl * NT + dl) * 4, 4)
                k(f"v_mfma_f32_16x16x32_bf16 {C}, {v(buf + sl * 36 + 16 + 4 * dl, 4)}, {v(buf + sl * 36 + 4 * tl, 4)}, {C}")
        block(0, 3, 4)
        st(2)
        k(f"s_add_u32 s{s_k}, s{s_k}, 4096")
        block(1, 0, 4)
        block(2, 1, 4)
        L = k.label('gloop')
        k(f"{L}:")
        block(3, 2); block(4, 3)
        k(f"s_add_u32 s{s_k}, s{s_k}, 4096")
        block(5, 0); block(6, 1)
        k(f"s_add_u32 s{s_cnt}, s{s_cnt}, 1")
        k(f"s_cmp_lt_u32 s{s_cnt}, 3")
        k(f"s_cbranch_scc1 {L}")
        for i, w_ in ((15, 2 * NL), (16, NL), (17, 0)):
            k(f"s_waitcnt vmcnt({w_})")
            sl = i % 4
            for dl in range(NT):
                for tl in range(4):
                    C = v(acc + (tl * NT + dl) * 4, 4)
                    k(f"v_mfma_f32_16x16x32_bf16 {C}, {v(buf + sl * 36 + 16 + 4 * dl, 4)}, {v(buf + sl * 36 + 4 * tl, 4)}, {C}")
        st(3)
        k("s_waitcnt vmcnt(0)")
        k("s_barrier")
        k(f"s_mul_i32 s{s_tmp}, s{s_wave}, 20480")
        k(f"v_add_u32 v{vt}, s{s_tmp}, v{vl16}")
        for i in range(4 * NT):
            if i == 14: k("s_waitcnt lgkmcnt(6)")
            tl, dl = divmod(i, NT)
            k(f"ds_write_b128 v{vt}, {v(acc + 4 * i, 4)} offset:{(tl * 5 + dl) * 1024}")
        if FUSED:
            Lp = k.label('poll')
            k(f"s_lshl_b32 s{s_tmp}, s{s_dt0}, 8"); k(f"s_add_u32 s{s_tmp}, s{s_tmp}, {CY - WS_STAT}")
            k(f"v_lshlrev_b32 v{vt2}, 8, v{vlane}")
            k(f"v_mov_b32 v{buf}, {OOB}")
            k(f"v_cmp_gt_u32 vcc, {NT}, v{vlane}")
            k(f"v_cndmask_b32 v{vt2}, v{buf}, v{vt2}, vcc")
            k(f"{Lp}:")
            k(f"buffer_load_dword v{buf}, v{vt2}, s[{sWS}:{sWS+3}], s{s_tmp} offen sc1")
            k("s_waitcnt vmcnt(0)")
            k(f"v_cmp_gt_u32 vcc, 16, v{buf}")
            k(f"s_and_b32 s53, vcc_lo, {(1 << NT) - 1}")
            k(f"s_cmp_lg_u32 s53, 0")
            k(f"s_cbranch_scc1 {Lp}")
        k(f"v_lshrrev_b32 v{vt2}, 2, v{vlane}")
        k(f"v_lshlrev_b32 v{buf}, 12, v{vt2}")
        k(f"v_and_b32 v{buf + 1}, 3, v{vlane}")
        k(f"v_lshl_add_u32 v{buf}, v{buf + 1}, 4, v{buf}")
        k(f"s_lshl_b32 s{s_tmp}, s{s_d0}, 12")
        k(f"s_lshr_b32 s53, s{s_wave}, 1"); k(f"s_lshl_b32 s53, s53, 6"); k(f"s_add_u32 s{s_tmp}, s{s_tmp}, s53")
        k(f"s_lshl_b32 s53, s{s_t0}, 1"); k(f"s_add_u32 s{s_tmp}, s{s_tmp}, s53")
        for j in range(NT):
            k(f"buffer_load_dwordx4 {v(buf + 4 + 4 * j, 4)}, v{buf}, s[{sY}:{sY+3}], s{s_tmp} offen sc1")
            if j + 1 < NT: k(f"s_add_u32 s{s_tmp}, s{s_tmp}, {16 * 4096}")
        k(f"s_mul_i32 s54, s{s_wave}, 5120")
        k(f"s_mul_i32 s53, s{s_wave}, 2560")
        k(f"v_add_u32 v{vt2}, s54, v{vl16}")
        k(f"v_add_u32 v{vt2}, {YT}, v{vt2}")
        k("s_waitcnt lgkmcnt(0)")
        for j in range(NT):
            k(f"s_waitcnt vmcnt({NT - 1 - j})")
            k(f"ds_write_b128 v{vt2}, {v(buf + 4 + 4 * j, 4)} offset:{1024 * j}")
        k("s_waitcnt lgkmcnt(0)")
        k("s_barrier")
        st(4)
        X = buf; Y = buf + 4; O = buf + 8; T = buf + 12; S = buf + 16; rd_ = buf + 24
        k(f"s_mul_i32 s{s_tmp}, s{s_wave}, 5120")
        k(f"v_add_u32 v{vt}, s{s_tmp}, v{vl16}")
        k(f"v_add_u32 v{vP[1]}, 61440, v{vt}")
        k(f"v_lshrrev_b32 v{vt2}, 2, v{vn}")
        k(f"v_lshl_add_u32 v{vt2}, v{vg}, 2, v{vt2}")
        k(f"v_lshlrev_b32 v{vt2}, 6, v{vt2}")
        k(f"v_and_b32 v{T}, 3, v{vn}")
        k(f"v_lshl_add_u32 v{vt2}, v{T}, 4, v{vt2}")
        k(f"s_and_b32 s55, s{s_wave}, 1"); k(f"s_lshl_b32 s55, s55, 3"); k(f"s_add_u32 s54, s54, s55")
        k(f"v_add_u32 v{vt2}, s54, v{vt2}")
        k(f"v_add_u32 v{vW[1]}, {YT}, v{vt2}")
        vx = vW[2]
        k(f"v_mul_u32_u24 v{vx}, 160, v{vn}")
        k(f"v_lshl_add_u32 v{vx}, v{vg}, 3, v{vx}")
        k(f"v_add_u32 v{vx}, s53, v{vx}")
        k(f"v_add_u32 v{vx}, {XT}, v{vx}")
        k(f"s_mov_b32 s52, {hex(f2u(-LOG2E))}")
        for dl in range(NT):
            for w in range(4):
                k(f"ds_read_b128 {v(rd_ + 4 * w, 4)}, v{vt if w < 3 else vP[1]} offset:{(w % 3) * 20480 + dl * 1024}")
            k(f"ds_read_b64_tr_b16 {v(S, 2)}, v{vW[1]} offset:{dl * 1024}")
            k(f"ds_read_b64 {v(S + 2, 2)}, v{vW[2]} offset:{dl * 32}")
            k("s_waitcnt lgkmcnt(0)")
            for r in range(4): k(f"v_add_f32 v{O + r}, v{rd_ + r}, v{rd_ + 4 + r}")
            for r in range(4): k(f"v_add_f32 v{T + r}, v{rd_ + 8 + r}, v{rd_ + 12 + r}")
            for r in range(4): k(f"v_add_f32 v{O + r}, v{O + r}, v{T + r}")
            OL = [O + r for r in range(4)]; TL = [T + r for r in range(4)]
            XL = [X + r for r in range(4)]; YL = [Y + r for r in range(4)]
            rnd_n(k, OL, TL)
            for r in range(4): k(f"v_mul_f32 v{T + r}, s52, v{O + r}")
            for r in range(4): k(f"v_exp_f32 v{T + r}, v{T + r}")
            for j in range(2):
                k(f"v_lshlrev_b32 v{Y + 2 * j}, 16, v{S + j}"); k(f"v_and_b32 v{Y + 2 * j + 1}, 0xffff0000, v{S + j}")
                k(f"v_lshlrev_b32 v{X + 2 * j}, 16, v{S + 2 + j}"); k(f"v_and_b32 v{X + 2 * j + 1}, 0xffff0000, v{S + 2 + j}")
            for r in range(4): k(f"v_add_f32 v{T + r}, 1.0, v{T + r}")
            for r in range(4): k(f"v_rcp_f32 v{T + r}, v{T + r}")
            XN = [rd_ + r for r in range(4)]; T2 = [rd_ + 4 + r for r in range(4)]
            for r in range(4): k(f"v_sub_f32 v{XN[r]}, v{X + r}, v{vst}")
            for r in range(4): k(f"v_mul_f32 v{O + r}, v{O + r}, v{T + r}")
            rnd_n(k, XN, T2)
            rnd_n(k, OL, TL)
            for r in range(4): k(f"v_mul_f32 v{XN[r]}, v{XN[r]}, v{vst + 1}")
            rnd_n(k, XN, T2)
            for r in range(4): k(f"v_mul_f32 v{XN[r]}, v{XN[r]}, v{Y + r}")
            rnd_n(k, XN, T2)
            for r in range(4): k(f"v_mul_f32 v{XN[r]}, v{XN[r]}, v{O + r}")
            rnd_n(k, XN, T2)
            for r in range(4): k(f"v_add_f32 v{XN[r]}, v{XN[r]}, v{X + r}")
            k(f"v_cvt_pk_bf16_f32 v{S + 4}, v{XN[0]}, v{XN[1]}")
            k(f"v_cvt_pk_bf16_f32 v{S + 5}, v{XN[2]}, v{XN[3]}")
            k(f"ds_write_b64 v{vW[2]}, {v(S + 4, 2)} offset:{dl * 32}")
        k("s_waitcnt lgkmcnt(0)")
        st(5)
        k(f"s_mov_b32 s52, {65536 // 10 + 1}")
        k(f"s_mov_b32 s{s_tmp}, s{s_nt}")
        k(f"s_mul_i32 s{s_tmp}, s{s_tmp}, 1152"); k(f"s_lshl_b32 s{s_k}, s{s_d0}, 1"); k(f"s_add_u32 s{s_tmp}, s{s_tmp}, s{s_k}")
        k(f"v_add_u32 v{vW[3]}, s53, v{vl16}")
        k(f"v_add_u32 v{vW[3]}, {XT}, v{vW[3]}")
        for j in range(3):
            k(f"ds_read_b128 {v(rd_ + 4 * j, 4)}, v{vW[3]} offset:{1024 * j}")
        for j in range(3):
            k(f"v_add_u32 v{vt}, {64 * j}, v{vlane}")
            k(f"v_mul_lo_u32 v{vt2}, v{vt}, s52")
            k(f"v_lshrrev_b32 v{vt2}, 16, v{vt2}")
            k(f"v_mul_u32_u24 v{T}, 10, v{vt2}")
            k(f"v_sub_u32 v{T}, v{vt}, v{T}")
            k(f"v_and_b32 v{T + 1}, 12, v{vt2}")
            k(f"v_add_u32 v{vt2}, v{vt2}, v{T + 1}")
            k(f"v_mul_u32_u24 v{vt2}, 1152, v{vt2}")
            k(f"v_lshl_add_u32 v{vt2}, v{T}, 4, v{vt2}")
            k(f"v_cmp_gt_u32 vcc, {W16}, v{T}")
            k(f"v_mov_b32 v{T + 1}, {OOB}")
            k(f"v_cndmask_b32 v{vt2}, v{T + 1}, v{vt2}, vcc")
            if j == 2:
                k(f"v_cmp_gt_u32 vcc, 32, v{vlane}")
                k(f"v_cndmask_b32 v{vt2}, v{T + 1}, v{vt2}, vcc")
            k(f"s_waitcnt lgkmcnt({2 - j})")
            k(f"buffer_store_dwordx4 {v(rd_ + 4 * j, 4)}, v{vt2}, s[{sO}:{sO+3}], s{s_tmp} offen")
        st(6)
        st.flush(Lend, vt)
        k("s_endpgm")
    k.gemm = gemm
    gemm(5)
    k(f"{L4}:")
    gemm(4)

    k(f"{Lconv}:")
    if FUSED:
        va.n = save
        k(f"s_sub_u32 s52, s{s_wave}, 4")
        k(f"s_lshl_b32 s53, s{s_tb}, 2"); k(f"s_lshr_b32 s{s_tmp}, s{s_db}, 1"); k(f"s_add_u32 s53, s53, s{s_tmp}")
        k(f"s_lshl_b32 s54, s53, 2"); k(f"s_add_u32 s54, s54, s52")
        k(f"s_add_u32 s55, s53, 512")
        k(f"s_cmp_lt_u32 s53, 64"); k(f"s_cselect_b32 s55, s55, 9999")
        k(f"s_cmp_eq_u32 s52, 0"); k(f"s_cselect_b32 s55, s55, 9999")
        k(f"s_cmp_eq_u32 s{s_t2}, 1"); k(f"s_cselect_b32 s54, s54, s55")
        k(f"s_cmp_ge_u32 s54, 576"); k(f"s_cbranch_scc1 {Lend}")
        srd(k, 56, 48, 49, 0, 576 * 4096)
        srd(k, 60, 40, 41, WS_KVT, 576 * 4096)
        srd(k, 64, 50, 51, 0, 1152)
        k(f"s_mul_i32 s55, s52, {CONV_LDS}")
        conv_wave(k, va, 54, 55, 56, 60, 64, sY, vlane, vn, vg, s_tmp, s_cnt, sc1=True, opts=opts, st=st)
        st(5)
        k("s_waitcnt vmcnt(0)")
        k(f"s_lshr_b32 s{s_tmp}, s54, 4"); k(f"s_lshl_b32 s{s_tmp}, s{s_tmp}, 8"); k(f"s_add_u32 s{s_tmp}, s{s_tmp}, {CY - WS_STAT}")
        k(f"v_mov_b32 v{vt}, s{s_tmp}"); k(f"v_mov_b32 v{vt2}, 1")
        k("s_mov_b64 exec, 1")
        k(f"buffer_atomic_add v{vt2}, v{vt}, s[{sWS}:{sWS+3}], 0 offen sc1")
        st.flush(Lend, vt)
    k(f"{Lend}:"); k("s_endpgm")
    k.lds = LDS
    return k
```

```python
from common import *
from k2 import getopt

CST = 4160
CONV_LDS = 4 * CST + 4608
def conv_wave(k, va, s_d, s_lb, sH, sU, sD, sY, vlane, vn, vg, s_tmp, s_cnt, sc1=False, opts=(), st=lambda i: None):
    UB = 4 * CST
    t = va.get(); t2 = va.get(); vA = va.get(); vB = va.get(); vd = va.get()
    acc = va.get(32, 4); fa = va.get(64, 4); fb = va.get(64, 4)
    k(f"v_lshlrev_b32 v{t}, 4, v{vlane}")
    k(f"s_lshl_b32 s{s_tmp}, s{s_d}, 12")
    k(f"s_add_u32 m0, s{s_lb}, {UB}")
    k("s_nop 0")
    for j in range(4):
        k(f"buffer_load_dwordx4 v{t}, s[{sU}:{sU+3}], s{s_tmp} offen offset:{1024 * j} lds")
    if "prio" in opts: k("s_setprio 1")
    for c in (0, 2):
        k(f"s_add_u32 m0, s{s_lb}, {c * CST + 32}")
        if c: k(f"s_add_u32 s{s_tmp}, s{s_tmp}, 4")
        else: k("s_nop 0")
        for j in range(4):
            k(f"buffer_load_dwordx4 v{t}, s[{sH}:{sH+3}], s{s_tmp} offen offset:{1024 * j} lds")
    k(f"s_lshl_b32 s{s_tmp}, s{s_d}, 1")
    k(f"v_mov_b32 v{t2}, s{s_tmp}")
    k(f"buffer_load_ushort v{vd}, v{t2}, s[{sD}:{sD+3}], 0 offen")
    st(2)
    if sc1 and 'nobar' not in opts: k("s_barrier")
    for i in range(32): k(f"v_mov_b32 v{acc + i}, 0")
    k(f"v_lshlrev_b32 v{t2}, 3, v{vlane}")
    k(f"v_add_u32 v{t2}, s{s_lb}, v{t2}")
    k(f"ds_write_b64 v{t2}, {v(acc, 2)} offset:{UB + 4096}")
    k(f"v_bfe_u32 v{t2}, v{vlane}, 2, 2")
    k(f"v_mul_u32_u24 v{t2}, {CST}, v{t2}")
    k(f"v_and_b32 v{t}, 3, v{vlane}")
    k(f"v_lshl_add_u32 v{t2}, v{t}, 3, v{t2}")
    k(f"v_add_u32 v{t2}, s{s_lb}, v{t2}")
    k(f"ds_write_b64 v{t2}, {v(acc, 2)}")
    k(f"v_lshl_add_u32 v{t2}, v{vg}, 3, v{vn}")
    k(f"v_add_u32 v{t2}, 1, v{t2}")
    k(f"v_and_b32 v{vA}, 3, v{t2}")
    k(f"v_mul_u32_u24 v{vA}, {CST}, v{vA}")
    k(f"v_lshrrev_b32 v{t2}, 2, v{t2}")
    k(f"v_lshl_add_u32 v{vA}, v{t2}, 3, v{vA}")
    k(f"v_add_u32 v{vA}, s{s_lb}, v{vA}")
    k(f"v_lshlrev_b32 v{vB}, 5, v{vn}")
    k(f"v_lshlrev_b32 v{t2}, 4, v{vg}")
    k(f"v_sub_u32 v{vB}, v{t2}, v{vB}")
    k(f"s_add_u32 s{s_tmp}, s{s_lb}, {UB + 4064 - 3584}")
    k(f"v_add_u32 v{vB}, s{s_tmp}, v{vB}")
    k(f"v_mov_b32 v{t}, s{s_lb}")
    k(f"v_lshlrev_b32 v{t2}, 4, v{vlane}")
    k(f"v_add_u32 v{t2}, s{s_lb}, v{t2}")
    k("s_waitcnt vmcnt(0) lgkmcnt(0)")
    st(3)
    k(f"ds_read_b32 v{fa}, v{t} offset:32")
    k("s_waitcnt lgkmcnt(0)")
    k(f"ds_write_b32 v{t}, v{fa} offset:{2 * CST + 28}")
    k("s_waitcnt lgkmcnt(0)")
    for c in (0, 2):
        for j in range(5):
            r = fa + 8 * j
            k(f"ds_read_b128 {v(r, 4)}, v{t2} offset:{c * CST + 1024 * j}")
            k(f"ds_read_b32 v{r + 4}, v{t2} offset:{c * CST + 1024 * j + 16}")
        for j in range(5):
            r = fa + 8 * j
            k(f"s_waitcnt lgkmcnt({2 * (4 - j) + (j if False else 0)})") if j < 5 else None
            for e in range(4):
                k(f"v_alignbit_b32 v{fb + 4 * j + e}, v{r + e + 1}, v{r + e}, 16")
        k("s_waitcnt lgkmcnt(0)")
        for j in range(4):
            k(f"ds_write_b128 v{t2}, {v(fb + 4 * j, 4)} offset:{(c + 1) * CST + 1024 * j}")
        k("s_mov_b64 exec, 15")
        k(f"ds_write_b128 v{t2}, {v(fb + 16, 4)} offset:{(c + 1) * CST + 4096}")
        k("s_mov_b64 exec, -1")
    k("s_waitcnt lgkmcnt(0)")
    def reads(buf, off):
        L = []
        for i in range(8):
            L.append(f"ds_read_b128 {v(fb + buf * 32 + 4 * i, 4)}, v{vB} offset:{512 * (7 - i) + off}")
            L.append(f"ds_read_b64 {v(fa + buf * 32 + 4 * i, 2)}, v{vA} offset:{512 * i + off}")
            L.append(f"ds_read_b64 {v(fa + buf * 32 + 4 * i + 2, 2)}, v{vA} offset:{512 * i + off + 8}")
        return L
    order = sorted([(q, p) for q in range(8) for p in range(8) if q + p <= 7], key=lambda x: (max(x), x[0] + x[1]))
    PRE = 12
    first = reads(0, 0)
    for x in first[:PRE]: k(x)
    k(f"s_mov_b32 s{s_cnt}, 0")
    L = k.label('cloop')
    k(f"{L}:")
    for half in range(2):
        stream = reads(half, 64 * half)[PRE:] + reads(1 - half, 64 * (half + 1))[:PRE]
        issued = PRE; got = 0
        for mi, (q, p) in enumerate(order):
            needn = 3 * max(q, p) + 3
            while issued < needn:
                if issued - got >= 15:
                    k(f"s_waitcnt lgkmcnt(13)"); got = issued - 13
                k(stream[issued - PRE]); issued += 1
            if needn > got:
                k(f"s_waitcnt lgkmcnt({issued - needn})")
                got = needn
            C = v(acc + 4 * (q + p), 4)
            k(f"v_mfma_f32_16x16x32_bf16 {C}, {v(fa + half * 32 + 4 * q, 4)}, {v(fb + half * 32 + 4 * p, 4)}, {C}")
            n = 2 if issued < 24 else 1
            for _ in range(n):
                if issued < 24 + PRE and issued - got < 14:
                    k(stream[issued - PRE]); issued += 1
        while issued < 24 + PRE:
            k(stream[issued - PRE]); issued += 1
    k(f"v_add_u32 v{vA}, 128, v{vA}")
    k(f"v_add_u32 v{vB}, 128, v{vB}")
    k(f"s_add_u32 s{s_cnt}, s{s_cnt}, 1")
    k(f"s_cmp_lt_u32 s{s_cnt}, 4")
    k(f"s_cbranch_scc1 {L}")
    k("s_waitcnt lgkmcnt(0)")
    st(4)
    if sc1: k("s_setprio 3")
    k(f"v_lshlrev_b32 v{t}, 5, v{vn}")
    k(f"v_lshl_add_u32 v{t}, v{vg}, 3, v{t}")
    k(f"s_add_u32 s{s_tmp}, s{s_lb}, {UB + 4088 - 3584}")
    k(f"v_sub_u32 v{t2}, s{s_tmp}, v{t}")
    for nt in range(8):
        k(f"ds_read_b64 {v(fa + 2 * nt, 2)}, v{t2} offset:{512 * (7 - nt)}")
    k(f"v_lshlrev_b32 v{vd}, 16, v{vd}")
    k(f"v_add_u32 v{vA}, s{s_lb}, v{t}")
    k(f"s_lshl_b32 s{s_tmp}, s{s_d}, 12")
    k("s_waitcnt lgkmcnt(0)")
    for nt in range(8):
        Y = [acc + 4 * nt + r for r in range(4)]
        U = [fb + 4 * (nt % 2) + r for r in range(4)]
        T = fb + 8 + 2 * (nt % 2)
        k(f"v_and_b32 v{U[0]}, 0xffff0000, v{fa + 2 * nt + 1}")
        k(f"v_lshlrev_b32 v{U[1]}, 16, v{fa + 2 * nt + 1}")
        k(f"v_and_b32 v{U[2]}, 0xffff0000, v{fa + 2 * nt}")
        k(f"v_lshlrev_b32 v{U[3]}, 16, v{fa + 2 * nt}")
        for r in range(4): k(f"v_mul_f32 v{U[r]}, v{U[r]}, v{vd}")
        rnd2(k, U[0], U[1], T); rnd2(k, U[2], U[3], T + 1)
        rnd2(k, Y[0], Y[1], T); rnd2(k, Y[2], Y[3], T + 1)
        for r in range(4): k(f"v_add_f32 v{Y[r]}, v{Y[r]}, v{U[r]}")
        k(f"v_cvt_pk_bf16_f32 v{fb + 16 + 2 * nt}, v{Y[0]}, v{Y[1]}")
        k(f"v_cvt_pk_bf16_f32 v{fb + 17 + 2 * nt}, v{Y[2]}, v{Y[3]}")
        k(f"ds_write_b64 v{vA}, {v(fb + 16 + 2 * nt, 2)} offset:{512 * nt}")
    k(f"v_lshlrev_b32 v{t}, 4, v{vlane}")
    k(f"v_add_u32 v{t2}, s{s_lb}, v{t}")
    k("s_waitcnt lgkmcnt(0)")
    for j in range(4):
        k(f"ds_read_b128 {v(fa + 32 + 4 * j, 4)}, v{t2} offset:{1024 * j}")
    for j in range(4):
        k(f"s_waitcnt lgkmcnt({3 - j})")
        k(f"buffer_store_dwordx4 {v(fa + 32 + 4 * j, 4)}, v{t}, s[{sY}:{sY+3}], s{s_tmp} offen offset:{1024 * j}{' sc1' if sc1 else ''}")

def gen_kc(name="kc_kernel", opts=()):
    k = Kernel(name)
    Lend = k.label('end')
    k("s_cmp_ge_u32 s2, 144"); k(f"s_cbranch_scc1 {Lend}")
    k(f"s_load_dwordx4 s[4:7], s[0:1], {KA['ssmk']}")
    k(f"s_load_dwordx2 s[44:45], s[0:1], {KA['ws']}")
    va = Alloc(1)
    vlane = va.get(); vn = va.get(); vg = va.get(); vt = va.get()
    k(f"v_lshrrev_b32 v{vt}, 6, v0"); k(f"v_and_b32 v{vlane}, 63, v0"); k(f"v_readfirstlane_b32 s30, v{vt}")
    k(f"v_and_b32 v{vn}, 15, v{vlane}"); k(f"v_lshrrev_b32 v{vg}, 4, v{vlane}")
    st = Stamps(k, 'stamp' in opts, 30)
    for i_ in range(7): st(i_)
    k("s_waitcnt lgkmcnt(0)")
    srd(k, 8, 4, 5, 0, 576 * 4096)
    srd(k, 12, 44, 45, WS_KVT, 576 * 4096)
    srd(k, 16, 6, 7, 0, 1152)
    srd(k, 20, 44, 45, WS_YT, 576 * 4096)
    k("s_lshl_b32 s31, s2, 2"); k("s_add_u32 s31, s31, s30")
    k(f"s_mul_i32 s32, s30, {CONV_LDS}")
    conv_wave(k, va, 31, 32, 8, 12, 16, 20, vlane, vn, vg, 36, 37, opts=opts, st=st)
    st.flush(Lend, 2)
    k(f"{Lend}:"); k("s_endpgm")
    k.lds = 4 * CONV_LDS
    if 'stamp' in opts: k.check = False
    return k

if __name__ == "__main__":
    import sys
    from k0 import gen_k0
    k0 = gen_k0(); kc = gen_kc(opts=sys.argv[2:])
    build_file(["; k0+kc test"], [(k0, 288, 256, k0.lds), (kc, 144, 256, kc.lds)], [k0, kc], sys.argv[1])
```

```python
from common import *
OOB = 0x7ff00000

def kv_job(k, Q, base, s_tile, sK, sV, sSH, sKV, vlane, LB, S, s_wq):
    va = Alloc(base, 168)
    s_tmp, s_t2, sa_ = S[0], S[1], S[2]
    t = va.get(); t2 = va.get(); vrow = va.get(); vch = va.get(); voff = va.get(); voob = va.get()
    kk = va.get(60, 4); w = va.get(32, 4)
    acc_ = va.get(8, 4); pr = va.get(8, 4); tp = va.get(4, 4)
    k(f"s_lshr_b32 s{s_tmp}, s{s_tile}, 3"); k(f"s_lshl_b32 s{s_tmp}, s{s_tmp}, 6")
    k(f"s_and_b32 s{s_t2}, s{s_tile}, 7"); k(f"s_mul_i32 s{s_t2}, s{s_t2}, 72")
    k(f"v_mul_u32_u24 v{vrow}, 7282, v{vlane}")
    k(f"v_lshrrev_b32 v{vrow}, 16, v{vrow}")
    k(f"v_mul_u32_u24 v{vch}, 9, v{vrow}")
    k(f"v_sub_u32 v{vch}, v{vlane}, v{vch}")
    k(f"s_mul_i32 s{sa_}, s{s_wq}, 7")
    k(f"v_add_u32 v{vrow}, s{sa_}, v{vrow}")
    k(f"v_cmp_eq_u32 vcc, 63, v{vlane}")
    k(f"v_cndmask_b32 v{vrow}, v{vrow}, 64, vcc")
    k(f"v_add_u32 v{t}, s{s_tmp}, v{vrow}")
    k(f"v_mul_u32_u24 v{voff}, 1152, v{t}")
    k(f"v_lshl_add_u32 v{voff}, v{vch}, 4, v{voff}")
    k(f"s_lshl_b32 s{sa_}, s{s_t2}, 1")
    k(f"v_add_u32 v{voff}, s{sa_}, v{voff}")
    k(f"v_mov_b32 v{voob}, {OOB}")
    k(f"v_lshlrev_b32 v{t2}, 6, v{vch}")
    k(f"s_lshl_b32 s{sa_}, s{s_t2}, 3")
    for j in range(4):
        Q(f"buffer_load_dwordx4 {v(w + 16 + 4 * j, 4)}, v{t2}, s[{sSH}:{sSH+3}], s{sa_} offen offset:{16 * j}", "kv")
    for it in range(3):
        k(f"s_mov_b32 s{sa_}, {it * 28 * 1152}")
        k(f"v_cmp_gt_u32 vcc, {64 - 28 * it}, v{vrow}")
        k(f"v_cndmask_b32 v{acc_}, v{voob}, v{voff}, vcc")
        Q(f"buffer_load_dwordx4 {v(kk + it * 20 + 16, 4)}, v{acc_}, s[{sV}:{sV+3}], s{sa_} offen", "kv")
    k(f"s_mul_i32 s{sa_}, s{s_tmp}, 1152"); k(f"s_lshl_b32 s{S[3]}, s{s_t2}, 1"); k(f"s_add_u32 s{sa_}, s{sa_}, s{S[3]}")
    k(f"s_cmp_eq_u32 s{s_tmp}, 0"); k(f"s_cselect_b32 s{S[3]}, 27, 0")
    for j in range(3):
        k(f"s_mul_i32 s{S[4]}, s{s_wq}, 192"); k(f"s_add_u32 s{S[4]}, s{S[4]}, {64 * j}")
        k(f"v_add_u32 v{t}, s{S[4]}, v{vlane}")
        k(f"v_mul_u32_u24 v{t2}, 7282, v{t}")
        k(f"v_lshrrev_b32 v{t2}, 16, v{t2}")
        k(f"v_mul_u32_u24 v{pr}, 9, v{t2}")
        k(f"v_sub_u32 v{pr}, v{t}, v{pr}")
        k(f"v_mul_u32_u24 v{t2}, 1152, v{t2}")
        k(f"v_lshl_add_u32 v{t2}, v{pr}, 4, v{t2}")
        k(f"v_cmp_gt_u32 vcc, s{S[3]}, v{t}")
        k(f"v_cndmask_b32 v{t2}, v{t2}, v{voob}, vcc")
        k(f"v_cmp_lt_u32 vcc, 602, v{t}")
        k(f"v_cndmask_b32 v{t2}, v{t2}, v{voob}, vcc")
        k(f"s_lshl_b32 s{S[4]}, s{S[4]}, 4"); k(f"s_add_u32 m0, s{S[4]}, {LB}")
        Q(f"buffer_load_dwordx4 v{t2}, s[{sK}:{sK+3}], s{sa_} offen lds", "kv")
    yield 'L'
    yield 'L'
    Q.wait("kv")
    yield 'B'
    k(f"v_min_u32 v{t}, 63, v{vrow}")
    k(f"v_mul_u32_u24 v{t2}, 144, v{t}")
    k(f"v_lshl_add_u32 v{t2}, v{vch}, 4, v{t2}")
    k(f"v_add_u32 v{t2}, {LB}, v{t2}")
    for it in range(3):
        for j in range(4):
            k(f"ds_read_b128 {v(kk + it * 20 + 4 * j, 4)}, v{t2} offset:{(28 * it + 3 - j) * 144}")
    k("s_waitcnt lgkmcnt(0)")
    yield 'B'
    for e in range(8):
        k(f"v_mov_b32 v{pr + e}, v{w + 16 + 2 * e}"); k(f"v_mov_b32 v{acc_ + e}, v{w + 17 + 2 * e}")
    for j in range(4):
        for e in range(8):
            src_ = (pr if j < 2 else acc_) + e
            d_ = w + 8 * j + e
            if j % 2 == 0:
                k(f"v_and_b32 v{d_}, 0xffff, v{src_}" if e % 2 == 0 else f"v_lshlrev_b32 v{d_}, 16, v{src_}")
            else:
                k(f"v_lshrrev_b32 v{d_}, 16, v{src_}" if e % 2 == 0 else f"v_and_b32 v{d_}, 0xffff0000, v{src_}")
    k(f"s_mov_b32 s{S[3]}, 0x3f803f80")
    k(f"v_lshlrev_b32 v{voff}, 4, v{vch}")
    k(f"v_add_u32 v{voff}, {LB}, v{voff}")
    for it in range(3):
        K_ = kk + it * 20
        for e in range(8): k(f"v_dot2_f32_bf16 v{acc_ + e}, v{K_ + 12 + e // 2}, v{w + 24 + e}, 0")
        for j in (2, 1, 0):
            for e in range(8): k(f"v_dot2_f32_bf16 v{pr + e}, v{K_ + 4 * j + e // 2}, v{w + 8 * j + e}, 0")
            for e in range(8): k(f"v_cvt_pk_bf16_f32 v{pr + e}, v{pr + e}, v{acc_ + e}")
            for e in range(8): k(f"v_dot2_f32_bf16 v{acc_ + e}, v{pr + e}, s{S[3]}, 0")
        for c in range(4):
            k(f"v_and_b32 v{pr + 2 * c}, 0xffff, v{K_ + 16 + c}")
            k(f"v_and_b32 v{pr + 2 * c + 1}, 0xffff0000, v{K_ + 16 + c}")
        for c in range(4): k(f"v_cvt_pk_bf16_f32 v{tp + c}, v{acc_ + 2 * c}, v{acc_ + 2 * c + 1}")
        for e in range(8): k(f"v_dot2_f32_bf16 v{acc_ + e}, v{tp + e // 2}, v{pr + e}, 0")
        k(f"v_sub_u32 v{t}, {63 - 28 * it}, v{vrow}")
        k(f"v_cmp_gt_u32 vcc, {64 - 28 * it}, v{vrow}")
        k(f"v_cndmask_b32 v{t}, 64, v{t}, vcc")
        k(f"v_mul_u32_u24 v{t}, 144, v{t}")
        k(f"v_add_u32 v{t2}, v{t}, v{voff}")
        for c in range(4): k(f"v_cvt_pk_bf16_f32 v{K_ + c}, v{acc_ + 2 * c}, v{acc_ + 2 * c + 1}")
        k(f"ds_write_b128 v{t2}, {v(K_, 4)}")
    k("s_waitcnt lgkmcnt(0)")
    yield 'B'
    k(f"v_and_b32 v{vch}, 15, v{vlane}"); k(f"v_lshrrev_b32 v{vrow}, 4, v{vlane}")
    k(f"v_lshrrev_b32 v{t}, 2, v{vch}")
    k(f"v_lshl_add_u32 v{t}, v{vrow}, 3, v{t}")
    k(f"v_mul_u32_u24 v{t}, 144, v{t}")
    k(f"v_and_b32 v{t2}, 3, v{vch}")
    k(f"v_lshl_add_u32 v{t}, v{t2}, 3, v{t}")
    k(f"s_and_b32 s{sa_}, s{s_wq}, 1"); k(f"s_mul_i32 s{S[3]}, s{sa_}, {32 * 144}")
    k(f"s_lshr_b32 s{S[4]}, s{s_wq}, 1"); k(f"s_lshl_b32 s{S[4]}, s{S[4]}, 5"); k(f"s_add_u32 s{S[3]}, s{S[3]}, s{S[4]}")
    k(f"s_add_u32 s{S[3]}, s{S[3]}, {LB}")
    k(f"v_add_u32 v{t}, s{S[3]}, v{t}")
    for j in range(3):
        k(f"ds_read_b64_tr_b16 {v(kk + 4 * j, 2)}, v{t} offset:{64 * j}")
        k(f"ds_read_b64_tr_b16 {v(kk + 4 * j + 2, 2)}, v{t} offset:{64 * j + 4 * 144}")
    k(f"s_lshr_b32 s{S[4]}, s{S[4]}, 1")
    k(f"v_add_u32 v{vch}, s{S[4]}, v{vch}")
    k(f"v_add_u32 v{t2}, s{s_t2}, v{vch}")
    k(f"v_lshlrev_b32 v{t2}, 12, v{t2}")
    k(f"v_lshl_add_u32 v{t2}, v{vrow}, 4, v{t2}")
    k(f"s_sub_u32 s{s_tmp}, 1984, s{s_tmp}"); k(f"s_lshl_b32 s{s_tmp}, s{s_tmp}, 1")
    k(f"s_lshl_b32 s{sa_}, s{sa_}, 6"); k(f"s_add_u32 s{s_tmp}, s{s_tmp}, s{sa_}")
    k(f"v_add_u32 v{t2}, s{s_tmp}, v{t2}")
    k(f"v_cmp_gt_u32 vcc, 8, v{vch}")
    k(f"v_cndmask_b32 v{t}, v{voob}, v{t2}, vcc")
    k(f"s_mov_b32 s{sa_}, {32 * 4096}")
    k(f"s_mov_b32 s{s_tmp}, {64 * 4096}")
    k("s_waitcnt lgkmcnt(0)")
    Q(f"buffer_store_dwordx4 {v(kk, 4)}, v{t2}, s[{sKV}:{sKV+3}], 0 offen", "st")
    Q(f"buffer_store_dwordx4 {v(kk + 4, 4)}, v{t2}, s[{sKV}:{sKV+3}], s{sa_} offen", "st")
    Q(f"buffer_store_dwordx4 {v(kk + 8, 4)}, v{t}, s[{sKV}:{sKV+3}], s{s_tmp} offen", "st")
    yield 'B'

class Rec:
    def __init__(self): self.ev = []
    def __call__(self, text): self.ev.append(('i', text))
class RecQ:
    def __init__(self, r): self.r = r
    def __call__(self, text, tag=None): self.r.ev.append(('q', text, tag))
    def wait(self, tag): self.r.ev.append(('w', tag))
def chunk(ev, N):
    out = [[]]; n = 0
    for i, e in enumerate(ev):
        if e[0] == 'brk':
            out.append([]); n = 0; continue
        prev = out[-1][-1] if out[-1] else None
        sticky = prev is not None and prev[0] == 'i' and (prev[1].startswith('v_cmp') or prev[1].startswith('s_cmp') or prev[1].startswith('s_cselect') or prev[1].startswith('ds_') or ' m0,' in prev[1])
        if n >= N and not sticky:
            out.append([]); n = 0
        out[-1].append(e); n += 1
    return out

def wo_loads(k, Q, base, s_tile, sWO, vlane, S, s_wq):
    va = Alloc(base, 168)
    s_kb, s_dq, a0, a1, a2, a3, a4, a5 = S
    t = va.get(); t2 = va.get(); t3 = va.get(); ld = va.get(12, 4); fr = va.get(12, 4)
    k(f"s_lshr_b32 s{s_kb}, s{s_tile}, 2")
    k(f"s_and_b32 s{s_dq}, s{s_tile}, 3")
    k(f"s_mul_i32 s{a0}, s{s_kb}, 7282")
    k(f"s_lshr_b32 s{a0}, s{a0}, 16")
    k(f"s_mul_i32 s{a1}, s{a0}, 9")
    k(f"s_sub_u32 s{a1}, s{s_kb}, s{a1}")
    k(f"s_lshr_b32 s{a2}, s{a1}, 2")
    k(f"s_lshl_b32 s{a3}, s{a0}, 1")
    k(f"s_add_u32 s{a2}, s{a2}, s{a3}")
    k(f"s_mul_i32 s{a2}, s{a2}, 144")
    k(f"s_and_b32 s{a4}, s{a1}, 3")
    k(f"s_lshl_b32 s{a4}, s{a4}, 5")
    k(f"s_add_u32 s{a2}, s{a2}, s{a4}")
    k(f"s_mul_i32 s{a3}, s{a3}, 144")
    k(f"s_add_u32 s{a3}, s{a3}, 128")
    k(f"s_cmp_eq_u32 s{a1}, 8")
    k(f"s_cselect_b32 s{a2}, s{a3}, s{a2}")
    k(f"s_cselect_b32 s{a3}, 144, 16")
    k(f"s_mul_i32 s{a4}, s{s_dq}, 288")
    for j in range(3):
        k(f"s_lshl_b32 s{a5}, s{s_wq}, 6")
        k(f"s_add_u32 s{a5}, s{a5}, {256 * j}")
        k(f"v_add_u32 v{t}, s{a5}, v{vlane}")
        k(f"v_mul_u32_u24 v{t2}, 3641, v{t}")
        k(f"v_lshrrev_b32 v{t2}, 16, v{t2}")
        k(f"v_mul_u32_u24 v{t3}, 18, v{t2}")
        k(f"v_sub_u32 v{t3}, v{t}, v{t3}")
        k(f"v_lshrrev_b32 v{fr}, 4, v{t2}")
        k(f"v_mul_lo_u32 v{fr}, v{fr}, s{a3}")
        k(f"v_and_b32 v{t2}, 15, v{t2}")
        k(f"v_add3_u32 v{t2}, v{t2}, v{fr}, s{a2}")
        k(f"v_mul_u32_u24 v{t2}, 1152, v{t2}")
        k(f"v_lshl_add_u32 v{t2}, v{t3}, 4, v{t2}")
        k(f"v_add_u32 v{t2}, s{a4}, v{t2}")
        if j == 2:
            k(f"v_cmp_gt_u32 vcc, 576, v{t}")
            k(f"v_mov_b32 v{t3}, {OOB}")
            k(f"v_cndmask_b32 v{t2}, v{t3}, v{t2}, vcc")
        Q(f"buffer_load_dwordx4 {v(ld + 4 * j, 4)}, v{t2}, s[{sWO}:{sWO+3}], 0 offen", "wo")
    return (t, t2, t3, ld, fr)

def wo_job(k, Q, state, sWF, vlane, vn, vg, LB, S, s_wq, SM=''):
    t, t2, t3, ld, fr = state
    s_kb, s_dq, a0, a1, a2, a3, a4, a5 = S
    Q.wait("wo")
    k(f"s_lshl_b32 s{a5}, s{s_wq}, 10")
    k(f"s_add_u32 s{a5}, s{a5}, {LB}")
    k(f"v_lshlrev_b32 v{t}, 4, v{vlane}")
    k(f"v_add_u32 v{t}, s{a5}, v{t}")
    for j in range(3):
        k(f"ds_write_b128 v{t}, {v(ld + 4 * j, 4)} offset:{4096 * j}")
    k("s_waitcnt lgkmcnt(0)")
    yield 'B'
    k(f"v_lshrrev_b32 v{t}, 2, v{vn}")
    k(f"v_lshl_add_u32 v{t}, v{vg}, 2, v{t}")
    k(f"v_mul_u32_u24 v{t}, 288, v{t}")
    k(f"v_and_b32 v{t2}, 3, v{vn}")
    k(f"v_lshl_add_u32 v{t}, v{t2}, 3, v{t}")
    k(f"v_add_u32 v{t}, {LB}, v{t}")
    k(f"s_lshl_b32 s{a5}, s{s_wq}, 5")
    k(f"v_add_u32 v{t2}, s{a5}, v{t}")
    for j in range(2):
        k(f"ds_read_b64_tr_b16 {v(fr + 4 * j, 2)}, v{t2} offset:{128 * j}")
        k(f"ds_read_b64_tr_b16 {v(fr + 4 * j + 2, 2)}, v{t2} offset:{128 * j + 16 * 288}")
    k(f"ds_read_b64_tr_b16 {v(fr + 8, 2)}, v{t} offset:256")
    k(f"ds_read_b64_tr_b16 {v(fr + 10, 2)}, v{t} offset:{256 + 16 * 288}")
    k(f"s_mul_i32 s{a5}, s{s_dq}, {9 * 72}")
    k(f"s_add_u32 s{a5}, s{a5}, s{s_kb}")
    k(f"s_lshl_b32 s{a5}, s{a5}, 10")
    k(f"v_lshlrev_b32 v{t3}, 4, v{vlane}")
    k(f"v_add_u32 v{t3}, s{a5}, v{t3}")
    k(f"s_mul_i32 s{a0}, s{s_wq}, {72 * 1024}")
    k(f"s_add_u32 s{a1}, s{a0}, {4 * 72 * 1024}")
    k(f"s_cmp_eq_u32 s{s_wq}, 0")
    k(f"s_cselect_b32 s{a2}, {8 * 72 * 1024}, {OOB}") if False else None
    k(f"s_mov_b32 s{a2}, {OOB}")
    k(f"s_cselect_b32 s{a2}, {8 * 72 * 1024}, s{a2}")
    k("s_waitcnt lgkmcnt(0)")
    Q(f"buffer_store_dwordx4 {v(fr, 4)}, v{t3}, s[{sWF}:{sWF+3}], s{a0} offen{SM}", "st")
    Q(f"buffer_store_dwordx4 {v(fr + 4, 4)}, v{t3}, s[{sWF}:{sWF+3}], s{a1} offen{SM}", "st")
    Q(f"buffer_store_dwordx4 {v(fr + 8, 4)}, v{t3}, s[{sWF}:{sWF+3}], s{a2} offen{SM}", "st")

def kv8_loads(k, R, extra, s_tile, s_w8, s_wq, sK, sV, sSH, vlane, S):
    s0, d0, sa_ = S[0], S[1], S[2]
    t, t2, t3 = R['t'], R['t2'], R['t3']
    k(f"s_lshr_b32 s{s0}, s{s_tile}, 3"); k(f"s_lshl_b32 s{s0}, s{s0}, 6")
    k(f"s_and_b32 s{d0}, s{s_tile}, 7"); k(f"s_mul_i32 s{d0}, s{d0}, 72")
    n = 0
    for ex in range(2 if extra else 1):
        K_ = R['K2'] if ex else R['K']; W_ = R['W2'] if ex else R['W']
        if ex == 0:
            k(f"s_lshl_b32 s{sa_}, s{s_w8}, 3"); k(f"s_add_u32 s{sa_}, s{sa_}, s{s0}")
            k(f"v_lshrrev_b32 v{t}, 3, v{vlane}"); k(f"v_add_u32 v{t}, s{sa_}, v{t}")
            k(f"v_and_b32 v{t2}, 7, v{vlane}")
        else:
            k(f"s_lshl_b32 s{sa_}, s{s_wq}, 4"); k(f"s_add_u32 s{sa_}, s{sa_}, s{s0}")
            k(f"v_and_b32 v{t}, 15, v{vlane}"); k(f"v_add_u32 v{t}, s{sa_}, v{t}")
            k(f"v_mov_b32 v{t2}, 8")
        k(f"v_mul_u32_u24 v{t3}, 1152, v{t}")
        k(f"v_lshl_add_u32 v{t3}, v{t2}, 4, v{t3}")
        k(f"s_lshl_b32 s{sa_}, s{d0}, 1")
        k(f"buffer_load_dwordx4 {v(K_ + 16, 4)}, v{t3}, s[{sV}:{sV+3}], s{sa_} offen"); n += 1
        k(f"buffer_load_dwordx4 {v(K_, 4)}, v{t3}, s[{sK}:{sK+3}], s{sa_} offen offset:3456"); n += 1
        for j in range(1, 4):
            k(f"v_cmp_gt_u32 vcc, {j}, v{t}")
            k(f"v_mov_b32 v{t2}, {OOB}")
            k(f"v_cndmask_b32 v{t2}, v{t3}, v{t2}, vcc")
            k(f"buffer_load_dwordx4 {v(K_ + 4 * j, 4)}, v{t2}, s[{sK}:{sK+3}], s{sa_} offen offset:{(3 - j) * 1152}"); n += 1
    return n

def kv8_compute(k, R, extra, s_w8, s_wq, vlane, LB, S, sONE):
    sa_ = S[2]
    t, t2 = R['t'], R['t2']; w = R['w']; acc_ = R['acc']; pr = R['pr']; tp = R['tp']
    for ex in range(2 if extra else 1):
        K_ = R['K2'] if ex else R['K']; W_ = R['W']
        if ex == 0:
            k(f"v_and_b32 v{t2}, 7, v{vlane}"); k(f"v_lshlrev_b32 v{t2}, 6, v{t2}")
        else:
            k(f"v_mov_b32 v{t2}, 512")
        for j in range(4): k(f"ds_read_b128 {v(W_ + 4 * j, 4)}, v{t2} offset:{LB + 16 * j}")
        k("s_waitcnt lgkmcnt(0)")
        for j in range(4):
            for e in range(8):
                src_ = W_ + 2 * e + (j >> 1); d_ = w + 8 * j + e
                if j % 2 == 0: k(f"v_and_b32 v{d_}, 0xffff, v{src_}" if e % 2 == 0 else f"v_lshlrev_b32 v{d_}, 16, v{src_}")
                else: k(f"v_lshrrev_b32 v{d_}, 16, v{src_}" if e % 2 == 0 else f"v_and_b32 v{d_}, 0xffff0000, v{src_}")
        for e in range(8): k(f"v_dot2_f32_bf16 v{acc_ + e}, v{K_ + 12 + e // 2}, v{w + 24 + e}, 0")
        for j in (2, 1, 0):
            for e in range(8): k(f"v_dot2_f32_bf16 v{pr + e}, v{K_ + 4 * j + e // 2}, v{w + 8 * j + e}, 0")
            for e in range(8): k(f"v_cvt_pk_bf16_f32 v{pr + e}, v{pr + e}, v{acc_ + e}")
            for e in range(8): k(f"v_dot2_f32_bf16 v{acc_ + e}, v{pr + e}, s{sONE}, 0")
        for c in range(4):
            k(f"v_and_b32 v{pr + 2 * c}, 0xffff, v{K_ + 16 + c}")
            k(f"v_and_b32 v{pr + 2 * c + 1}, 0xffff0000, v{K_ + 16 + c}")
        for c in range(4): k(f"v_cvt_pk_bf16_f32 v{tp + c}, v{acc_ + 2 * c}, v{acc_ + 2 * c + 1}")
        for e in range(8): k(f"v_dot2_f32_bf16 v{acc_ + e}, v{tp + e // 2}, v{pr + e}, 0")
        if ex == 0:
            k(f"s_lshl_b32 s{sa_}, s{s_w8}, 3"); k(f"s_sub_u32 s{sa_}, 63, s{sa_}")
            k(f"v_lshrrev_b32 v{t}, 3, v{vlane}"); k(f"v_sub_u32 v{t}, s{sa_}, v{t}")
            k(f"v_and_b32 v{t2}, 7, v{vlane}"); k(f"v_lshlrev_b32 v{t2}, 4, v{t2}")
        else:
            k(f"s_lshl_b32 s{sa_}, s{s_wq}, 4"); k(f"s_sub_u32 s{sa_}, 63, s{sa_}")
            k(f"v_and_b32 v{t}, 15, v{vlane}"); k(f"v_sub_u32 v{t}, s{sa_}, v{t}")
            k(f"v_mov_b32 v{t2}, 128")
        k(f"v_mul_u32_u24 v{t}, 144, v{t}")
        k(f"v_add3_u32 v{t2}, v{t}, v{t2}, s{S[3]}")
        for c in range(4): k(f"v_cvt_pk_bf16_f32 v{K_ + c}, v{acc_ + 2 * c}, v{acc_ + 2 * c + 1}")
        k(f"ds_write_b128 v{t2}, {v(K_, 4)}")

def kv8_store(k, R, s_w8, vlane, vn, vg, sKV, S, SM=''):
    s0, d0, sa_ = S[0], S[1], S[2]
    t, t2 = R['t'], R['t2']; o = R['K']; t3 = R['t3']
    k(f"v_lshrrev_b32 v{t}, 2, v{vn}")
    k(f"v_lshl_add_u32 v{t}, v{vg}, 3, v{t}")
    k(f"v_mul_u32_u24 v{t}, 144, v{t}")
    k(f"v_and_b32 v{t2}, 3, v{vn}")
    k(f"v_lshl_add_u32 v{t}, v{t2}, 3, v{t}")
    k(f"s_and_b32 s{sa_}, s{s_w8}, 1"); k(f"s_mul_i32 s{S[4]}, s{sa_}, {32 * 144}"); k(f"s_add_u32 s{S[3]}, s{S[3]}, s{S[4]}")
    k(f"s_lshr_b32 s{S[4]}, s{s_w8}, 1"); k(f"s_lshl_b32 s{S[4]}, s{S[4]}, 5"); k(f"s_add_u32 s{S[3]}, s{S[3]}, s{S[4]}")
    k(f"v_add_u32 v{t}, s{S[3]}, v{t}")
    for j in range(2):
        k(f"ds_read_b64_tr_b16 {v(o + 4 * j, 2)}, v{t} offset:{128 * j}")
        k(f"ds_read_b64_tr_b16 {v(o + 4 * j + 2, 2)}, v{t} offset:{128 * j + 4 * 144}")
    k(f"s_lshr_b32 s{S[4]}, s{S[4]}, 1")
    k(f"v_add_u32 v{t3}, s{S[4]}, v{vn}")
    k(f"v_add_u32 v{t2}, s{d0}, v{t3}")
    k(f"v_lshlrev_b32 v{t2}, 12, v{t2}")
    k(f"v_lshl_add_u32 v{t2}, v{vg}, 4, v{t2}")
    k(f"s_sub_u32 s{s0}, 1984, s{s0}"); k(f"s_lshl_b32 s{s0}, s{s0}, 1")
    k(f"s_lshl_b32 s{sa_}, s{sa_}, 6"); k(f"s_add_u32 s{s0}, s{s0}, s{sa_}")
    k(f"v_add_u32 v{t2}, s{s0}, v{t2}")
    k(f"v_cmp_gt_u32 vcc, 8, v{t3}")
    k(f"v_mov_b32 v{t3}, {OOB}")
    k(f"v_cndmask_b32 v{t3}, v{t3}, v{t2}, vcc")
    k(f"s_mov_b32 s{sa_}, {64 * 4096}")
    k("s_waitcnt lgkmcnt(0)")
    k(f"buffer_store_dwordx4 {v(o, 4)}, v{t2}, s[{sKV}:{sKV+3}], 0 offen{SM}")
    k(f"buffer_store_dwordx4 {v(o + 4, 4)}, v{t3}, s[{sKV}:{sKV+3}], s{sa_} offen{SM}")
```

```python
from common import *
from k2 import getopt
import jobs
import struct

ZU = 9216; XS = 16384
STAT2 = WS_STAT
XSTAT = WS_STAT + 0x100000
CSP   = WS_STAT + 0x140000
SYNC  = WS_STAT + 0x1C0000
D0 = -2.302208198; D1 = -0.1029432397
OOB = 0x7ff00000
def f2u(x): return struct.unpack('<I', struct.pack('<f', x))[0]

def rnd_n(k, xs, ts):
    for j in range(0, len(xs), 2): k(f"v_cvt_pk_bf16_f32 v{ts[j // 2]}, v{xs[j]}, v{xs[j + 1]}")
    for j in range(0, len(xs), 2):
        k(f"v_lshlrev_b32 v{xs[j]}, 16, v{ts[j // 2]}")
        k(f"v_and_b32 v{xs[j + 1]}, 0xffff0000, v{ts[j // 2]}")

def ln_finish(k, vs, vq, n, t0):
    k(f"v_mul_f32 v{vs}, {hex(f2u(1.0 / n))}, v{vs}")
    k(f"v_mul_f32 v{vq}, {hex(f2u(1.0 / n))}, v{vq}")
    k(f"v_fma_f32 v{vq}, -v{vs}, v{vs}, v{vq}")
    k(f"v_max_f32 v{vq}, 0, v{vq}")
    rnd2(k, vs, vq, t0)
    k(f"v_add_f32 v{vq}, {hex(f2u(1e-5))}, v{vq}")
    k(f"v_cvt_pk_bf16_f32 v{t0}, v{vq}, v{vq}")
    k(f"v_lshlrev_b32 v{vq}, 16, v{t0}")
    k(f"v_sqrt_f32 v{vq}, v{vq}")
    k(f"v_cvt_pk_bf16_f32 v{t0}, v{vq}, v{vq}")
    k(f"v_lshlrev_b32 v{vq}, 16, v{t0}")
    k(f"v_rcp_f32 v{vq}, v{vq}")

class VMQ:
    def __init__(self, k): self.k = k; self.q = []; self.done = -1
    def __call__(self, text, tag=None):
        self.k(text); self.q.append(tag)
    def wait(self, tag):
        self.waitidx(max(i for i, t in enumerate(self.q) if t == tag))
    def waitidx(self, idx):
        if idx <= self.done: return
        self.k(f"s_waitcnt vmcnt({len(self.q) - 1 - idx})")
        self.done = idx

def gen_k1(name="k1_kernel", opts=(), fused=None):
    k = Kernel(name); k.check = not [o for o in opts if o in ('stamp', 'nomfma')]
    SM = ' sc1' if 'wsc1' in opts else (' nt' if 'wnt' in opts else (' sc0 sc1' if 'wsc01' in opts else ''))
    NU = 9; NX = 4
    LAM = getopt(opts, 'LAM', 8)
    CS = 0; XM = 1280; XR = 1792; ZSL = 2304; LCNT = 1152; CSL = 3328
    WBASE = 4608
    ZRING = NU * ZU
    XBASE = WBASE + ZRING
    LDS = XBASE + NX * XS
    ZP = 236; LC2 = 160768
    if fused: SM = ' sc1'
    sX, sWi, sZ1, sZ2, sDB, sWS = 8, 12, 16, 20, 44, 48
    s_wave, s_role, s_wq, s_r0, s_cg, s_cnt, s_tmp, s_off, s_offx, s_t2, s_k, s_rb, sONE, s_rot, s_idx, s_n, s_t3, s_mb = \
        28, 29, 30, 31, 32, 33, 34, 35, 36, 37, 38, 39, 53, 56, 57, 58, 59, 52
    Lend = k.label('end'); LB = k.label('B'); Lz1 = k.label('z1epi')
    k(f"s_cmp_ge_u32 s2, 256")
    k(f"s_cbranch_scc1 {Lend}")
    k(f"s_load_dwordx2 s[4:5], s[0:1], {KA['q']}")
    k(f"s_load_dwordx2 s[6:7], s[0:1], {KA['win']}")
    k(f"s_load_dwordx4 s[40:43], s[0:1], {KA['dbg']}")
    vlane, vt, vt2, vt3, vn, vg, vl16 = 1, 2, 3, 4, 5, 6, 7
    acc2 = 8; acc1 = 80
    vtr, vXb, vWa, vX, vX1 = 248, 249, 250, 251, 252
    A2 = lambda i, mu: acc2 + (i * 2 + mu) * 4
    A1 = lambda i, mu: acc1 + (i * 2 + mu) * 4
    k(f"v_lshrrev_b32 v{vt}, 6, v0")
    k(f"v_and_b32 v{vlane}, 63, v0")
    k(f"v_readfirstlane_b32 s{s_wave}, v{vt}")
    k(f"v_and_b32 v{vn}, 15, v{vlane}")
    k(f"v_lshrrev_b32 v{vg}, 4, v{vlane}")
    k(f"v_lshlrev_b32 v{vl16}, 4, v{vlane}")
    k(f"s_lshr_b32 s{s_role}, s{s_wave}, 2")
    k(f"s_and_b32 s{s_wq}, s{s_wave}, 3")
    k(f"s_and_b32 s{s_tmp}, s2, 1")
    k(f"s_lshl_b32 s{s_tmp}, s{s_tmp}, 3")
    k(f"s_bfe_u32 s{s_rb}, s2, 0x30003")
    k(f"s_add_u32 s{s_rb}, s{s_rb}, s{s_tmp}")
    k(f"s_lshl_b32 s{s_r0}, s{s_rb}, 7")
    k(f"s_bfe_u32 s{s_tmp}, s2, 0x20001")
    k(f"s_lshl_b32 s{s_tmp}, s{s_tmp}, 2")
    k(f"s_lshr_b32 s{s_cg}, s2, 6")
    k(f"s_add_u32 s{s_cg}, s{s_cg}, s{s_tmp}")
    k(f"s_sub_u32 s{s_tmp}, s{s_rb}, 9")
    k(f"s_cmp_lt_u32 s{s_rb}, 9")
    k(f"s_cselect_b32 s{s_rot}, s{s_rb}, s{s_tmp}")
    k(f"s_mov_b32 s{s_off}, 0"); k(f"s_mov_b32 s{s_offx}, 0"); k(f"s_mov_b32 s{s_cnt}, 0")
    k(f"s_mov_b32 s{sONE}, 0x3f803f80")
    k(f"v_lshrrev_b32 v{vt}, 2, v{vn}")
    k(f"v_and_b32 v{vt2}, 1, v{vg}")
    k(f"v_lshl_add_u32 v{vt}, v{vt2}, 2, v{vt}")
    k(f"v_lshrrev_b32 v{vt2}, 1, v{vg}")
    k(f"v_lshl_add_u32 v{vt}, v{vt2}, 4, v{vt}")
    k(f"v_mul_u32_u24 v{vt}, 288, v{vt}")
    k(f"v_and_b32 v{vt2}, 3, v{vn}")
    k(f"v_lshl_add_u32 v{vtr}, v{vt2}, 3, v{vt}")
    k(f"v_add_u32 v{vtr}, {WBASE}, v{vtr}")
    k(f"v_lshrrev_b32 v{vt}, 2, v{vn}")
    k(f"v_and_b32 v{vt2}, 3, v{vn}")
    k(f"v_lshl_add_u32 v{vt}, v{vt}, 3, v{vt2}")
    k(f"v_lshlrev_b32 v{vt}, 7, v{vt}")
    k(f"v_xor_b32 v{vt2}, v{vg}, v{vn}")
    k(f"v_and_b32 v{vt2}, 7, v{vt2}")
    k(f"v_lshl_add_u32 v{vt}, v{vt2}, 4, v{vt}")
    k(f"s_lshl_b32 s{s_tmp}, s{s_wq}, 12")
    k(f"s_add_u32 s{s_tmp}, s{s_tmp}, {XBASE}")
    k(f"v_add_u32 v{vXb}, s{s_tmp}, v{vt}")
    st = Stamps(k, 'stamp' in opts, s_wave, span=(1 if 'span' in opts else None))
    if 'span' in opts: k.check = False
    for i_ in range(7): st(i_)
    BIAS = 4096
    def w_voffsets(regs, js, colbase_s):
        k(f"s_mov_b32 s54, 3641")
        for r, (j, jimm) in zip(regs, js):
            if isinstance(j, int): k(f"v_add_u32 v{vt}, {64 * j}, v{vlane}")
            else: k(f"v_add_u32 v{vt}, s{j[0]}, v{vlane}"); k(f"v_add_u32 v{vt}, {64 * j[1]}, v{vt}"); k(f"v_min_u32 v{vt}, v{vt}, v{vX}")
            k(f"v_mul_lo_u32 v{vt2}, v{vt}, s54")
            k(f"v_lshrrev_b32 v{vt2}, 16, v{vt2}")
            k(f"v_mul_u32_u24 v{vt3}, 18, v{vt2}")
            k(f"v_sub_u32 v{vt}, v{vt}, v{vt3}")
            k(f"v_and_b32 v{vt3}, 0x13, v{vt2}")
            k(f"v_and_b32 v{r}, 4, v{vt2}")
            k(f"v_lshl_or_b32 v{vt3}, v{r}, 1, v{vt3}")
            k(f"v_and_b32 v{r}, 8, v{vt2}")
            k(f"v_lshrrev_b32 v{r}, 1, v{r}")
            k(f"v_or_b32 v{vt3}, v{vt3}, v{r}")
            k(f"v_mul_u32_u24 v{vt3}, 9216, v{vt3}")
            k(f"v_lshl_add_u32 v{vt3}, v{vt}, 4, v{vt3}")
            k(f"v_add_u32 v{vt3}, s{colbase_s}, v{vt3}")
            k(f"v_add_u32 v{r}, {BIAS - jimm}, v{vt3}")
    def colsum_part(hb_, cs_, part, ubase_=0):
        k(f"s_lshr_b32 s{s_tmp}, s{s_wq}, 1"); k(f"s_mul_i32 s{s_tmp}, s{s_tmp}, {ZU}")
        k(f"s_and_b32 s{s_t3}, s{s_wq}, 1"); k(f"s_mul_i32 s{s_t3}, s{s_t3}, 160")
        k(f"s_add_u32 s{s_tmp}, s{s_tmp}, s{s_t3}")
        if ubase_: k(f"s_add_u32 s{s_tmp}, s{s_tmp}, {ubase_}")
        k(f"v_add_u32 v{vt}, s{s_tmp}, v{vtr}")
        for t in range(5):
            for half in range(2):
                k(f"ds_read_b64_tr_b16 {v(hb_ + 4 * t + 2 * half, 2)}, v{vt} offset:{t * 32 + half * 2304}")
        for t in range(5): k(f"v_mov_b32 v{cs_ + t}, 0")
        k(f"s_lshl_b32 s{s_t3}, s{s_t3}, 1")
        k(f"s_lshr_b32 s{s_tmp}, s{s_wq}, 1"); k(f"s_mul_i32 s{s_tmp}, s{s_tmp}, 640"); k(f"s_add_u32 s{s_t3}, s{s_t3}, s{s_tmp}")
        k(f"v_lshlrev_b32 v{vt2}, 2, v{vn}")
        k(f"v_add_u32 v{vt2}, s{s_t3}, v{vt2}")
        k("s_waitcnt lgkmcnt(0)")
        for c in range(4):
            for t in range(5):
                k(f"v_dot2_f32_bf16 v{cs_ + t}, v{hb_ + 4 * t + c}, s{sONE}, v{cs_ + t}")
        for op in ("v_permlane32_swap_b32", "v_permlane16_swap_b32"):
            for t in range(5): k(f"v_mov_b32 v{hb_ + t}, v{cs_ + t}")
            for t in range(5): k(f"{op} v{cs_ + t}, v{hb_ + t}")
            for t in range(5): k(f"v_add_f32 v{cs_ + t}, v{cs_ + t}, v{hb_ + t}")
        for t in range(5):
            k(f"ds_write_b32 v{vt2}, v{cs_ + t} offset:{CSL + 64 * t}")
    def publish_cs(r4, part, ta, tb_, Qf=None):
        k(f"ds_read_b128 {v(r4, 4)}, v{vl16} offset:{CSL}")
        k(f"ds_read_b128 {v(r4 + 4, 4)}, v{vl16} offset:{CSL + 640}")
        k(f"s_lshl_b32 s{s_tmp}, s{s_cg}, 1"); k(f"s_add_u32 s{s_tmp}, s{s_tmp}, {part}"); k(f"s_mul_i32 s{s_tmp}, s{s_tmp}, 9")
        k(f"s_add_u32 s{s_tmp}, s{s_tmp}, s{s_rot}"); k(f"s_mul_i32 s{s_tmp}, s{s_tmp}, 576"); k(f"s_add_u32 s{s_tmp}, s{s_tmp}, {CSP - WS_STAT}")
        k(f"s_cmp_lt_u32 s{s_rb}, 9"); k(f"s_cselect_b32 s{s_tmp}, s{s_tmp}, {OOB}")
        k(f"s_cmp_eq_u32 s{s_wq}, 0"); k(f"s_cselect_b32 s{s_tmp}, s{s_tmp}, {OOB}")
        k(f"v_mov_b32 v{tb_}, {OOB}")
        k(f"v_cmp_gt_u32 vcc, 36, v{vlane}")
        k(f"v_cndmask_b32 v{ta}, v{tb_}, v{vl16}, vcc")
        k("s_waitcnt lgkmcnt(0)")
        for c in range(4): k(f"v_add_f32 v{r4 + c}, v{r4 + c}, v{r4 + 4 + c}")
        (Qf or k)(f"buffer_store_dwordx4 {v(r4, 4)}, v{ta}, s[{sWS}:{sWS+3}], s{s_tmp} offen sc1")
    def load_cs(base, part, ta, tb_, Qf):
        k(f"s_lshl_b32 s{s_tmp}, s{s_cg}, 1"); k(f"s_add_u32 s{s_tmp}, s{s_tmp}, {part}"); k(f"s_mul_i32 s{s_tmp}, s{s_tmp}, {9 * 576}")
        k(f"s_add_u32 s{s_tmp}, s{s_tmp}, {CSP - WS_STAT}")
        k(f"s_add_u32 s61, s{s_tmp}, {7 * 576}")
        k(f"v_mov_b32 v{tb_}, {OOB}")
        k(f"v_cmp_gt_u32 vcc, 36, v{vlane}")
        k(f"v_cndmask_b32 v{ta}, v{tb_}, v{vl16}, vcc")
        for j in range(9):
            txt = f"buffer_load_dwordx4 {v(base + 4 * j, 4)}, v{ta}, s[{sWS}:{sWS+3}], s{s_tmp if j < 7 else 61} offen offset:{576 * (j % 7)} sc1"
            if Qf: Qf(txt, "ld")
            else: k(txt)
    def reduce_cs(base, part, ta, waittxt):
        if waittxt: k(waittxt)
        for j in range(1, 9):
            for c in range(4): k(f"v_add_f32 v{base + c}, v{base + c}, v{base + 4 * j + c}")
        k(f"v_cmp_gt_u32 vcc, 36, v{vlane}")
        k(f"s_and_saveexec_b64 s[62:63], vcc")
        k(f"ds_write_b128 v{vl16}, {v(base, 4)} offset:{CS + 576 * part}")
        k(f"s_mov_b64 exec, -1")
    k(f"s_cmp_eq_u32 s{s_role}, 1")
    k(f"s_cbranch_scc1 {LB}")

    ring = 80; R = 9; xreg = 116
    for i in range(72): k(f"v_mov_b32 v{acc2 + i}, 0")
    vDA = [132 + j for j in range(9)]
    k(f"s_mul_i32 s{s_t2}, s{s_cg}, 288")
    w_voffsets(vDA, [(j, (j % 4) * 1024) for j in range(9)], s_t2)
    NRD = 20; NM = 18
    cov = {'c': -1}
    def rdA(q):
        u, j = divmod(q, NRD)
        if j == 0 and u % 2 == 0:
            if u > 0 and cov['c'] < (u - 1) * NRD + 1:
                k(f"s_waitcnt lgkmcnt({q - ((u - 1) * NRD + 1) - 1})"); cov['c'] = (u - 1) * NRD + 1
            k("s_barrier")
            k(f"v_add_u32 v{vX}, s{s_offx}, v{vXb}")
        if j == 1 and u % 2 == 0: k(f"v_xor_b32 v{vX1}, 64, v{vX}")
        if j == 2: k(f"v_add_u32 v{vWa}, s{s_off}, v{vtr}")
        if j == 5: k(f"s_add_u32 s{s_off}, s{s_off}, {ZU}")
        if j == 7:
            k(f"s_cmp_eq_u32 s{s_off}, {ZRING}"); k(f"s_cselect_b32 s{s_off}, 0, s{s_off}")
        if j == 9 and u % 2 == 0: k(f"s_add_u32 s{s_offx}, s{s_offx}, {XS}")
        if j == 11 and u % 2 == 0: k(f"s_and_b32 s{s_offx}, s{s_offx}, {NX * XS - 1}")
        if j < 2:
            k(f"ds_read_b128 {v(xreg + ((u % 2) * 2 + j) * 4, 4)}, v{vX1 if u % 2 else vX} offset:{j * 512}")
        else:
            t, half = divmod(j - 2, 2)
            k(f"ds_read_b64_tr_b16 {v(ring + 4 * (t % R) + 2 * half, 2)}, v{vWa} offset:{t * 32 + half * 2304}")
    def need(m, nrd=NRD, pre=2):
        u, r = divmod(m, NM)
        return u * nrd + pre + (r // 2) * 2 + 1
    def sched(iss, m, nrd=NRD, pre=2):
        n = 0
        while iss + n <= need(m + LAM, nrd, pre) and n < 2: n += 1
        return n
    iss = need(LAM - 1) + 1
    for m in range(36 * 3):
        iss += sched(iss, m)
        if (m + 1) % 36 == 0: steady = iss - ((m + 1) // 36) * 2 * NRD
    k("s_waitcnt lgkmcnt(0)")
    srd(k, sWi, 6, 7, -BIAS, 576 * 4608 * 2 + BIAS)
    srd(k, sWS, 42, 43, WS_STAT, 0x200000)
    for q in range(steady): rdA(q)
    st(2)
    if st.on: k("s_waitcnt lgkmcnt(0)")
    issued = steady
    Lloop = k.label('loop')
    k(f"{Lloop}:")
    for u in range(2):
        for t in range(9):
            m0 = u * NM + t * 2
            if need(m0) > cov['c']:
                tgt = min(need(min(m0 + 2, u * NM + NM - 1)), issued - 1)
                k(f"s_waitcnt lgkmcnt({issued - tgt - 1})"); cov['c'] = tgt
            for mu in range(2):
                C = v(A2(t, mu), 4)
                if 'nomfma' not in opts:
                    k(f"v_mfma_f32_16x16x32_bf16 {C}, {v(xreg + (u * 2 + mu) * 4, 4)}, {v(ring + 4 * (t % R), 4)}, {C}")
                for _ in range(sched(issued, m0 + mu)):
                    u2, j2 = divmod(issued, NRD)
                    if j2 >= 2: assert (u2 * 9 + (j2 - 2) // 2) - R < u * 9 + t
                    assert issued - cov['c'] <= 15
                    rdA(issued); issued += 1
    assert issued == steady + 2 * NRD
    if 'iter' in opts:
        k("s_memtime s[94:95]")
        k("s_waitcnt lgkmcnt(0)")
        k("s_sub_u32 s94, s94, s70")
        k(f"s_mov_b32 m0, s{s_cnt}")
        k(f"v_writelane_b32 v247, s94, m0")
    k(f"s_add_u32 s{s_cnt}, s{s_cnt}, 1")
    k(f"s_cmp_lt_u32 s{s_cnt}, 9")
    k(f"s_cbranch_scc1 {Lloop}")
    st(3)
    ea = Alloc(152, 248)
    xm = ea.get(8, 4); xr = ea.get(8, 4); d0r = ea.get(8, 4); d1r = ea.get(8, 4); zS = ea.get(8, 4); zQ = ea.get(8, 4); X = ea.get(8, 4); T = ea.get(8, 4)
    csv = ea.get(12, 4); one = ea.get(2, 2); va1 = ea.get(); va2 = ea.get(); va3 = ea.get(); t0 = ea.get(); t1 = ea.get()
    sa = zS; cA = xm; cB = xm + 4; zs = xm
    P2 = lambda r: v(r, 2)
    def z2_setup(tiles):
        k(f"s_lshl_b32 s{s_tmp}, s{s_wq}, 7")
        k(f"v_lshlrev_b32 v{va1}, 5, v{vg}")
        k(f"v_add_u32 v{va1}, s{s_tmp}, v{va1}")
        for j in range(2):
            k(f"ds_read_b128 {v(xm + 4 * j, 4)}, v{va1} offset:{XM + 16 * j}")
            k(f"ds_read_b128 {v(xr + 4 * j, 4)}, v{va1} offset:{XR + 16 * j}")
        k(f"v_lshlrev_b32 v{va2}, 2, v{vn}")
        for j, i in enumerate(tiles):
            k(f"ds_read_b32 v{csv + 2 * j}, v{va2} offset:{CS + 64 * i}")
        for j in range(8): k(f"v_mov_b32 v{zS + j}, 0"); k(f"v_mov_b32 v{zQ + j}, 0")
        k(f"v_mov_b32 v{one}, 1.0"); k(f"v_mov_b32 v{one + 1}, 1.0")
        k("s_waitcnt lgkmcnt(0)")
        for j in range(len(tiles)): k(f"v_mov_b32 v{csv + 2 * j + 1}, v{csv + 2 * j}")
        for r in range(8):
            k(f"v_mul_f32 v{d0r + r}, {hex(f2u(D0))}, v{xr + r}")
            k(f"v_mul_f32 v{d1r + r}, v{xr + r}, v{xr + r}")
        for r in range(8): k(f"v_mul_f32 v{d1r + r}, v{d1r + r}, v{xr + r}")
        for r in range(8): k(f"v_mul_f32 v{d1r + r}, {hex(f2u(D1))}, v{d1r + r}")
    def z2_tile(i, j):
        a_ = A2(i, 0)
        c_ = csv + 2 * j
        E = range(0, 8, 2)
        for r in E: k(f"v_pk_fma_f32 {P2(a_ + r)}, {P2(xm + r)}, {P2(c_)}, {P2(a_ + r)} neg_lo:[1,0,0] neg_hi:[1,0,0]")
        for r in E: k(f"v_pk_mul_f32 {P2(T + r)}, {P2(a_ + r)}, {P2(a_ + r)}")
        for r in E: k(f"v_pk_fma_f32 {P2(T + r)}, {P2(T + r)}, {P2(d1r + r)}, {P2(d0r + r)}")
        for r in E: k(f"v_pk_mul_f32 {P2(T + r)}, {P2(T + r)}, {P2(a_ + r)}")
        for r in range(8): k(f"v_exp_f32 v{T + r}, v{T + r}")
        for r in E: k(f"v_pk_add_f32 {P2(T + r)}, {P2(T + r)}, {P2(one)}")
        for r in range(8): k(f"v_rcp_f32 v{T + r}, v{T + r}")
        for r in E: k(f"v_pk_mul_f32 {P2(a_ + r)}, {P2(a_ + r)}, {P2(T + r)}")
        for r in E: k(f"v_pk_add_f32 {P2(zS + r)}, {P2(zS + r)}, {P2(a_ + r)}")
        for r in E: k(f"v_pk_fma_f32 {P2(zQ + r)}, {P2(a_ + r)}, {P2(a_ + r)}, {P2(zQ + r)}")
    def z2_publish():
        for sh in (8, 4, 2, 1):
            for j in range(8):
                k(f"v_add_f32_dpp v{zS + j}, v{zS + j}, v{zS + j} row_ror:{sh} row_mask:0xf bank_mask:0xf")
                k(f"v_add_f32_dpp v{zQ + j}, v{zQ + j}, v{zQ + j} row_ror:{sh} row_mask:0xf bank_mask:0xf")
        for r in range(8):
            k(f"v_mul_f32 v{X + r}, v{xr + r}, v{xr + r}")
            k(f"v_mul_f32 v{d0r + 2 * r}, v{zS + r}, v{xr + r}")
        for r in range(8): k(f"v_mul_f32 v{d0r + 2 * r + 1}, v{zQ + r}, v{X + r}")
        k(f"s_lshl_b32 s{s_tmp}, s{s_rb}, 4"); k(f"s_add_u32 s{s_tmp}, s{s_tmp}, s{s_cg}")
        k(f"s_lshl_b32 s{s_tmp}, s{s_tmp}, 1"); k(f"s_add_u32 s{s_tmp}, s{s_tmp}, s{s_role}")
        k(f"s_lshl_b32 s{s_tmp}, s{s_tmp}, 10")
        k(f"v_lshl_add_u32 v{t0}, v{va1}, 1, s{s_tmp}")
        k(f"v_mov_b32 v{t1}, {OOB}")
        k(f"v_cmp_eq_u32 vcc, 0, v{vn}")
        k(f"v_cndmask_b32 v{t0}, v{t1}, v{t0}, vcc")
        for j in range(4):
            k(f"buffer_store_dwordx4 {v(d0r + 4 * j, 4)}, v{t0}, s[{sWS}:{sWS+3}], 0 offen offset:{16 * j} sc1")
    def z2_arrive(nlater):
        k(f"s_waitcnt vmcnt({nlater})")
        k(f"v_mov_b32 v{t0}, {LCNT}")
        k(f"v_mov_b32 v{t1}, 1")
        k("s_mov_b64 exec, 1")
        k(f"ds_add_rtn_u32 v{t0}, v{t0}, v{t1}")
        k("s_waitcnt lgkmcnt(0)")
        k(f"v_readfirstlane_b32 s{s_tmp}, v{t0}")
        k(f"s_lshl_b32 s{s_t3}, s{s_rb}, 8")
        k(f"s_add_u32 s{s_t3}, s{s_t3}, {SYNC - WS_STAT + 4096}")
        k(f"s_cmp_eq_u32 s{s_tmp}, 7")
        k(f"s_cselect_b32 s{s_tmp}, s{s_t3}, {OOB}")
        k(f"v_mov_b32 v{t0}, s{s_tmp}")
        k(f"buffer_atomic_add v{t1}, v{t0}, s[{sWS}:{sWS+3}], 0 offen sc1")
        k("s_mov_b64 exec, -1")
    TA = [0, 1, 2, 3, 4, 5]; TB = [6, 7, 8]
    HO2 = [A2(i, mu) for i in TB for mu in range(2)]
    hbA = 92; csA = 112; plA = 120
    k("s_waitcnt lgkmcnt(0)")
    k(f"s_lshl_b32 s{s_k}, s{s_rot}, 1"); k(f"s_add_u32 s{s_k}, s{s_k}, s{s_wq}"); k(f"s_add_u32 s{s_k}, s{s_k}, 6")
    def around(r):
        k(f"s_cmp_ge_u32 s{s_k}, 18"); k(f"s_cselect_b32 s{s_tmp}, 18, 0"); k(f"s_sub_u32 s{s_k}, s{s_k}, s{s_tmp}")
        k(f"s_mul_i32 s{s_off}, s{s_k}, {32 * 9216}")
        k(f"s_add_u32 s{s_k}, s{s_k}, 4")
        k(f"s_mul_i32 s{s_t3}, s{s_wq}, {ZU}")
        if r == 0:
            k(f"s_add_u32 s{s_t3}, s{s_t3}, {XBASE}")
        elif r == 1:
            k(f"s_add_u32 s{s_t3}, s{s_t3}, {XBASE + 4 * ZU}")
            k(f"s_cmp_eq_u32 s{s_wq}, 3"); k(f"s_cselect_b32 s{s_t3}, {WBASE + 6 * ZU}, s{s_t3}")
        else:
            k(f"s_add_u32 s{s_t3}, s{s_t3}, {WBASE + 7 * ZU}")
            k(f"s_cmp_ge_u32 s{s_wq}, 2"); k(f"s_cselect_b32 s{s_tmp}, {9 * ZU}, 0"); k(f"s_sub_u32 s{s_t3}, s{s_t3}, s{s_tmp}")
        for j in range(9):
            if j % 4 == 0: k(f"s_add_u32 m0, s{s_t3}, {(j // 4) * 4096}")
            k(f"buffer_load_dwordx4 v{vDA[j]}, s[{sWi}:{sWi+3}], s{s_off} offen offset:{(j % 4) * 1024} lds")
    around(0)
    z2_setup(TA)
    k(f"s_lshl_b32 s60, s{s_cg}, 8"); k(f"s_add_u32 s60, s60, {SYNC - WS_STAT + 12288}")
    around(1)
    SEG = [int(c) - 1 for c in str(getopt(opts, 'seg', 1236))]
    def seg(n):
        if n == 0:
            k("s_waitcnt vmcnt(9)")
            k("s_barrier")
            around(2)
            k(f"s_mul_i32 s{s_tmp}, s{s_wq}, 6144"); k(f"s_add_u32 s{s_tmp}, s{s_tmp}, {WBASE + 2 * ZU}")
            k(f"v_add_u32 v{vt3}, s{s_tmp}, v{vl16}")
            for j, r in enumerate(HO2): k(f"ds_write_b128 v{vt3}, {v(r, 4)} offset:{j * 1024}")
            k("s_waitcnt lgkmcnt(3)")
            colsum_part(hbA, csA, 1, ZRING)
        if n == 1:
            k("s_waitcnt vmcnt(9) lgkmcnt(0)")
            k("s_barrier")
            publish_cs(plA, 1, t0, t1)
        if n == 2:
            k("s_waitcnt vmcnt(0)")
            k("s_barrier")
            k(f"s_cmp_lt_u32 s{s_rb}, 9"); k(f"s_cselect_b32 s{s_tmp}, s60, {OOB}")
            k(f"s_cmp_eq_u32 s{s_wq}, 0"); k(f"s_cselect_b32 s{s_tmp}, s{s_tmp}, {OOB}")
            k(f"v_mov_b32 v{t0}, s{s_tmp}"); k(f"v_mov_b32 v{t1}, 1")
            k("s_mov_b64 exec, 1")
            k(f"buffer_atomic_add v{t1}, v{t0}, s[{sWS}:{sWS+3}], 0 offen sc1")
            k("s_mov_b64 exec, -1")
            if 'nopf' not in opts:
                k(f"s_load_dwordx2 s[64:65], s[0:1], {KA['wsp']}")
                k(f"s_lshl_b32 s{s_tmp}, s2, 2"); k(f"s_add_u32 s{s_tmp}, s{s_tmp}, s{s_wq}"); k(f"s_lshl_b32 s{s_tmp}, s{s_tmp}, 13")
                k(f"v_lshlrev_b32 v{t0}, 7, v{vlane}")
                k("s_waitcnt lgkmcnt(0)")
                srd(k, 24, 64, 65, 0, 2048 * 4096)
                k(f"buffer_load_dword v{plA}, v{t0}, s[24:27], s{s_tmp} offen")
                if 'pf2' in opts:
                    k(f"s_lshl_b32 s{s_tmp}, s{s_wq}, 5"); k(f"s_add_u32 s{s_tmp}, s{s_tmp}, s{s_r0}"); k(f"s_lshl_b32 s{s_tmp}, s{s_tmp}, 12")
                    k(f"v_lshrrev_b32 v{t0}, 1, v{vlane}"); k(f"v_lshlrev_b32 v{t0}, 12, v{t0}")
                    k(f"v_and_b32 v{t1}, 1, v{vlane}"); k(f"v_lshl_add_u32 v{t0}, v{t1}, 8, v{t0}")
                    k(f"buffer_load_dword v{plA + 1}, v{t0}, s[24:27], s{s_tmp} offen")
                    k(f"buffer_load_dword v{plA + 2}, v{t0}, s[24:27], s{s_tmp} offen offset:128")
            k(f"s_load_dwordx2 s[64:65], s[0:1], {KA['shk']}")
            k(f"s_and_b32 s{s_tmp}, s2, 7"); k(f"s_mul_i32 s{s_tmp}, s{s_tmp}, 576")
            k(f"s_mov_b32 m0, {ZSL}")
            k("s_waitcnt lgkmcnt(0)")
            srd(k, 24, 64, 65, 0, 576 * 8)
            k(f"buffer_load_dwordx4 v{vl16}, s[24:27], s{s_tmp} offen lds")
        if n == 3:
            Lp1 = k.label('pc1')
            k(f"v_mov_b32 v{t1}, s60")
            k(f"{Lp1}:")
            k(f"buffer_load_dword v{t0}, v{t1}, s[{sWS}:{sWS+3}], 0 offen sc1")
            k("s_waitcnt vmcnt(0)")
            k(f"v_readfirstlane_b32 s{s_tmp}, v{t0}")
            k(f"s_cmp_lt_u32 s{s_tmp}, 9")
            k(f"s_cbranch_scc1 {Lp1}")
            load_cs(80, 1, t0, t1, None)
    for j, i in enumerate(TA + [None]):
        for n, sg in enumerate(SEG):
            if sg == j: seg(n)
        if 'iter' in opts:
            k("s_memtime s[94:95]"); k("s_waitcnt lgkmcnt(0)"); k("s_sub_u32 s94, s94, s70")
            k(f"v_writelane_b32 v247, s94, {9 + j}")
        if i is not None: z2_tile(i, j)
    reduce_cs(80, 1, t0, "s_waitcnt vmcnt(0)")
    z2_publish()
    st(4)
    k("s_waitcnt lgkmcnt(0)")
    HO = [A1(i, mu) for i in range(4, 9) for mu in range(2)]
    k(f"s_mul_i32 s{s_tmp}, s{s_wq}, 10240")
    k(f"s_add_u32 s{s_tmp}, s{s_tmp}, {XBASE}")
    k(f"v_add_u32 v{vt}, s{s_tmp}, v{vl16}")
    k("s_barrier")
    for j, r in enumerate(HO):
        k(f"ds_read_b128 {v(r, 4)}, v{vt} offset:{j * 1024}")
    k(f"s_branch {Lz1}")

    k(f"{LB}:")
    XR_ = lambda u, mu: (8 + (u * 2 + mu) * 4) if u < 9 else (152 + ((u - 9) * 2 + mu) * 4)
    tb = Alloc(80, 152)
    vD = [tb.get() for _ in range(9)]
    hb = tb.get(36, 4); csa = tb.get(5); vxs = tb.get(2, 2); vj = tb.get(); vsy = tb.get(); vfl = tb.get(); vone = tb.get(); vfs = tb.get()
    j1b = 200
    LX = k.label('xload'); Ljoin = k.label('bjoin')
    k(f"v_xor_b32 v{vX1}, 64, v{vXb}")
    k(f"v_mov_b32 v{hb}, 0"); k(f"v_mov_b32 v{hb + 1}, 0"); k(f"v_mov_b32 v{hb + 2}, 0"); k(f"v_mov_b32 v{hb + 3}, 0")
    k(f"v_mov_b32 v{vt}, {LCNT}")
    k(f"ds_write_b32 v{vt}, v{hb}")
    if fused:
        k(f"v_mov_b32 v{vt}, {LC2}")
        k(f"ds_write_b64 v{vt}, {v(hb, 2)}")
    k("s_waitcnt lgkmcnt(0)")
    srd(k, sX, 4, 5, -BIAS, 2048 * 576 * 2 + BIAS)
    srd(k, sWS, 42, 43, WS_STAT, 0x200000)
    srd(k, sDB, 40, 41, 0, 256)
    def capture(b):
        for h in range(2):
            for mu in range(2):
                k(f"ds_read_b128 {v(XR_(2 * b + h, mu), 4)}, v{vX1 if h else vXb} offset:{(b % NX) * XS + mu * 512}")
    RAMP = {-1: 2, 0: 1, 1: 2}
    PL = {}; iss_ = 0
    for b_ in range(-1, 9):
        n = RAMP.get(b_, 1); PL[b_] = list(range(iss_, iss_ + n)); iss_ += n
        assert iss_ <= max(4, b_ + 4)
    assert PL[8][-1] == 11
    def side_setup(Q):
        k(f"s_lshl_b32 s{s_tmp}, s{s_cg}, 3"); k(f"s_add_u32 s{s_tmp}, s{s_tmp}, s{s_r0}")
        k(f"s_lshl_b32 s{s_t3}, s{s_wq}, 1"); k(f"s_add_u32 s{s_tmp}, s{s_tmp}, s{s_t3}")
        k(f"v_lshrrev_b32 v{vt}, 5, v{vlane}")
        k(f"v_add_u32 v{vj}, s{s_tmp}, v{vt}")
        k(f"v_mul_u32_u24 v{vt}, 1152, v{vj}")
        k(f"v_and_b32 v{vt2}, 31, v{vlane}")
        k(f"v_lshl_add_u32 v{vt}, v{vt2}, 4, v{vt}")
        k(f"v_add_u32 v{vt}, {BIAS}, v{vt}")
        k(f"v_cmp_gt_u32 vcc, 8, v{vt2}")
        k(f"v_mov_b32 v{vt2}, {OOB}")
        k(f"v_cndmask_b32 v{vt3}, v{vt2}, v{vt}, vcc")
        for j in range(3):
            Q(f"buffer_load_dwordx4 {v(j1b + 4 * j, 4)}, v{vt if j < 2 else vt3}, s[{sX}:{sX+3}], 0 offen offset:{512 * j}", "j1")
        k(f"s_lshl_b32 s{s_tmp}, s{s_rb}, 8"); k(f"s_lshl_b32 s{s_t3}, s{s_cg}, 8")
        k(f"v_mov_b32 v{vsy}, s{s_tmp}"); k(f"v_mov_b32 v{vt}, s{s_t3}")
        k(f"v_cmp_lt_u32 vcc, 1, v{vlane}")
        k(f"v_cndmask_b32 v{vsy}, v{vsy}, v{vt}, vcc")
        k(f"v_lshl_add_u32 v{vsy}, v{vlane}, 12, v{vsy}")
        k(f"v_add_u32 v{vsy}, {SYNC - WS_STAT}, v{vsy}")
        k(f"v_cmp_gt_u32 vcc, 4, v{vlane}")
        k(f"v_cndmask_b32 v{vfl}, v{vt2}, 0, vcc")
        k(f"v_cndmask_b32 v{vsy}, v{vt2}, v{vsy}, vcc")
        k(f"s_lshl_b32 s{s_tmp}, s{s_wq}, 8"); k(f"s_add_u32 s{s_tmp}, s{s_tmp}, s2")
        k(f"s_cmp_eq_u32 s{s_tmp}, 512")
        k(f"s_cselect_b32 s60, {SYNC - WS_STAT}, {OOB}") if False else None
        k(f"s_mov_b32 s60, {OOB}"); k(f"s_cselect_b32 s60, {SYNC - WS_STAT}, s60")
        k(f"s_mov_b32 s61, {OOB}"); k(f"s_cselect_b32 s61, 0, s61")
        k(f"v_add_u32 v{vfs}, s61, v{vfl}")
        k(f"v_lshlrev_b32 v{vt3}, 8, v{vlane}")
        k(f"v_mov_b32 v{vone}, 0")
        for j in range(3):
            Q(f"buffer_store_dword v{vone}, v{vt3}, s[{sWS}:{sWS+3}], s60 offen sc1", "init")
            if j < 2: k(f"v_add_u32 v{vt3}, 16384, v{vt3}")
        if fused:
            k(f"v_lshrrev_b32 v{vt3}, 2, v{vlane}"); k(f"v_lshlrev_b32 v{vt3}, 8, v{vt3}")
            k(f"v_and_b32 v{vt}, 3, v{vlane}"); k(f"v_lshl_add_u32 v{vt3}, v{vt}, 4, v{vt3}")
            k(f"v_add_u32 v{vt3}, 0x8000, v{vt3}")
            for c in range(4): k(f"v_mov_b32 v{hb + 32 + c}, 0")
            Q(f"buffer_store_dwordx4 {v(hb + 32, 4)}, v{vt3}, s[{sWS}:{sWS+3}], s60 offen sc1", "init")
            k(f"v_add_u32 v{vt3}, 0x1000, v{vt3}")
            Q(f"buffer_store_dwordx4 {v(hb + 32, 4)}, v{vt3}, s[{sWS}:{sWS+3}], s60 offen sc1", "init")
    def poll_until(Q, addr_v, srd_, tag):
        Lr = k.label('re'); Lok = k.label('ok')
        Q.wait(tag)
        k(f"{Lr}:")
        k(f"v_cmp_lt_u32 vcc, v{vt3}, v{vt2}")
        k(f"s_and_b32 s{s_tmp}, vcc_lo, 15")
        k(f"s_cmp_eq_u32 s{s_tmp}, 0")
        k(f"s_cbranch_scc1 {Lok}")
        k("s_sleep 2")
        k(f"buffer_load_dword v{vt3}, v{addr_v}, s[{srd_}:{srd_+3}], 0 offen sc1")
        k("s_waitcnt vmcnt(0)")
        k(f"s_branch {Lr}")
        k(f"{Lok}:")
    def side(Q, b, isx):
        if b == 0:
            colsum_part(hb, csa, 0)
        if b == 1:
            k(f"v_mov_b32 v{vone}, 1")
            Q(f"buffer_store_dword v{vone}, v{vfs}, s[{sDB}:{sDB+3}], 0 offen sc1", "flag")
            publish_cs(hb, 0, vt, vt2, lambda t_: Q(t_, "cs"))
            for c in range(8, 12): k(f"v_mov_b32 v{hb + c}, 0")
            for j in range(12):
                k(f"v_dot2_f32_bf16 v{hb + 8 + (j % 2)}, v{j1b + j}, s{sONE}, v{hb + 8 + (j % 2)}")
                k(f"v_dot2_f32_bf16 v{hb + 10 + (j % 2)}, v{j1b + j}, v{j1b + j}, v{hb + 10 + (j % 2)}")
            k(f"v_add_f32 v{vxs}, v{hb + 8}, v{hb + 9}")
            k(f"v_add_f32 v{vxs + 1}, v{hb + 10}, v{hb + 11}")
        if b == 2:
            for sh in (8, 4, 2, 1):
                for c in range(2):
                    k(f"v_add_f32_dpp v{vxs + c}, v{vxs + c}, v{vxs + c} row_ror:{sh} row_mask:0xf bank_mask:0xf")
            for c in range(2): k(f"v_mov_b32 v{hb + 4 + c}, v{vxs + c}")
            for c in range(2): k(f"v_permlane16_swap_b32 v{vxs + c}, v{hb + 4 + c}")
            for c in range(2): k(f"v_add_f32 v{vxs + c}, v{vxs + c}, v{hb + 4 + c}")
            ln_finish(k, vxs, vxs + 1, 576, vt)
            k(f"v_lshlrev_b32 v{vt}, 3, v{vj}")
            k(f"v_add_u32 v{vt}, {XSTAT - WS_STAT}, v{vt}")
            k(f"v_and_b32 v{vt2}, 31, v{vlane}")
            k(f"v_cmp_eq_u32 vcc, 0, v{vt2}")
            k(f"v_mov_b32 v{vt2}, {OOB}")
            k(f"v_cndmask_b32 v{vt}, v{vt2}, v{vt}, vcc")
            Q(f"buffer_store_dwordx2 {v(vxs, 2)}, v{vt}, s[{sWS}:{sWS+3}], 0 offen sc1", "xs")
            Q(f"buffer_load_dword v{vt3}, v{vfl}, s[{sDB}:{sDB+3}], 0 offen sc1", "fl")
        if b == 3:
            k(f"v_mov_b32 v{vt2}, 1")
            poll_until(Q, vfl, sDB, "fl")
            k(f"s_cmp_lt_u32 s{s_rb}, 9"); k(f"s_cselect_b32 s60, 4, 0")
            k(f"s_cmp_eq_u32 s{s_wq}, 0"); k(f"s_cselect_b32 s60, s60, 0"); k(f"s_or_b32 s60, s60, 1"); k(f"s_mov_b32 s61, 0")
            k(f"v_mov_b32 v{vt2}, {OOB}")
            k(f"v_cndmask_b32 v{vt}, v{vt2}, v{vsy}, s[60:61]")
            Q(f"buffer_atomic_add v{vone}, v{vt}, s[{sWS}:{sWS+3}], 0 offen sc1", "arr")
        if not isx: return
        if b == 5:
            Q(f"buffer_load_dword v{vt3}, v{vsy}, s[{sWS}:{sWS+3}], 0 offen sc1", "cnt")
        if b == 6:
            k(f"v_mov_b32 v{vt2}, 0")
            k(f"v_cmp_eq_u32 vcc, 0, v{vlane}"); k(f"v_cndmask_b32 v{vt2}, v{vt2}, 64, vcc")
            k(f"v_cmp_eq_u32 vcc, 2, v{vlane}"); k(f"v_cndmask_b32 v{vt2}, v{vt2}, 9, vcc")
            poll_until(Q, vsy, sWS, "cnt")
            k(f"s_sub_u32 s{s_tmp}, s{s_wq}, 2"); k(f"s_lshl_b32 s{s_tmp}, s{s_tmp}, 6")
            k(f"s_add_u32 s{s_tmp}, s{s_tmp}, s{s_r0}")
            k(f"s_lshl_b32 s{s_tmp}, s{s_tmp}, 3")
            k(f"s_add_u32 s{s_tmp}, s{s_tmp}, {XSTAT - WS_STAT}")
            k(f"v_lshlrev_b32 v{vt}, 3, v{vlane}")
            Q(f"buffer_load_dwordx2 {v(vxs, 2)}, v{vt}, s[{sWS}:{sWS+3}], s{s_tmp} offen sc1", "ld")
            load_cs(hb, 0, vt, vt2, Q)
        if b == 8:
            Q.wait("ld")
            reduce_cs(hb, 0, vt, None)
            k(f"s_sub_u32 s{s_tmp}, s{s_wq}, 2"); k(f"s_lshl_b32 s{s_tmp}, s{s_tmp}, 8")
            k(f"v_lshlrev_b32 v{vt}, 2, v{vlane}")
            k(f"v_add_u32 v{vt}, s{s_tmp}, v{vt}")
            k(f"ds_write_b32 v{vt}, v{vxs} offset:{XM}")
            k(f"ds_write_b32 v{vt}, v{vxs + 1} offset:{XR}")
    def bloop(Q, issue, pre, isx):
        issue(PL[-1][0]); side_setup(Q); issue(PL[-1][1])
        for b in range(9):
            Q.wait(f"{pre}{b}")
            k("s_waitcnt lgkmcnt(0)")
            k("s_barrier")
            for s_ in PL[b]: issue(s_)
            capture(b)
            side(Q, b, isx)
        k("s_waitcnt vmcnt(0)")
    k(f"s_cmp_ge_u32 s{s_wq}, 2")
    k(f"s_cbranch_scc1 {LX}")
    Q = VMQ(k)
    srd(k, sWi, 6, 7, -BIAS, 576 * 4608 * 2 + BIAS)
    k(f"s_mul_i32 s{s_t2}, s{s_cg}, 288")
    k(f"s_add_u32 s{s_t2}, s{s_t2}, 4608")
    w_voffsets(vD, [(j, (j % 4) * 1024) for j in range(9)], s_t2)
    k(f"s_lshl_b32 s{s_k}, s{s_rot}, 1"); k(f"s_add_u32 s{s_k}, s{s_k}, s{s_wq}"); k(f"s_mul_i32 s{s_k}, s{s_k}, {32 * 9216}")
    k(f"s_mul_i32 s{s_mb}, s{s_wq}, {ZU}")
    def wissue(step):
        if step == 9:
            for j in range(9): k(f"v_subrev_u32 v{vD[j]}, 4608, v{vD[j]}")
        b0 = (2 * step) % 9
        if b0 == 8:
            k(f"s_cmp_eq_u32 s{s_wq}, 0"); k(f"s_cselect_b32 s{s_t3}, {8 * ZU}, 0"); k(f"s_add_u32 s{s_t3}, s{s_t3}, {WBASE}")
        else:
            k(f"s_add_u32 s{s_t3}, s{s_mb}, {WBASE + b0 * ZU}")
        for j in range(9):
            if j % 4 == 0: k(f"s_add_u32 m0, s{s_t3}, {(j // 4) * 4096}")
            Q(f"buffer_load_dwordx4 v{vD[j]}, s[{sWi}:{sWi+3}], s{s_k} offen offset:{(j % 4) * 1024} lds", f"w{step}")
        k(f"s_add_u32 s{s_k}, s{s_k}, {64 * 9216}")
        k(f"s_cmp_ge_u32 s{s_k}, {576 * 9216}"); k(f"s_cselect_b32 s{s_tmp}, {576 * 9216}, 0"); k(f"s_sub_u32 s{s_k}, s{s_k}, s{s_tmp}")
    bloop(Q, wissue, "w", False)
    k(f"s_branch {Ljoin}")
    k(f"{LX}:")
    Q2 = VMQ(k)
    k(f"s_sub_u32 s{s_tmp}, s{s_wq}, 2")
    k(f"s_lshl_b32 s{s_t2}, s{s_tmp}, 13")
    k(f"s_add_u32 s{s_t2}, s{s_t2}, {XBASE}")
    k(f"s_lshl_b32 s{s_tmp}, s{s_tmp}, 6")
    k(f"s_add_u32 s{s_tmp}, s{s_tmp}, s{s_r0}")
    k(f"s_lshl_b32 s{s_k}, s{s_rot}, 7")
    k(f"v_lshrrev_b32 v{vt}, 3, v{vlane}")
    k(f"v_and_b32 v{vt2}, 3, v{vt}")
    k(f"v_xor_b32 v{vt2}, v{vt2}, v{vlane}")
    k(f"v_and_b32 v{vt2}, 7, v{vt2}")
    k(f"v_add_u32 v{vt}, s{s_tmp}, v{vt}")
    k(f"v_mul_u32_u24 v{vt}, 1152, v{vt}")
    for j in range(8):
        k(f"v_xor_b32 v{vt3}, {4 * (j & 1)}, v{vt2}")
        k(f"v_lshl_add_u32 v{vt3}, v{vt3}, 4, v{vt}")
        k(f"v_add_u32 v{vD[j]}, {BIAS + j * 8 * 1152 - (j % 4) * 1024}, v{vt3}")
    def xissue(it):
        if it > 8: return
        base = (it % NX) * XS
        for j in range(8):
            if j % 4 == 0: k(f"s_add_u32 m0, s{s_t2}, {base + (j // 4) * 4096}")
            Q2(f"buffer_load_dwordx4 v{vD[j]}, s[{sX}:{sX+3}], s{s_k} offen offset:{(j % 4) * 1024} lds", f"x{it}")
        k(f"s_add_u32 s{s_k}, s{s_k}, 128")
        k(f"s_cmp_eq_u32 s{s_k}, 1152")
        k(f"s_cselect_b32 s{s_k}, 0, s{s_k}")
    bloop(Q2, xissue, "x", True)
    k(f"{Ljoin}:")
    for i in range(72): k(f"v_mov_b32 v{acc1 + i}, 0")
    k("s_waitcnt lgkmcnt(0)")
    ringB = 224; RB = 6
    NRB = 18
    covB = {'c': -1}
    def ubase(u):
        if u < 6: return u * ZU
        if u < 13: return ZRING + (u - 6) * ZU
        return {13: 6, 14: 7, 15: 8, 16: 0, 17: 1}[u] * ZU
    def rdB(q):
        u, j = divmod(q, NRB)
        if j == 0 and u in (0, 6, 10, 14):
            if u > 0 and covB['c'] < u * NRB - NRB - 1:
                k(f"s_waitcnt lgkmcnt({q - (u * NRB - NRB - 1) - 1})"); covB['c'] = u * NRB - NRB - 1
            k("s_barrier")
        if u >= 18: return
        if j == 0: k(f"v_add_u32 v{vWa}, {ubase(u)}, v{vtr}")
        t, half = divmod(j, 2)
        k(f"ds_read_b64_tr_b16 {v(ringB + 4 * ((u * 9 + t) % RB) + 2 * half, 2)}, v{vWa} offset:{t * 32 + half * 2304}")
    LAMB = 6
    def needB(m):
        u, r = divmod(m, NM)
        return u * NRB + (r // 2) * 2 + 1
    issued = 0
    while issued <= needB(LAMB - 1):
        rdB(issued); issued += 1
    st(2)
    TOTB = 18 * NRB
    for u in range(18):
        for t in range(9):
            m0 = u * NM + t * 2
            if needB(m0) > covB['c']:
                tgt = needB(m0)
                k(f"s_waitcnt lgkmcnt({min(issued, TOTB) - tgt - 1})"); covB['c'] = tgt
            for mu in range(2):
                C = v(A1(t, mu), 4)
                if 'nomfma' not in opts:
                    k(f"v_mfma_f32_16x16x32_bf16 {C}, {v(ringB + 4 * ((u * 9 + t) % RB), 4)}, {v(XR_(u, mu), 4)}, {C}")
                n = 0
                while issued <= min(needB(m0 + mu + LAMB), TOTB) and n < 2:
                    if issued < TOTB:
                        assert issued // 2 - RB < u * 9 + t
                    rdB(issued); issued += 1; n += 1
    assert issued == TOTB + 1
    st(3)
    k(f"s_mul_i32 s{s_tmp}, s{s_wq}, 10240")
    k(f"s_add_u32 s{s_tmp}, s{s_tmp}, {XBASE}")
    k(f"v_add_u32 v{vt}, s{s_tmp}, v{vl16}")
    for j, r in enumerate(HO):
        k(f"ds_write_b128 v{vt}, {v(r, 4)} offset:{j * 1024}")
    srd(k, sWS, 42, 43, WS_STAT, 0x200000)
    k(f"s_mul_i32 s{s_tmp}, s{s_wq}, 6144"); k(f"s_add_u32 s{s_tmp}, s{s_tmp}, {WBASE + 2 * ZU}")
    k(f"v_add_u32 v{vt}, s{s_tmp}, v{vl16}")
    k("s_waitcnt lgkmcnt(4)")
    for j, r in enumerate(HO2): k(f"ds_read_b128 {v(r, 4)}, v{vt} offset:{j * 1024}")
    k("s_waitcnt lgkmcnt(0)")
    z2_setup(TB)
    for j, i in enumerate(TB): z2_tile(i, j)
    z2_publish()
    st(4)
    k("s_barrier")

    k(f"{Lz1}:")
    ob = [csv, csv + 4]
    srd(k, sZ1, 42, 43, WS_Z1, 2048 * 2304 * 2)
    srd(k, sZ2, 42, 43, WS_Z2T, 2048 * 2304 * 2)
    k(f"v_lshrrev_b32 v{t0}, 2, v{vn}")
    k(f"v_and_b32 v{t1}, 3, v{vn}")
    k(f"v_lshl_add_u32 v{t0}, v{t0}, 3, v{t1}")
    k(f"s_lshl_b32 s{s_tmp}, s{s_wq}, 7")
    k(f"v_lshlrev_b32 v{va3}, 2, v{t0}")
    k(f"v_add_u32 v{va3}, s{s_tmp}, v{va3}")
    for mu in range(2):
        k(f"ds_read_b32 v{sa + 8 * mu}, v{va3} offset:{XM + 16 * mu}")
        k(f"ds_read_b32 v{sa + 8 * mu + 2}, v{va3} offset:{XR + 16 * mu}")
    k(f"s_lshl_b32 s{s_tmp}, s{s_rb}, 3")
    k(f"s_lshl_b32 s{s_t2}, s{s_wq}, 1")
    k(f"s_add_u32 s{s_tmp}, s{s_tmp}, s{s_t2}")
    k(f"s_lshl_b32 s{s_tmp}, s{s_tmp}, 3")
    k(f"s_lshr_b32 s{s_t2}, s{s_cg}, 1")
    k(f"s_add_u32 s{s_tmp}, s{s_tmp}, s{s_t2}")
    k(f"s_mul_i32 s{s_tmp}, s{s_tmp}, 9216")
    k(f"v_add_u32 v{va2}, s{s_tmp}, v{vl16}")
    k(f"v_add_u32 v{va1}, {8 * 9216}, v{va2}")
    k(f"s_and_b32 s{s_t2}, s{s_cg}, 1")
    k(f"s_lshl_b32 s{s_k}, s{s_t2}, 12")
    k(f"s_lshl_b32 s{s_t2}, s{s_t2}, 3")
    k(f"s_add_u32 s{s_t2}, s{s_t2}, 8192")
    k(f"v_lshlrev_b32 v{va3}, 4, v{vg}")
    k("s_waitcnt lgkmcnt(0)")
    for mu in range(2):
        b_ = sa + 8 * mu
        k(f"v_mul_f32 v{b_ + 4}, {hex(f2u(D0))}, v{b_ + 2}")
        k(f"v_mul_f32 v{b_ + 6}, v{b_ + 2}, v{b_ + 2}")
        k(f"v_mul_f32 v{b_ + 6}, v{b_ + 6}, v{b_ + 2}")
        k(f"v_mul_f32 v{b_ + 6}, {hex(f2u(D1))}, v{b_ + 6}")
        for e in range(0, 8, 2): k(f"v_mov_b32 v{b_ + e + 1}, v{b_ + e}")
    def z1_item(qa, qb, mA, mB, ca, cb, out):
        Qd = [(qa, mA, ca), (qa + 2, mA, ca + 2), (qb, mB, cb), (qb + 2, mB, cb + 2)]
        lo = "op_sel:[0,0,0] op_sel_hi:[0,1,1]"
        for j, (q_, m_, c_) in enumerate(Qd):
            k(f"v_pk_fma_f32 {P2(q_)}, {P2(sa + 8 * m_)}, {P2(c_)}, {P2(q_)} neg_lo:[1,0,0] neg_hi:[1,0,0]")
        for j, (q_, m_, c_) in enumerate(Qd): k(f"v_pk_mul_f32 {P2(T + 2 * j)}, {P2(q_)}, {P2(q_)}")
        for j, (q_, m_, c_) in enumerate(Qd):
            k(f"v_pk_fma_f32 {P2(T + 2 * j)}, {P2(T + 2 * j)}, {P2(sa + 8 * m_ + 6)}, {P2(sa + 8 * m_ + 4)}")
        for j, (q_, m_, c_) in enumerate(Qd): k(f"v_pk_mul_f32 {P2(T + 2 * j)}, {P2(T + 2 * j)}, {P2(q_)}")
        for r in range(8): k(f"v_exp_f32 v{T + r}, v{T + r}")
        for j, (q_, m_, c_) in enumerate(Qd): k(f"v_pk_mul_f32 {P2(q_)}, {P2(q_)}, {P2(sa + 8 * m_ + 2)}")
        for j in range(4): k(f"v_pk_add_f32 {P2(T + 2 * j)}, {P2(T + 2 * j)}, {P2(one)}")
        for r in range(8): k(f"v_rcp_f32 v{T + r}, v{T + r}")
        for j, (q_, m_, c_) in enumerate(Qd): k(f"v_pk_mul_f32 {P2(q_)}, {P2(q_)}, {P2(T + 2 * j)}")
        for j, (q_, m_, c_) in enumerate(Qd): k(f"v_cvt_pk_bf16_f32 v{out + j}, v{q_}, v{q_ + 1}")
    def poll_issue():
        k(f"v_mov_b32 v{t1}, s{s_t3}")
        k(f"buffer_load_dword v{t0}, v{t1}, s[{sWS}:{sWS+3}], 0 offen sc1")
    def z1_epi(pairs, last, after_arrive=None):
        for a_ in pairs:
            k(f"ds_read_b128 {v(cA, 4)}, v{va3} offset:{CS + 576 + 128 * a_}")
            k(f"ds_read_b128 {v(cB, 4)}, v{va3} offset:{CS + 576 + 128 * a_ + 64}")
            k("s_waitcnt lgkmcnt(0)")
            for mu in range(2):
                if fused:
                    z1_item(A1(2 * a_, mu), A1(2 * a_ + 1, mu), mu, mu, cA, cB, ZP + 8 * mu + 4 * (a_ % 2))
                    if a_ == pairs[0] and mu == 1:
                        z2_arrive(0)
                        if after_arrive: after_arrive()
                    continue
                z1_item(A1(2 * a_, mu), A1(2 * a_ + 1, mu), mu, mu, cA, cB, ob[mu])
                k(f"buffer_store_dwordx4 {v(ob[mu], 4)}, v{va1 if mu else va2}, s[{sZ1}:{sZ1+3}], s{s_k} offen offset:{1024 * a_}{SM}")
                if a_ == pairs[0] and mu == 0:
                    z2_arrive(1)
                    if after_arrive: after_arrive()
        if last:
            k(f"ds_read_b128 {v(cA, 4)}, v{va3} offset:{CS + 576 + 512}")
            k("s_waitcnt lgkmcnt(0)")
            z1_item(A1(8, 0), A1(8, 1), 0, 1, cA, cA, ZP + 16 if fused else X)
            for mu in range(0 if fused else 2):
                k(f"buffer_store_dwordx2 {v(X + 2 * mu, 2)}, v{va1 if mu else va2}, s[{sZ1}:{sZ1+3}], s{s_t2} offen{SM}")
    LzB = k.label('z1B'); Lfin = k.label('fin')
    KV = 'nokv' not in opts
    KS = [60, 61, 62, 63, 64]
    if KV:
        k(f"s_load_dwordx4 s[8:11], s[0:1], {KA['k']}")
        k("s_waitcnt lgkmcnt(0)")
        srd(k, 24, 10, 11, 0, 2048 * 1152)
        srd(k, 12, 8, 9, -3456, 2048 * 1152 + 3456)
        srd(k, 8, 42, 43, WS_KVT, 576 * 4096)
    RA = dict(K=80, W=100 - 4 + 4, t=vt, t2=vt2, t3=vt3)
    RA = dict(K=80, W=132, t=vt, t2=vt2, t3=vt3)
    k(f"s_cmp_eq_u32 s{s_role}, 1")
    k(f"s_cbranch_scc1 {LzB}")
    RA = dict(K=80, W=100, t=vt, t2=vt2, t3=vt3, w=112, acc=X, pr=T, tp=csv)
    k.kvA = True
    nkv = 0
    z1_epi([2, 3], True, (lambda: jobs.kv8_loads(k, dict(K=80, W=d0r, t=vt, t2=vt2, t3=vt3), False, 2, s_wave, s_wq, 12, 24, 44, vlane, KS)) if KV else None)
    RA = dict(K=80, W=d0r, t=vt, t2=vt2, t3=vt3, w=112, acc=X, pr=T, tp=csv)
    poll_issue()
    if KV:
        k(f"s_mov_b32 s{KS[3]}, {WBASE + 4096}")
        k(f"s_waitcnt vmcnt({1 if fused else 6})")
        jobs.kv8_compute(k, RA, False, s_wave, s_wq, vlane, ZSL, KS, sONE)
        k("s_waitcnt lgkmcnt(0)")
        k("s_barrier")
        jobs.kv8_store(k, RA, s_wave, vlane, vn, vg, 8, KS, SM if fused else '')
    k(f"s_branch {Lfin}")
    k(f"{LzB}:")
    RB_ = dict(K=8, W=d0r, K2=28, W2=112, t=vt, t2=vt2, t3=vt3, w=80, acc=X, pr=T, tp=csv)
    z1_epi([0, 1], False, (lambda: jobs.kv8_loads(k, RB_, True, 2, s_wave, s_wq, 12, 24, 44, vlane, KS)) if KV else None)
    poll_issue()
    if KV:
        k(f"s_mov_b32 s{KS[3]}, {WBASE + 4096}")
        k(f"s_waitcnt vmcnt({1 if fused else 4})")
        jobs.kv8_compute(k, RB_, True, s_wave, s_wq, vlane, ZSL, KS, sONE)
        k("s_waitcnt lgkmcnt(0)")
        k("s_barrier")
        jobs.kv8_store(k, RB_, s_wave, vlane, vn, vg, 8, KS, SM if fused else '')
    k(f"{Lfin}:")
    npre = fused.wprefetch(k) if fused else 0
    st(5)
    pl = acc1
    Lp = k.label('poll'); Lpo = k.label('pollok')
    k(f"s_waitcnt vmcnt({(2 if KV else 0) + npre})")
    k(f"{Lp}:")
    k(f"v_readfirstlane_b32 s{s_tmp}, v{t0}")
    k(f"s_cmp_ge_u32 s{s_tmp}, 16")
    k(f"s_cbranch_scc1 {Lpo}")
    k(f"buffer_load_dword v{t0}, v{t1}, s[{sWS}:{sWS+3}], 0 offen sc1")
    k("s_waitcnt vmcnt(0)")
    k(f"s_branch {Lp}")
    k(f"{Lpo}:")
    st(6)
    k(f"s_lshl_b32 s{s_tmp}, s{s_rb}, 15")
    k(f"s_lshl_b32 s{s_t2}, s{s_wq}, 8")
    k(f"s_add_u32 s{s_tmp}, s{s_tmp}, s{s_t2}")
    k(f"v_lshlrev_b32 v{t0}, 10, v{vg}")
    k(f"v_lshl_add_u32 v{t0}, v{vn}, 4, v{t0}")
    k(f"v_add_u32 v{t0}, s{s_tmp}, v{t0}")
    for j in range(8):
        k(f"s_mov_b32 s{s_t2}, {4096 * j}")
        k(f"buffer_load_dwordx4 {v(pl + 4 * j, 4)}, v{t0}, s[{sWS}:{sWS+3}], s{s_t2} offen sc1")
    for j in range(1, 8):
        k(f"s_waitcnt vmcnt({7 - j})")
        for c in range(0, 4, 2): k(f"v_pk_add_f32 {P2(pl + c)}, {P2(pl + c)}, {P2(pl + 4 * j + c)}")
    for op in ("v_permlane32_swap_b32", "v_permlane16_swap_b32"):
        for c in range(4): k(f"v_mov_b32 v{pl + 4 + c}, v{pl + c}")
        for c in range(4): k(f"{op} v{pl + c}, v{pl + 4 + c}")
        for c in range(4): k(f"v_add_f32 v{pl + c}, v{pl + c}, v{pl + 4 + c}")
    ln_finish(k, pl, pl + 1, 2304, t0)
    ln_finish(k, pl + 2, pl + 3, 2304, t0)
    k(f"s_lshl_b32 s{s_tmp}, s{s_wave}, 8")
    k(f"v_lshlrev_b32 v{t0}, 4, v{vn}")
    k(f"v_add_u32 v{t0}, s{s_tmp}, v{t0}")
    k(f"ds_write_b128 v{t0}, {v(pl, 4)} offset:{WBASE}")
    k(f"v_lshlrev_b32 v{t1}, 6, v{vg}")
    k(f"v_add_u32 v{t1}, s{s_tmp}, v{t1}")
    k("s_waitcnt lgkmcnt(0)")
    for j in range(4):
        k(f"ds_read_b128 {v(zS + 4 * j, 4)}, v{t1} offset:{WBASE + 16 * j}")
    k(f"s_lshl_b32 s{s_tmp}, s{s_cg}, 6")
    k(f"s_lshl_b32 s{s_t2}, s{s_rb}, 2")
    k(f"s_add_u32 s{s_tmp}, s{s_tmp}, s{s_t2}")
    k(f"s_add_u32 s{s_tmp}, s{s_tmp}, s{s_wq}")
    k(f"s_mul_i32 s{s_tmp}, s{s_tmp}, 9216")
    k(f"v_add_u32 v{va2}, s{s_tmp}, v{vl16}")
    k("s_waitcnt lgkmcnt(0)")
    for r in range(8):
        k(f"v_mul_f32 v{X + r}, v{xr + r}, v{zS + 2 * r + 1}")
        k(f"v_mul_f32 v{T + r}, -v{zS + 2 * r}, v{zS + 2 * r + 1}")
    def z2b(tiles):
        for i in tiles:
            a_ = A2(i, 0)
            for r in range(0, 8, 2): k(f"v_pk_fma_f32 {P2(a_ + r)}, {P2(a_ + r)}, {P2(X + r)}, {P2(T + r)}")
            for j in range(4): k(f"v_cvt_pk_bf16_f32 v{a_ + j}, v{a_ + 2 * j}, v{a_ + 2 * j + 1}")
            k(f"s_movk_i32 s{s_k}, {1024 * i}")
            k(f"buffer_store_dwordx4 {v(a_, 4)}, v{va2}, s[{sZ2}:{sZ2+3}], s{s_k} offen{SM}")
    LBend = k.label('bend'); LfB = k.label('finB')
    k(f"s_cmp_eq_u32 s{s_role}, 1")
    k(f"s_cbranch_scc1 {LfB}")
    z2b(TA)
    k(f"s_branch {LBend}")
    k(f"{LfB}:")
    z2b(TB)
    if 'iter' in opts: k("s_endpgm")
    k(f"{LBend}:")
    if 'iter' in opts:
        k("s_cmp_lg_u32 s2, 77"); k(f"s_cbranch_scc1 {Lend}")
        k(f"s_cmp_lg_u32 s{s_wave}, 0"); k(f"s_cbranch_scc1 {Lend}")
        srd(k, 88, 42, 43, WS_STAMP, 256)
        k(f"v_lshlrev_b32 v246, 2, v{vlane}")
        k("buffer_store_dword v247, v246, s[88:91], 0 offen")
        k("s_endpgm")
    if fused:
        fused.rest(k, st, Lend)
    else:
        st.flush(Lend, t0)
    k(f"{Lend}:")
    k("s_endpgm")
    k.lds = LDS
    return k

if __name__ == "__main__":
    import sys
    opts = sys.argv[2:]
    k = gen_k1(opts=opts)
    build_file(["; k1 test"], [(k, 256, 512, k.lds)], [k], sys.argv[1])
```

```python
from common import *
import jobs

def getopt(opts, key, default):
    x = [o.split('=')[1] for o in opts if o.startswith(key + '=')]
    return int(x[0]) if x else default

ZU = 9216
WSL = 16384
def gen_k2(name="k2_kernel", opts=(), side=None):
    k = Kernel(name); k.check = not [o for o in opts if o in ('nomfma', 'noload', 'stamp', 'once')]
    NOMFMA = 'nomfma' in opts
    NOLOAD = 'noload' in opts
    SM = ' sc1' if 'wsc1' in opts else (' nt' if 'wnt' in opts else (' sc0 sc1' if 'wsc01' in opts else ''))
    ZS = ' sc1' if 'zsc1' in opts else ''
    NU = 9; NW = 4; AHEAD = 4
    CNT = getopt(opts, 'cnt', 32)
    LAM = getopt(opts, 'LAM', 8)
    WG = getopt(opts, 'WG', 2)
    ZRING = NU * ZU
    RING = ZRING + NW * WSL
    sW, sZ, sZ1, sP, sB = 8, 12, 16, 20, 24
    s_wave, s_role, s_wq, s_t0, s_fb, s_m0z, s_m0w, s_kz, s_kw, s_cnt, s_tmp, s_off, s_offw = 28, 29, 30, 31, 32, 33, 34, 35, 36, 37, 38, 39, 44
    Lend = k.label('end'); Lload = k.label('loader'); LB = k.label('consB')
    k(f"s_cmp_ge_u32 s2, 256")
    k(f"s_cbranch_scc1 {Lend}")
    k(f"s_load_dwordx4 s[4:7], s[0:1], {KA['wsp']}")
    k(f"s_load_dwordx2 s[40:41], s[0:1], {KA['ws']}")
    va = Alloc(1, 168)
    vlane = va.get(); vt = va.get(); vt2 = va.get(); vt3 = va.get(); vn = va.get(); vg = va.get(); vl16 = va.get()
    k(f"v_lshrrev_b32 v{vt}, 6, v0")
    k(f"v_and_b32 v{vlane}, 63, v0")
    k(f"v_readfirstlane_b32 s{s_wave}, v{vt}")
    k(f"v_and_b32 v{vn}, 15, v{vlane}")
    k(f"v_lshrrev_b32 v{vg}, 4, v{vlane}")
    k(f"v_lshlrev_b32 v{vl16}, 4, v{vlane}")
    k(f"s_lshr_b32 s{s_role}, s{s_wave}, 2")
    k(f"s_and_b32 s{s_wq}, s{s_wave}, 3")
    k(f"s_and_b32 s{s_tmp}, s2, 1")
    k(f"s_lshl_b32 s{s_tmp}, s{s_tmp}, 3")
    k(f"s_bfe_u32 s{s_t0}, s2, 0x30003")
    k(f"s_add_u32 s{s_t0}, s{s_t0}, s{s_tmp}")
    k(f"s_lshl_b32 s{s_t0}, s{s_t0}, 7")
    k(f"s_bfe_u32 s{s_tmp}, s2, 0x20001")
    k(f"s_lshl_b32 s{s_tmp}, s{s_tmp}, 2")
    k(f"s_lshr_b32 s{s_fb}, s2, 6")
    k(f"s_add_u32 s{s_fb}, s{s_fb}, s{s_tmp}")
    k(f"s_mov_b32 s{s_off}, 0")
    k(f"s_mov_b32 s{s_offw}, 0")
    k(f"s_mov_b32 s{s_cnt}, 0")
    st = Stamps(k, 'stamp' in opts, s_wave, span=(2 if 'span' in opts else None))
    if 'span' in opts: k.check = False
    for i_ in range(7): st(i_)
    save = va.n
    k(f"s_cmp_eq_u32 s{s_role}, 2")
    k(f"s_cbranch_scc1 {Lload}")

    vz = va.get(20, 4); vb = va.get(2, 2); vo1 = va.get(); vo2 = va.get(); vtrow = va.get()
    acc = va.get(40, 4)
    vZ = va.get(); vWb = va.get(); vW = va.get(); vW1 = va.get()
    ring = va.get(40, 4)
    wreg = va.get(16, 4)
    k(f"v_lshrrev_b32 v{vt3}, 2, v{vn}")
    k(f"v_and_b32 v{vt2}, 3, v{vn}")
    k(f"v_lshl_add_u32 v{vt3}, v{vt3}, 3, v{vt2}")
    k(f"v_xor_b32 v{vt}, v{vg}, v{vn}")
    k(f"v_and_b32 v{vt}, 7, v{vt}")
    k(f"v_lshlrev_b32 v{vt}, 4, v{vt}")
    k(f"v_lshl_add_u32 v{vt}, v{vt3}, 7, v{vt}")
    k(f"s_lshl_b32 s{s_tmp}, s{s_wq}, 12")
    k(f"s_add_u32 s{s_tmp}, s{s_tmp}, {ZRING}")
    k(f"v_add_u32 v{vWb}, s{s_tmp}, v{vt}")
    for i in range(40):
        k(f"v_mov_b32 v{acc+i}, 0")
    k(f"s_lshl_b32 s{s_tmp}, s{s_wq}, 5")
    k(f"s_add_u32 s{s_tmp}, s{s_tmp}, s{s_t0}")
    k(f"v_add_u32 v{vtrow}, s{s_tmp}, v{vt3}")
    k(f"v_lshlrev_b32 v{vtrow}, 1, v{vtrow}")
    k(f"s_lshr_b32 s{s_tmp}, s{s_tmp}, 4")
    k(f"s_lshl_b32 s{s_tmp}, s{s_tmp}, 3")
    k(f"s_lshr_b32 s42, s{s_fb}, 1")
    k(f"s_add_u32 s{s_tmp}, s{s_tmp}, s42")
    k(f"s_mul_i32 s{s_tmp}, s{s_tmp}, 9216")
    k(f"s_and_b32 s42, s{s_fb}, 1")
    k(f"s_lshl_b32 s43, s42, 12")
    k(f"s_add_u32 s43, s43, s{s_tmp}")
    k(f"s_lshl_b32 s45, s{s_role}, 11")
    k(f"s_add_u32 s43, s43, s45")
    k(f"v_add_u32 v{vo1}, s43, v{vl16}")
    k(f"s_lshl_b32 s42, s42, 3")
    k(f"s_add_u32 s42, s42, s{s_tmp}")
    k(f"s_add_u32 s42, s42, 8192")
    k(f"v_add_u32 v{vo2}, s42, v{vl16}")
    k(f"s_mov_b32 s46, {8 * 9216}")
    k("s_waitcnt lgkmcnt(0)")
    srd(k, sZ1, 40, 41, WS_Z1, 2048 * 2304 * 2)
    srd(k, sP, 40, 41, WS_P, 2048 * 2304 * 2)
    srd(k, sB, 6, 7, 0, 4096)
    if 'nocpre' not in opts:
        BIAS_ = 4096
        srd(k, sZ, 40, 41, WS_Z2T, 2304 * 2048 * 2)
        srd(k, sW, 4, 5, -BIAS_, 2048 * 2048 * 2 + BIAS_)
        k(f"s_lshl_b32 s{s_tmp}, s{s_wave}, 4"); k(f"s_add_u32 s{s_tmp}, s{s_tmp}, s{s_t0}")
        k(f"v_lshrrev_b32 v{vt}, 3, v{vlane}")
        k(f"v_and_b32 v{vt2}, 3, v{vt}")
        k(f"v_xor_b32 v{vt2}, v{vt2}, v{vlane}")
        k(f"v_and_b32 v{vt2}, 7, v{vt2}")
        k(f"v_add_u32 v{vt}, s{s_tmp}, v{vt}")
        k(f"v_lshlrev_b32 v{vt}, 12, v{vt}")
        k(f"v_lshl_add_u32 v{ring}, v{vt2}, 4, v{vt}")
        k(f"v_add_u32 v{ring}, {BIAS_}, v{ring}")
        k(f"v_xor_b32 v{vt2}, 4, v{vt2}")
        k(f"v_lshl_add_u32 v{ring + 1}, v{vt2}, 4, v{vt}")
        k(f"v_add_u32 v{ring + 1}, {BIAS_ + 8 * 4096 - 1024}, v{ring + 1}")
        k(f"s_lshl_b32 s42, s{s_wave}, 11"); k(f"s_add_u32 s42, s42, {ZRING}")
        k(f"s_mul_i32 s{s_tmp}, s{s_fb}, 589824")
        k(f"v_add_u32 v{ring + 2}, s{s_tmp}, v{vl16}")
        k(f"s_add_u32 s43, s{s_wave}, 2"); k(f"s_mul_i32 s43, s43, {ZU}")
        k(f"s_cmp_lt_u32 s{s_wave}, 6")
        Lnz = k.label('noz')
        for stp in (1, 2, 3):
            k(f"s_add_u32 m0, s42, {stp * WSL}") if False else None
        for stp in (1,):
            pass
        k(f"s_cbranch_scc0 {Lnz}")
        for j in range(9):
            if j % 4 == 0:
                k(f"s_add_u32 m0, s43, {(j // 4) * 4096}")
                k(f"s_add_u32 s45, s43, {(j // 4) * 4096}")
            k(f"buffer_load_dwordx4 v{ring + 2}, s[{sZ}:{sZ+3}], s45 offen offset:{(j % 4) * 1024} lds")
        k(f"{Lnz}:")
        for stp in (1, 2, 3):
            k(f"s_add_u32 m0, s42, {stp * WSL}")
            k(f"s_movk_i32 s45, {128 * stp}")
            k(f"buffer_load_dwordx4 v{ring}, s[{sW}:{sW+3}], s45 offen lds")
            k(f"buffer_load_dwordx4 v{ring + 1}, s[{sW}:{sW+3}], s45 offen offset:1024 lds")
    k(f"s_cmp_eq_u32 s{s_role}, 1")
    k(f"s_cbranch_scc1 {LB}")

    def consumer(tiles):
        NT = len(tiles)
        R = 2 * NT
        NRD = NT + 2
        NM = 2 * NT
        cov = {'c': -1}
        def rd(q):
            u, j = divmod(q, NRD)
            if j == 0:
                if u % 2 == 0:
                    if u > 0 and cov['c'] < (u - 1) * NRD + 1:
                        k(f"s_waitcnt lgkmcnt({q - ((u - 1) * NRD + 1) - 1})")
                        cov['c'] = (u - 1) * NRD + 1
                    if u > 0 and 'nocpre' not in opts: k("s_waitcnt vmcnt(0)")
                    k("s_barrier")
                    k(f"v_add_u32 v{vW}, s{s_offw}, v{vWb}")
            if j == 1 and u % 2 == 0:
                k(f"v_xor_b32 v{vW1}, 64, v{vW}")
            if j == 2:
                k(f"v_add_u32 v{vZ}, s{s_off}, v{vl16}")
            if j == 3:
                k(f"s_add_u32 s{s_off}, s{s_off}, {ZU}")
                if u % 2 == 0: k(f"s_add_u32 s{s_offw}, s{s_offw}, {WSL}")
            if j == 4:
                k(f"s_cmp_eq_u32 s{s_off}, {ZRING}")
                k(f"s_cselect_b32 s{s_off}, 0, s{s_off}")
            if j == 5 and u % 2 == 0:
                k(f"s_and_b32 s{s_offw}, s{s_offw}, {NW * WSL - 1}")
            if j < 2:
                k(f"ds_read_b128 {v(wreg + ((u % 2) * 2 + j) * 4, 4)}, v{vW1 if u % 2 else vW} offset:{j * 512}")
            else:
                k(f"ds_read_b128 {v(ring + 4 * ((u * NT + j - 2) % R), 4)}, v{vZ} offset:{tiles[j - 2] * 1024}")
        def need(m):
            u, r = divmod(m, NM)
            return u * NRD + 2 + r // 2
        iss = need(LAM - 1) + 1
        for m in range(2 * NM * 3):
            if iss <= need(m + LAM): iss += 1
            if (m + 1) % (2 * NM) == 0: steady = iss - ((m + 1) // (2 * NM)) * 2 * NRD
        for q in range(steady):
            rd(q)
        for nu in range(2):
            so = "0" if nu == 0 else "s46"
            for a_ in range(2):
                k(f"buffer_load_dwordx4 {v(vz + 8 * nu + 4 * a_, 4)}, v{vo1}, s[{sZ1}:{sZ1+3}], {so} offen offset:{1024 * a_}")
            if NT == 5:
                k(f"buffer_load_dwordx2 {v(vz + 16 + 2 * nu, 2)}, v{vo2}, s[{sZ1}:{sZ1+3}], {so} offen")
            k(f"buffer_load_ushort v{vb + nu}, v{vtrow}, s[{sB}:{sB+3}], 0 offen offset:{8 * nu}")
        st(2)
        if st.on: k("s_waitcnt lgkmcnt(0)")
        issued = steady
        Lloop = k.label('loop')
        k(f"{Lloop}:")
        for h in range(2):
            for i in range(NT):
                m0 = h * NM + i * 2
                if need(m0) > cov['c']:
                    tgt = min(need(min(m0 + 2 * (WG - 1), h * NM + NM - 1)), issued - 1)
                    k(f"s_waitcnt lgkmcnt({issued - tgt - 1})")
                    cov['c'] = tgt
                A = v(ring + 4 * ((h * NT + i) % R), 4)
                for nu in range(2):
                    B = v(wreg + (h * 2 + nu) * 4, 4)
                    C = v(acc + (i * 2 + nu) * 4, 4)
                    if not NOMFMA:
                        k(f"v_mfma_f32_16x16x32_bf16 {C}, {A}, {B}, {C}")
                    if issued <= need(m0 + nu + LAM):
                        u2, j2 = divmod(issued, NRD)
                        if j2 >= 2:
                            assert (u2 * NT + j2 - 2) - R < h * NT + i, "ring too small"
                        rd(issued); issued += 1
        assert issued == steady + 2 * NRD
        if 'iter' in opts:
            k("s_memtime s[94:95]")
            k("s_waitcnt lgkmcnt(0)")
            k("s_sub_u32 s94, s94, s70")
            k(f"s_mov_b32 m0, s{s_cnt}")
            k(f"v_writelane_b32 v160, s94, m0")
        k(f"s_add_u32 s{s_cnt}, s{s_cnt}, 1")
        k(f"s_cmp_lt_u32 s{s_cnt}, {CNT}")
        k(f"s_cbranch_scc1 {Lloop}")
        st(3)
        k("s_waitcnt vmcnt(0) lgkmcnt(0)")
        st(5)
        for nu in range(2):
            k(f"v_lshlrev_b32 v{vb + nu}, 16, v{vb + nu}")
        T = ring
        for nu in range(2):
            so = "0" if nu == 0 else "s46"
            for i in range(NT):
                X = [acc + (i * 2 + nu) * 4 + r for r in range(4)]
                zi = (vz + 8 * nu + 4 * (i // 2) + 2 * (i % 2)) if i < 4 else (vz + 16 + 2 * nu)
                tq = T + 8 * (i % 2)
                for pr in range(2): k(f"v_cvt_pk_bf16_f32 v{tq + pr}, v{X[2 * pr]}, v{X[2 * pr + 1]}")
                for pr in range(2):
                    k(f"v_lshlrev_b32 v{X[2 * pr]}, 16, v{tq + pr}")
                    k(f"v_and_b32 v{X[2 * pr + 1]}, 0xffff0000, v{tq + pr}")
                for r in range(4): k(f"v_add_f32 v{X[r]}, v{X[r]}, v{vb + nu}")
                for pr in range(2): k(f"v_cvt_pk_bf16_f32 v{tq + pr}, v{X[2 * pr]}, v{X[2 * pr + 1]}")
                for pr in range(2):
                    k(f"v_lshlrev_b32 v{X[2 * pr]}, 16, v{tq + pr}")
                    k(f"v_and_b32 v{X[2 * pr + 1]}, 0xffff0000, v{tq + pr}")
                    k(f"v_lshlrev_b32 v{tq + 2 + 2 * pr}, 16, v{zi + pr}")
                    k(f"v_and_b32 v{tq + 3 + 2 * pr}, 0xffff0000, v{zi + pr}")
                for r in range(4): k(f"v_mul_f32 v{X[r]}, v{X[r]}, v{tq + 2 + r}")
                for pr in range(2): k(f"v_cvt_pk_bf16_f32 v{zi + pr}, v{X[2 * pr]}, v{X[2 * pr + 1]}")
                if i < 4 and i % 2 == 1:
                    k(f"buffer_store_dwordx4 {v(vz + 8 * nu + 4 * (i // 2), 4)}, v{vo1}, s[{sP}:{sP+3}], {so} offen offset:{1024 * (i // 2)}{SM}")
                if i == 4:
                    k(f"buffer_store_dwordx2 {v(zi, 2)}, v{vo2}, s[{sP}:{sP+3}], {so} offen{SM}")
        st(6)
        if 'iter' in opts:
            k("s_cmp_lg_u32 s2, 77"); k(f"s_cbranch_scc1 {Lend}")
            k(f"s_cmp_lg_u32 s{s_wave}, 0"); k(f"s_cbranch_scc1 {Lend}")
            srd(k, 88, 40, 41, WS_STAMP, 256)
            k(f"v_lshlrev_b32 v161, 2, v{vlane}")
            k("buffer_store_dword v160, v161, s[88:91], 0 offen")
            k("s_endpgm")
        st.flush(Lend, 2)
        k("s_endpgm")
    consumer([0, 1, 2, 3, 8])
    k(f"{LB}:")
    consumer([4, 5, 6, 7])

    k(f"{Lload}:")
    va.n = save
    vDz = va.get(); vDw = [va.get() for _ in range(8)]
    BIAS = 4096
    LW = k.label('wload')
    k(f"s_setprio {getopt(opts, 'lprio', 3)}")
    JOBS = 'nojobs' not in opts
    JLB = RING
    s_tile = 45
    if JOBS:
        k(f"s_load_dwordx4 s[60:63], s[0:1], {KA['k']}")
        k(f"s_load_dwordx4 s[64:67], s[0:1], {KA['shk']}")
        k(f"s_load_dwordx2 s[46:47], s[0:1], {KA['wout']}")
    k("s_waitcnt lgkmcnt(0)")
    if JOBS:
        from k1 import SYNC, VMQ
        srd(k, 16, 60, 61, -3456, 2048 * 1152 + 3456)
        srd(k, 20, 62, 63, 0, 2048 * 1152)
        srd(k, 24, 64, 65, 0, 576 * 8)
        srd(k, 48, 40, 41, WS_KVT, 576 * 4096)
        srd(k, 52, 46, 47, 0, 2304 * 1152)
        srd(k, 56, 40, 41, WS_WOT, 2304 * 1152)
        k(f"s_mov_b32 s{s_tile}, s2")
    k(f"s_cmp_ge_u32 s{s_wq}, 2")
    k(f"s_cbranch_scc1 {LW}")
    def loader_loop(dma, n, skip):
        def extras():
            if JOBS and n == 8:
                srd(k, 12, 66, 67, 0, 576 * 4096)
                k(f"s_mul_i32 s{s_tmp}, s2, 9216"); k(f"s_sub_u32 s42, s{s_wq}, 2"); k(f"s_lshl_b32 s42, s42, 13"); k(f"s_add_u32 s{s_tmp}, s{s_tmp}, s42")
                k(f"v_lshlrev_b32 v{vt}, 7, v{vlane}")
                k(f"buffer_load_dword v{vt2}, v{vt}, s[12:15], s{s_tmp} offen")
                srd(k, 12, 40, 41, SYNC + 0x4000, 36 * 256)
                k(f"s_cmp_eq_u32 s2, 0"); k(f"s_cselect_b32 s{s_tmp}, 0, {jobs.OOB}")
                k(f"v_lshlrev_b32 v{vt}, 8, v{vlane}"); k(f"v_mov_b32 v{vt3}, 0")
                k(f"buffer_store_dword v{vt3}, v{vt}, s[12:15], s{s_tmp} offen")

        if 'nocpre' in opts:
            RAMP = [int(c) for c in str(getopt(opts, 'ramp', 212))]
            issued = 0
            for q, cntd in enumerate(RAMP):
                for u in range(cntd):
                    dma(); issued += 1
                if q == 2: extras()
                assert issued >= q + 1 and issued <= max(AHEAD, q - 1 + AHEAD)
                k(f"s_waitcnt vmcnt({n * (issued - (q + 1))})")
                k("s_barrier")
            nb = len(RAMP)
            assert issued == nb + AHEAD - 2, (issued, nb)
        else:
            dma()
            skip()
            k("s_waitcnt vmcnt(0)")
            k("s_barrier")
            k("s_barrier")
            dma()
            extras()
            k("s_barrier")
            issued = 5
        k(f"s_mov_b32 s{s_cnt}, {issued}")
        if JOBS:
            srd(k, 4, 66, 67, 0, 576 * 4096) if False else None
            Q = VMQ(k)
            def dma_q():
                m_ = len(k.items)
                dma()
                Q.q += ['dma'] * sum(1 for x in k.items[m_:] if x[0] == 'i' and x[1].kind == 'vmem')
            def interval(evs):
                dma_q()
                k(f"s_add_u32 s{s_cnt}, s{s_cnt}, 1")
                for e in evs:
                    if e[0] == 'i': k(e[1])
                    elif e[0] == 'q': Q(e[1], e[2])
                    elif e[0] == 'w': Q.wait(e[1])
                idx = [i for i, t_ in enumerate(Q.q) if t_ == 'dma']
                if len(idx) > n * (AHEAD - 2): Q.waitidx(idx[-n * (AHEAD - 2) - 1])
                else: k(f"s_waitcnt vmcnt({n * (AHEAD - 2)})")
                k("s_barrier")
            WS_ = [60, 61, 62, 63, 64, 65, 46, 47]
            def record(fn):
                r = jobs.Rec(); rq = jobs.RecQ(r)
                for y in fn(r, rq): r.ev.append(('brk',))
                return r.ev
            def wo_all(r, rq):
                st_ = jobs.wo_loads(r, rq, 136, s_tile, 52, vlane, WS_, s_wq)
                yield 'L'
                yield 'L'
                yield from jobs.wo_job(r, rq, st_, 56, vlane, vn, vg, JLB, WS_, s_wq)
                yield 'B'
            NCH = getopt(opts, 'nch', 40)
            ch_kv = jobs.chunk(record(lambda r, rq: jobs.kv_job(r, rq, 20, s_tile, 16, 20, 24, 48, vlane, JLB, [42, 43, 7, 6, 5], s_wq)), NCH)
            ch_wo = jobs.chunk(record(wo_all), 70)
            ch_kv = [c for i_, c in enumerate(ch_kv) if c or i_ < len(ch_kv) - 1]
            ch_wo = [c for i_, c in enumerate(ch_wo) if c or i_ < len(ch_wo) - 1]
            print("job intervals", len(ch_kv), len(ch_wo))
            pass
            for _ in range(getopt(opts, 'jdelay', 3)): interval([])
            if 'kv2' in opts:
                for c in ch_kv: interval(c)
            Lj = k.label('jobs')
            k(f"{Lj}:")
            Q = VMQ(k)
            for c in ch_wo: interval(c)
            k(f"s_add_u32 s{s_tile}, s{s_tile}, 256")
            k(f"s_cmp_lt_u32 s{s_tile}, 288")
            k(f"s_cbranch_scc1 {Lj}")
        Lloop = k.label('lloop')
        k(f"{Lloop}:")
        if 'once' not in opts:
            dma()
        k(f"s_add_u32 s{s_cnt}, s{s_cnt}, 1")
        k(f"s_cmp_lt_u32 s{s_cnt}, {CNT}")
        k(f"s_waitcnt vmcnt({n * (AHEAD - 2)})")
        k("s_barrier")
        k(f"s_cbranch_scc1 {Lloop}")
        for q in range(CNT - AHEAD + 2, CNT + 1):
            k(f"s_waitcnt vmcnt({n * max(CNT - 1 - q, 0)})")
            k("s_barrier")
        k("s_endpgm")
    srd(k, sZ, 40, 41, WS_Z2T, 2304 * 2048 * 2)
    k(f"s_mul_i32 s{s_tmp}, s{s_fb}, 589824")
    k(f"v_add_u32 v{vDz}, s{s_tmp}, v{vl16}")
    k(f"s_mul_i32 s{s_kz}, s{s_wq}, {ZU}")
    k(f"s_mov_b32 s{s_off}, s{s_kz}")
    def dmaz():
        if NOLOAD:
            return
        k(f"s_mov_b32 m0, s{s_off}")
        k(f"s_add_u32 s{s_m0z}, s{s_kz}, 4096")
        for j in range(4):
            k(f"buffer_load_dwordx4 v{vDz}, s[{sZ}:{sZ+3}], s{s_kz} offen offset:{j * 1024}{ZS} lds")
        k(f"s_add_u32 m0, s{s_off}, 4096")
        k(f"s_add_u32 s{s_m0w}, s{s_kz}, 8192")
        for j in range(4):
            k(f"buffer_load_dwordx4 v{vDz}, s[{sZ}:{sZ+3}], s{s_m0z} offen offset:{j * 1024}{ZS} lds")
        k(f"s_add_u32 m0, s{s_off}, 8192")
        k(f"s_add_u32 s{s_off}, s{s_off}, {2 * ZU}")
        k(f"buffer_load_dwordx4 v{vDz}, s[{sZ}:{sZ+3}], s{s_m0w} offen{ZS} lds")
        k(f"s_add_u32 s{s_kz}, s{s_kz}, {2 * ZU}")
        k(f"s_cmp_ge_u32 s{s_off}, {ZRING}")
        k(f"s_cselect_b32 s{s_tmp}, {ZRING}, 0")
        k(f"s_sub_u32 s{s_off}, s{s_off}, s{s_tmp}")
        if CNT != 32:
            k(f"s_cmp_ge_u32 s{s_kz}, 589824")
            k(f"s_cselect_b32 s{s_tmp}, 589824, 0")
            k(f"s_sub_u32 s{s_kz}, s{s_kz}, s{s_tmp}")
    def skipz():
        k(f"s_add_u32 s{s_kz}, s{s_kz}, {6 * ZU}")
        k(f"s_add_u32 s{s_off}, s{s_off}, {6 * ZU}")
        k(f"s_cmp_ge_u32 s{s_off}, {ZRING}"); k(f"s_cselect_b32 s{s_tmp}, {ZRING}, 0"); k(f"s_sub_u32 s{s_off}, s{s_off}, s{s_tmp}")
    loader_loop(dmaz, 9, skipz)
    k(f"{LW}:")
    srd(k, sW, 4, 5, -BIAS, 2048 * 2048 * 2 + BIAS)
    k(f"s_mov_b32 s{s_kw}, 0")
    k(f"s_sub_u32 s{s_tmp}, s{s_wq}, 2")
    k(f"s_lshl_b32 s{s_m0w}, s{s_tmp}, 13")
    k(f"s_add_u32 s{s_m0w}, s{s_m0w}, {ZRING}")
    k(f"s_lshl_b32 s{s_tmp}, s{s_tmp}, 6")
    k(f"s_add_u32 s{s_tmp}, s{s_tmp}, s{s_t0}")
    k(f"v_lshrrev_b32 v{vt}, 3, v{vlane}")
    k(f"v_and_b32 v{vt2}, 3, v{vt}")
    k(f"v_xor_b32 v{vt2}, v{vt2}, v{vlane}")
    k(f"v_and_b32 v{vt2}, 7, v{vt2}")
    k(f"v_add_u32 v{vt}, s{s_tmp}, v{vt}")
    k(f"v_lshlrev_b32 v{vt}, 12, v{vt}")
    for j in range(8):
        k(f"v_xor_b32 v{vt3}, {4 * (j & 1)}, v{vt2}")
        k(f"v_lshl_add_u32 v{vt3}, v{vt3}, 4, v{vt}")
        k(f"v_add_u32 v{vDw[j]}, {BIAS + j * 8 * 4096 - (j % 4) * 1024}, v{vt3}")
    def dmaw():
        if NOLOAD:
            return
        k(f"s_add_u32 m0, s{s_m0w}, s{s_offw}")
        k(f"s_add_u32 s{s_tmp}, s{s_m0w}, 4096")
        for j in range(4):
            k(f"buffer_load_dwordx4 v{vDw[j]}, s[{sW}:{sW+3}], s{s_kw} offen offset:{j * 1024} lds")
        k(f"s_add_u32 m0, s{s_tmp}, s{s_offw}")
        k(f"s_add_u32 s{s_offw}, s{s_offw}, {WSL}")
        k(f"s_and_b32 s{s_offw}, s{s_offw}, {NW * WSL - 1}")
        for j in range(4, 8):
            k(f"buffer_load_dwordx4 v{vDw[j]}, s[{sW}:{sW+3}], s{s_kw} offen offset:{(j % 4) * 1024} lds")
        k(f"s_add_u32 s{s_kw}, s{s_kw}, 128")
        if CNT != 32:
            k(f"s_and_b32 s{s_kw}, s{s_kw}, 0xfff")
    def skipw():
        k(f"s_add_u32 s{s_kw}, s{s_kw}, 384")
        k(f"s_mov_b32 s{s_offw}, 0")
    loader_loop(dmaw, 8, skipw)
    k(f"{Lend}:")
    k("s_endpgm")
    k.lds = RING + 14336
    k.threads = 768
    return k

if __name__ == "__main__":
    import sys
    opts = sys.argv[2:]
    k = gen_k2(opts=opts)
    build_file(["; k2 test"], [(k, 256, 768, k.lds)], [k], sys.argv[1])
```

```python
from common import *
from k2 import getopt

CST = 4160
CONV_LDS = 4 * CST + 4608
def conv_loads(k, s_d, s_lb, sH, sU, t, s_tmp, um=' sc1'):
    UB = 4 * CST
    k(f"s_lshl_b32 s{s_tmp}, s{s_d}, 12")
    k(f"s_add_u32 m0, s{s_lb}, {UB}")
    k("s_nop 0")
    for j in range(4):
        k(f"buffer_load_dwordx4 v{t}, s[{sU}:{sU+3}], s{s_tmp} offen offset:{1024 * j}{um} lds")
    for c in (0, 2):
        k(f"s_add_u32 m0, s{s_lb}, {c * CST + 32}")
        if c: k(f"s_add_u32 s{s_tmp}, s{s_tmp}, 4")
        else: k("s_nop 0")
        for j in range(4):
            k(f"buffer_load_dwordx4 v{t}, s[{sH}:{sH+3}], s{s_tmp} offen offset:{1024 * j} lds")

def conv_wave(k, va, s_d, s_lb, sH, sU, sD, sY, vlane, vn, vg, s_tmp, s_cnt, sc1=False, opts=(), st=lambda i: None, prewait=0, mid=None):
    UB = 4 * CST
    t = va.get(); t2 = va.get(); vA = va.get(); vB = va.get(); vd = va.get()
    acc = va.get(32, 4); fa = va.get(64, 4); fb = va.get(64, 4)
    k(f"v_lshlrev_b32 v{t}, 4, v{vlane}")
    if 'preloaded' not in opts:
        conv_loads(k, s_d, s_lb, sH, sU, t, s_tmp, ' sc1' if 'usc1' in opts else '')
    k(f"s_lshl_b32 s{s_tmp}, s{s_d}, 1")
    k(f"v_mov_b32 v{t2}, s{s_tmp}")
    k(f"buffer_load_ushort v{vd}, v{t2}, s[{sD}:{sD+3}], 0 offen")
    st(2)
    if sc1 and 'nobar' not in opts: k("s_barrier")
    for i in range(32): k(f"v_mov_b32 v{acc + i}, 0")
    k(f"v_lshlrev_b32 v{t2}, 3, v{vlane}")
    k(f"v_add_u32 v{t2}, s{s_lb}, v{t2}")
    k(f"ds_write_b64 v{t2}, {v(acc, 2)} offset:{UB + 4096}")
    k(f"v_bfe_u32 v{t2}, v{vlane}, 2, 2")
    k(f"v_mul_u32_u24 v{t2}, {CST}, v{t2}")
    k(f"v_and_b32 v{t}, 3, v{vlane}")
    k(f"v_lshl_add_u32 v{t2}, v{t}, 3, v{t2}")
    k(f"v_add_u32 v{t2}, s{s_lb}, v{t2}")
    k(f"ds_write_b64 v{t2}, {v(acc, 2)}")
    k(f"v_lshl_add_u32 v{t2}, v{vg}, 3, v{vn}")
    k(f"v_add_u32 v{t2}, 1, v{t2}")
    k(f"v_and_b32 v{vA}, 3, v{t2}")
    k(f"v_mul_u32_u24 v{vA}, {CST}, v{vA}")
    k(f"v_lshrrev_b32 v{t2}, 2, v{t2}")
    k(f"v_lshl_add_u32 v{vA}, v{t2}, 3, v{vA}")
    k(f"v_add_u32 v{vA}, s{s_lb}, v{vA}")
    k(f"v_lshlrev_b32 v{vB}, 5, v{vn}")
    k(f"v_lshlrev_b32 v{t2}, 4, v{vg}")
    k(f"v_sub_u32 v{vB}, v{t2}, v{vB}")
    k(f"s_add_u32 s{s_tmp}, s{s_lb}, {UB + 4064 - 3584}")
    k(f"v_add_u32 v{vB}, s{s_tmp}, v{vB}")
    k(f"v_mov_b32 v{t}, s{s_lb}")
    k(f"v_lshlrev_b32 v{t2}, 4, v{vlane}")
    k(f"v_add_u32 v{t2}, s{s_lb}, v{t2}")
    k(f"s_waitcnt vmcnt({prewait}) lgkmcnt(0)")
    st(3)
    k(f"ds_read_b32 v{fa}, v{t} offset:32")
    k("s_waitcnt lgkmcnt(0)")
    k(f"ds_write_b32 v{t}, v{fa} offset:{2 * CST + 28}")
    k("s_waitcnt lgkmcnt(0)")
    for c in (0, 2):
        for j in range(5):
            r = fa + 8 * j
            k(f"ds_read_b128 {v(r, 4)}, v{t2} offset:{c * CST + 1024 * j}")
            k(f"ds_read_b32 v{r + 4}, v{t2} offset:{c * CST + 1024 * j + 16}")
        for j in range(5):
            r = fa + 8 * j
            k(f"s_waitcnt lgkmcnt({2 * (4 - j) + (j if False else 0)})") if j < 5 else None
            for e in range(4):
                k(f"v_alignbit_b32 v{fb + 4 * j + e}, v{r + e + 1}, v{r + e}, 16")
        k("s_waitcnt lgkmcnt(0)")
        for j in range(4):
            k(f"ds_write_b128 v{t2}, {v(fb + 4 * j, 4)} offset:{(c + 1) * CST + 1024 * j}")
        k("s_mov_b64 exec, 15")
        k(f"ds_write_b128 v{t2}, {v(fb + 16, 4)} offset:{(c + 1) * CST + 4096}")
        k("s_mov_b64 exec, -1")
    k("s_waitcnt lgkmcnt(0)")
    if mid: mid()
    def reads(buf, off):
        L = []
        for i in range(8):
            L.append(f"ds_read_b128 {v(fb + buf * 32 + 4 * i, 4)}, v{vB} offset:{512 * (7 - i) + off}")
            L.append(f"ds_read_b64 {v(fa + buf * 32 + 4 * i, 2)}, v{vA} offset:{512 * i + off}")
            L.append(f"ds_read_b64 {v(fa + buf * 32 + 4 * i + 2, 2)}, v{vA} offset:{512 * i + off + 8}")
        return L
    order = sorted([(q, p) for q in range(8) for p in range(8) if q + p <= 7], key=lambda x: (max(x), x[0] + x[1]))
    PRE = 12
    first = reads(0, 0)
    for x in first[:PRE]: k(x)
    k(f"s_mov_b32 s{s_cnt}, 0")
    L = k.label('cloop')
    k(f"{L}:")
    for half in range(2):
        stream = reads(half, 64 * half)[PRE:] + reads(1 - half, 64 * (half + 1))[:PRE]
        issued = PRE; got = 0
        for mi, (q, p) in enumerate(order):
            needn = 3 * max(q, p) + 3
            while issued < needn:
                if issued - got >= 15:
                    k(f"s_waitcnt lgkmcnt(13)"); got = issued - 13
                k(stream[issued - PRE]); issued += 1
            if needn > got:
                k(f"s_waitcnt lgkmcnt({issued - needn})")
                got = needn
            C = v(acc + 4 * (q + p), 4)
            k(f"v_mfma_f32_16x16x32_bf16 {C}, {v(fa + half * 32 + 4 * q, 4)}, {v(fb + half * 32 + 4 * p, 4)}, {C}")
            n = 2 if issued < 24 else 1
            for _ in range(n):
                if issued < 24 + PRE and issued - got < 14:
                    k(stream[issued - PRE]); issued += 1
        while issued < 24 + PRE:
            k(stream[issued - PRE]); issued += 1
    k(f"v_add_u32 v{vA}, 128, v{vA}")
    k(f"v_add_u32 v{vB}, 128, v{vB}")
    k(f"s_add_u32 s{s_cnt}, s{s_cnt}, 1")
    k(f"s_cmp_lt_u32 s{s_cnt}, 4")
    k(f"s_cbranch_scc1 {L}")
    k("s_waitcnt lgkmcnt(0)")
    st(4)
    if sc1: k("s_setprio 3")
    k(f"v_lshlrev_b32 v{t}, 5, v{vn}")
    k(f"v_lshl_add_u32 v{t}, v{vg}, 3, v{t}")
    k(f"s_add_u32 s{s_tmp}, s{s_lb}, {UB + 4088 - 3584}")
    k(f"v_sub_u32 v{t2}, s{s_tmp}, v{t}")
    for nt in range(8):
        k(f"ds_read_b64 {v(fa + 2 * nt, 2)}, v{t2} offset:{512 * (7 - nt)}")
    k(f"v_lshlrev_b32 v{vd}, 16, v{vd}")
    k(f"v_add_u32 v{vA}, s{s_lb}, v{t}")
    k(f"s_lshl_b32 s{s_tmp}, s{s_d}, 12")
    k("s_waitcnt lgkmcnt(0)")
    for nt in range(8):
        Y = [acc + 4 * nt + r for r in range(4)]
        U = [fb + 4 * (nt % 2) + r for r in range(4)]
        T = fb + 8 + 2 * (nt % 2)
        k(f"v_and_b32 v{U[0]}, 0xffff0000, v{fa + 2 * nt + 1}")
        k(f"v_lshlrev_b32 v{U[1]}, 16, v{fa + 2 * nt + 1}")
        k(f"v_and_b32 v{U[2]}, 0xffff0000, v{fa + 2 * nt}")
        k(f"v_lshlrev_b32 v{U[3]}, 16, v{fa + 2 * nt}")
        for r in range(4): k(f"v_mul_f32 v{U[r]}, v{U[r]}, v{vd}")
        rnd2(k, U[0], U[1], T); rnd2(k, U[2], U[3], T + 1)
        rnd2(k, Y[0], Y[1], T); rnd2(k, Y[2], Y[3], T + 1)
        for r in range(4): k(f"v_add_f32 v{Y[r]}, v{Y[r]}, v{U[r]}")
        k(f"v_cvt_pk_bf16_f32 v{fb + 16 + 2 * nt}, v{Y[0]}, v{Y[1]}")
        k(f"v_cvt_pk_bf16_f32 v{fb + 17 + 2 * nt}, v{Y[2]}, v{Y[3]}")
        k(f"ds_write_b64 v{vA}, {v(fb + 16 + 2 * nt, 2)} offset:{512 * nt}")
    k(f"v_lshlrev_b32 v{t}, 4, v{vlane}")
    k(f"v_add_u32 v{t2}, s{s_lb}, v{t}")
    k("s_waitcnt lgkmcnt(0)")
    for j in range(4):
        k(f"ds_read_b128 {v(fa + 32 + 4 * j, 4)}, v{t2} offset:{1024 * j}")
    for j in range(4):
        k(f"s_waitcnt lgkmcnt({3 - j})")
        k(f"buffer_store_dwordx4 {v(fa + 32 + 4 * j, 4)}, v{t}, s[{sY}:{sY+3}], s{s_tmp} offen offset:{1024 * j}{' sc1' if sc1 else ''}")

def gen_kc(name="kc_kernel", opts=()):
    k = Kernel(name)
    Lend = k.label('end')
    k("s_cmp_ge_u32 s2, 144"); k(f"s_cbranch_scc1 {Lend}")
    k(f"s_load_dwordx4 s[4:7], s[0:1], {KA['ssmk']}")
    k(f"s_load_dwordx2 s[44:45], s[0:1], {KA['ws']}")
    va = Alloc(1)
    vlane = va.get(); vn = va.get(); vg = va.get(); vt = va.get()
    k(f"v_lshrrev_b32 v{vt}, 6, v0"); k(f"v_and_b32 v{vlane}, 63, v0"); k(f"v_readfirstlane_b32 s30, v{vt}")
    k(f"v_and_b32 v{vn}, 15, v{vlane}"); k(f"v_lshrrev_b32 v{vg}, 4, v{vlane}")
    st = Stamps(k, 'stamp' in opts, 30)
    for i_ in range(7): st(i_)
    k("s_waitcnt lgkmcnt(0)")
    srd(k, 8, 4, 5, 0, 576 * 4096)
    srd(k, 12, 44, 45, WS_KVT, 576 * 4096)
    srd(k, 16, 6, 7, 0, 1152)
    srd(k, 20, 44, 45, WS_YT, 576 * 4096)
    k("s_lshl_b32 s31, s2, 2"); k("s_add_u32 s31, s31, s30")
    k(f"s_mul_i32 s32, s30, {CONV_LDS}")
    conv_wave(k, va, 31, 32, 8, 12, 16, 20, vlane, vn, vg, 36, 37, opts=opts, st=st)
    st.flush(Lend, 2)
    k(f"{Lend}:"); k("s_endpgm")
    k.lds = 4 * CONV_LDS
    if 'stamp' in opts: k.check = False
    return k

if __name__ == "__main__":
    import sys
    from k0 import gen_k0
    k0 = gen_k0(); kc = gen_kc(opts=sys.argv[2:])
    build_file(["; k0+kc test"], [(k0, 288, 256, k0.lds), (kc, 144, 256, kc.lds)], [k0, kc], sys.argv[1])
```

```python
from common import *
from k2 import getopt
import jobs
from k1 import gen_k1, VMQ, SYNC, XSTAT, OOB, f2u, rnd_n
from kc import conv_wave, conv_loads, CONV_LDS

SY = SYNC - WS_STAT
CY = SY + 0x4000; CZ2 = SY + 0x8000; CP = SY + 0x9000; CKV = SY + 0xA000; CWO = SY + 0xB000
ZU = 9216; WSL = 16384; ZRING = 9 * ZU; JLB = ZRING + 4 * WSL; LC2 = 160768; HOB = 116736
LOG2E = 1.4426950408889634
vlane, vt, vt2, vt3, vn, vg, vl16 = 1, 2, 3, 4, 5, 6, 7
ZP = 236
s_wave, s_role, s_wq, s_t0, s_fb, s_cnt, s_tmp, s_off, s_offw, s_t2, s_kz, s_rb = 28, 29, 30, 31, 32, 33, 34, 35, 36, 37, 38, 39
sWS = 48
BIAS = 4096

class Fused:
    def __init__(self, opts): self.opts = opts
    def wprefetch(self, k):
        k(f"s_load_dwordx4 s[4:7], s[0:1], {KA['wsp']}")
        k(f"s_lshl_b32 s{s_tmp}, s{s_wave}, 4"); k(f"s_add_u32 s{s_tmp}, s{s_tmp}, s{s_t0}")
        k(f"v_lshrrev_b32 v{vt}, 3, v{vlane}")
        k(f"v_and_b32 v{vt2}, 3, v{vt}")
        k(f"v_xor_b32 v{vt2}, v{vt2}, v{vlane}")
        k(f"v_and_b32 v{vt2}, 7, v{vt2}")
        k(f"v_add_u32 v{vt}, s{s_tmp}, v{vt}")
        k(f"v_lshlrev_b32 v{vt}, 12, v{vt}")
        k(f"v_lshl_add_u32 v{vt3}, v{vt2}, 4, v{vt}")
        k(f"v_add_u32 v{vt3}, {BIAS}, v{vt3}")
        k(f"v_xor_b32 v{vt2}, 4, v{vt2}")
        k(f"v_lshl_add_u32 v{vt}, v{vt2}, 4, v{vt}")
        k(f"v_add_u32 v{vt}, {BIAS + 8 * 4096 - 1024}, v{vt}")
        k(f"s_lshl_b32 s{s_t2}, s{s_wave}, 11"); k(f"s_add_u32 s{s_t2}, s{s_t2}, {ZRING}")
        k("s_waitcnt lgkmcnt(0)")
        srd(k, 16, 4, 5, -BIAS, 2048 * 2048 * 2 + BIAS)
        for stp in range(4):
            k(f"s_add_u32 m0, s{s_t2}, {stp * WSL}")
            k(f"s_lshl_b32 s{s_tmp}, s{s_rb}, 8"); k(f"s_add_u32 s{s_tmp}, s{s_tmp}, {128 * stp}"); k(f"s_and_b32 s{s_tmp}, s{s_tmp}, 0xfff")
            k(f"buffer_load_dwordx4 v{vt3}, s[16:19], s{s_tmp} offen lds")
            k(f"buffer_load_dwordx4 v{vt}, s[16:19], s{s_tmp} offen offset:1024 lds")
        return 8

    def arrive(self, k, lds_word, addrs, ta, tb):
        k("s_waitcnt vmcnt(0)")
        k(f"v_mov_b32 v{ta}, {lds_word}")
        k(f"v_mov_b32 v{tb}, 1")
        k("s_mov_b64 exec, 1")
        k(f"ds_add_rtn_u32 v{ta}, v{ta}, v{tb}")
        k("s_waitcnt lgkmcnt(0)")
        k(f"v_readfirstlane_b32 s{s_tmp}, v{ta}")
        k(f"s_cmp_eq_u32 s{s_tmp}, 7")
        k(f"s_cselect_b32 s{s_tmp}, 0, {OOB}")
        k(f"s_mov_b64 exec, {(1 << len(addrs)) - 1}")
        k(f"v_mov_b32 v{tb}, 1")
        k(f"v_mov_b32 v{ta}, s{addrs[0]}")
        for i, a_ in enumerate(addrs[1:], 1):
            k(f"v_writelane_b32 v{ta}, s{a_}, {i}")
        k(f"buffer_atomic_add v{tb}, v{ta}, s[{sWS}:{sWS+3}], s{s_tmp} offen sc1")
        k("s_mov_b64 exec, -1")

    def poll(self, k, addrs_targets, ta, tb, tc, sleep=1):
        L = k.label('pl'); n = len(addrs_targets)
        k(f"v_mov_b32 v{ta}, {OOB}"); k(f"v_mov_b32 v{tb}, 0")
        for i, (a_, tg) in enumerate(addrs_targets):
            k(f"v_writelane_b32 v{ta}, s{a_}, {i}")
            k(f"s_mov_b32 s{s_tmp}, {tg}")
            k(f"v_writelane_b32 v{tb}, s{s_tmp}, {i}")
        Lok = k.label('plok')
        k(f"{L}:")
        k(f"buffer_load_dword v{tc}, v{ta}, s[{sWS}:{sWS+3}], 0 offen sc1")
        k("s_waitcnt vmcnt(0)")
        k(f"v_cmp_lt_u32 vcc, v{tc}, v{tb}")
        k(f"s_cmp_eq_u64 vcc, 0")
        k(f"s_cbranch_scc1 {Lok}")
        k(f"s_sleep {sleep}")
        k(f"s_branch {L}")
        k(f"{Lok}:")

    def rest(self, k, st, Lend):
        opts = self.opts
        k(f"s_lshl_b32 s59, s{s_fb}, 8"); k(f"s_add_u32 s59, s59, {CZ2}")
        k(f"s_lshl_b32 s60, s{s_rb}, 2"); k(f"s_add_u32 s60, s60, s59")
        k(f"s_and_b32 s61, s2, 7"); k(f"s_lshl_b32 s61, s61, 8"); k(f"s_add_u32 s61, s61, {CKV}")
        self.arrive(k, LC2, [60, 61], vt, vt2)
        st(1)
        Lload = k.label('ld2'); Lepi2 = k.label('epi2')
        sW, sZ, sP, sB = 16, 12, 20, 24
        srd(k, sP, 42, 43, WS_P, 2048 * 2304 * 2)
        srd(k, sB, 6, 7, 0, 4096)
        k(f"s_mov_b32 s{s_off}, 0"); k(f"s_mov_b32 s{s_offw}, 0"); k(f"s_mov_b32 s{s_cnt}, 0")
        acc = 8; ring = 80; wreg = 116; vZ, vWb, vW, vW1, vo1, vo2, vtrow = 132, 133, 134, 135, 136, 137, 138
        vb = 140
        k(f"v_lshrrev_b32 v{vt3}, 2, v{vn}")
        k(f"v_and_b32 v{vt2}, 3, v{vn}")
        k(f"v_lshl_add_u32 v{vt3}, v{vt3}, 3, v{vt2}")
        k(f"s_lshl_b32 s{s_tmp}, s{s_wq}, 5"); k(f"s_add_u32 s{s_tmp}, s{s_tmp}, s{s_t0}")
        k(f"v_add_u32 v{vtrow}, s{s_tmp}, v{vt3}")
        k(f"v_lshlrev_b32 v{vtrow}, 1, v{vtrow}")
        for nu in range(2):
            k(f"buffer_load_ushort v{vb + nu}, v{vtrow}, s[{sB}:{sB+3}], 0 offen offset:{8 * nu}")
        k(f"s_lshr_b32 s{s_tmp}, s{s_tmp}, 4"); k(f"s_lshl_b32 s{s_tmp}, s{s_tmp}, 3")
        k(f"s_lshr_b32 s62, s{s_fb}, 1"); k(f"s_add_u32 s{s_tmp}, s{s_tmp}, s62"); k(f"s_mul_i32 s{s_tmp}, s{s_tmp}, 9216")
        k(f"s_and_b32 s62, s{s_fb}, 1"); k(f"s_lshl_b32 s63, s62, 12"); k(f"s_add_u32 s63, s63, s{s_tmp}")
        k(f"s_xor_b32 s64, s{s_role}, 1"); k(f"s_lshl_b32 s64, s64, 11"); k(f"s_add_u32 s63, s63, s64")
        k(f"v_add_u32 v{vo1}, s63, v{vl16}")
        k(f"s_lshl_b32 s62, s62, 3"); k(f"s_add_u32 s62, s62, s{s_tmp}"); k(f"s_add_u32 s62, s62, 8192")
        k(f"v_add_u32 v{vo2}, s62, v{vl16}")
        k(f"s_mov_b32 s65, {8 * 9216}")
        k("s_waitcnt lgkmcnt(0)")
        k("s_barrier")
        k(f"s_cmp_eq_u32 s{s_role}, 1")
        k(f"s_cbranch_scc1 {Lload}")
        k(f"v_xor_b32 v{vt}, v{vg}, v{vn}")
        k(f"v_and_b32 v{vt}, 7, v{vt}")
        k(f"v_lshlrev_b32 v{vt}, 4, v{vt}")
        k(f"v_lshl_add_u32 v{vt}, v{vt3}, 7, v{vt}")
        k(f"s_lshl_b32 s{s_tmp}, s{s_wq}, 12"); k(f"s_add_u32 s{s_tmp}, s{s_tmp}, {ZRING}")
        k(f"v_add_u32 v{vWb}, s{s_tmp}, v{vt}")
        for i in range(72): k(f"v_mov_b32 v{acc + i}, 0")
        NT = 9; R = 9; NRD = 11; NM = 18; LAM = getopt(opts, 'LAM2', 12); WG = 2
        cov = {'c': -1}
        def rd(q):
            u, j = divmod(q, NRD)
            if j == 0 and u % 2 == 0:
                if u > 0 and cov['c'] < (u - 1) * NRD + 1:
                    k(f"s_waitcnt lgkmcnt({q - ((u - 1) * NRD + 1) - 1})"); cov['c'] = (u - 1) * NRD + 1
                k("s_barrier")
                k(f"v_add_u32 v{vW}, s{s_offw}, v{vWb}")
            if j == 1 and u % 2 == 0: k(f"v_xor_b32 v{vW1}, 64, v{vW}")
            if j == 2: k(f"v_add_u32 v{vZ}, s{s_off}, v{vl16}")
            if j == 3: k(f"s_add_u32 s{s_off}, s{s_off}, {ZU}")
            if j == 4:
                k(f"s_cmp_eq_u32 s{s_off}, {ZRING}"); k(f"s_cselect_b32 s{s_off}, 0, s{s_off}")
            if j == 5 and u % 2 == 0: k(f"s_add_u32 s{s_offw}, s{s_offw}, {WSL}")
            if j == 6 and u % 2 == 0: k(f"s_and_b32 s{s_offw}, s{s_offw}, {4 * WSL - 1}")
            if j < 2:
                k(f"ds_read_b128 {v(wreg + ((u % 2) * 2 + j) * 4, 4)}, v{vW1 if u % 2 else vW} offset:{j * 512}")
            else:
                k(f"ds_read_b128 {v(ring + 4 * ((j - 2) % R), 4)}, v{vZ} offset:{(j - 2) * 1024}")
        def need(m):
            u, r = divmod(m, NM)
            return u * NRD + 2 + r // 2
        iss = need(LAM - 1) + 1
        for m in range(2 * NM * 3):
            if iss <= need(m + LAM): iss += 1
            if (m + 1) % (2 * NM) == 0: steady = iss - ((m + 1) // (2 * NM)) * 2 * NRD
        for q in range(steady): rd(q)
        st(2)
        if st.on: k("s_waitcnt lgkmcnt(0)")
        issued = steady
        Lloop = k.label('loop2')
        k(f"{Lloop}:")
        for h in range(2):
            for i in range(NT):
                m0 = h * NM + i * 2
                if need(m0) > cov['c']:
                    tgt = min(need(min(m0 + 2 * (WG - 1), h * NM + NM - 1)), issued - 1)
                    k(f"s_waitcnt lgkmcnt({issued - tgt - 1})"); cov['c'] = tgt
                for nu in range(2):
                    C = v(acc + (i * 2 + nu) * 4, 4)
                    k(f"v_mfma_f32_16x16x32_bf16 {C}, {v(ring + 4 * (i % R), 4)}, {v(wreg + (h * 2 + nu) * 4, 4)}, {C}")
                    if issued <= need(m0 + nu + LAM):
                        u2, j2 = divmod(issued, NRD)
                        if j2 >= 2: assert (u2 * NT + j2 - 2) - R < h * NT + i
                        rd(issued); issued += 1
        assert issued == steady + 2 * NRD
        k(f"s_add_u32 s{s_cnt}, s{s_cnt}, 1")
        k(f"s_cmp_lt_u32 s{s_cnt}, 32")
        k(f"s_cbranch_scc1 {Lloop}")
        st(3)
        k(f"s_lshl_b32 s{s_tmp}, s{s_wq}, 13"); k(f"s_add_u32 s{s_tmp}, s{s_tmp}, {HOB}")
        k(f"v_add_u32 v{vt}, s{s_tmp}, v{vl16}")
        k("s_waitcnt lgkmcnt(0)")
        k("s_barrier")
        for j in range(8): k(f"ds_write_b128 v{vt}, {v(acc + 4 * j, 4)} offset:{j * 1024}")
        k("s_waitcnt lgkmcnt(0)")
        k("s_barrier")
        def epi2(tiles, wait=True):
            if wait: k("s_waitcnt vmcnt(0)")
            for nu in range(2): k(f"v_lshlrev_b32 v{vb + nu}, 16, v{vb + nu}")
            T = ring
            for nu in range(2):
                so = "0" if nu == 0 else "s65"
                for li, i in enumerate(tiles):
                    X = [acc + (i * 2 + nu) * 4 + r for r in range(4)]
                    zi = (ZP + 8 * nu + 4 * (li // 2) + 2 * (li % 2)) if li < 4 else (ZP + 16 + 2 * nu)
                    tq = T + 8 * (li % 2)
                    for pr in range(2): k(f"v_cvt_pk_bf16_f32 v{tq + pr}, v{X[2 * pr]}, v{X[2 * pr + 1]}")
                    for pr in range(2):
                        k(f"v_lshlrev_b32 v{X[2 * pr]}, 16, v{tq + pr}")
                        k(f"v_and_b32 v{X[2 * pr + 1]}, 0xffff0000, v{tq + pr}")
                    for r in range(4): k(f"v_add_f32 v{X[r]}, v{X[r]}, v{vb + nu}")
                    for pr in range(2): k(f"v_cvt_pk_bf16_f32 v{tq + pr}, v{X[2 * pr]}, v{X[2 * pr + 1]}")
                    for pr in range(2):
                        k(f"v_lshlrev_b32 v{X[2 * pr]}, 16, v{tq + pr}")
                        k(f"v_and_b32 v{X[2 * pr + 1]}, 0xffff0000, v{tq + pr}")
                        k(f"v_lshlrev_b32 v{tq + 2 + 2 * pr}, 16, v{zi + pr}")
                        k(f"v_and_b32 v{tq + 3 + 2 * pr}, 0xffff0000, v{zi + pr}")
                    for r in range(4): k(f"v_mul_f32 v{X[r]}, v{X[r]}, v{tq + 2 + r}")
                    for pr in range(2): k(f"v_cvt_pk_bf16_f32 v{zi + pr}, v{X[2 * pr]}, v{X[2 * pr + 1]}")
                    if li < 4 and li % 2 == 1:
                        k(f"buffer_store_dwordx4 {v(ZP + 8 * nu + 4 * (li // 2), 4)}, v{vo1}, s[{sP}:{sP+3}], {so} offen offset:{1024 * (li // 2)} sc1")
                    if li == 4:
                        k(f"buffer_store_dwordx2 {v(zi, 2)}, v{vo2}, s[{sP}:{sP+3}], {so} offen sc1")
        epi2([4, 5, 6, 7, 8])
        k(f"s_branch {Lepi2}")

        k(f"{Lload}:")
        vDz = 8; vDw = list(range(9, 17))
        s_m0z, s_m0w, s_kw, s_tile = 52, 53, 56, 57
        srd(k, sZ, 42, 43, WS_Z2T, 2304 * 2048 * 2)
        k(f"s_load_dwordx2 s[62:63], s[0:1], {KA['wout']}")
        k(f"s_load_dwordx2 s[66:67], s[0:1], {KA['ssmk']}")
        k(f"s_mul_i32 s{s_tmp}, s{s_fb}, 589824")
        k(f"v_add_u32 v{vDz}, s{s_tmp}, v{vl16}")
        k(f"s_mov_b32 s{s_tile}, s2")
        k("s_waitcnt lgkmcnt(0)")
        srd(k, 8, 62, 63, 0, 2304 * 1152)
        srd(k, 44, 42, 43, WS_WOT, 2304 * 1152)
        s_mask, s_blk = 55, 4
        vfa = 17
        k(f"v_lshlrev_b32 v{vfa}, 2, v{vlane}")
        k(f"v_add_u32 v{vfa}, s59, v{vfa}")
        k(f"v_mov_b32 v{vt}, {OOB}")
        k(f"v_cmp_gt_u32 vcc, 16, v{vlane}")
        k(f"v_cndmask_b32 v{vfa}, v{vt}, v{vfa}, vcc")
        k(f"s_mov_b32 s{s_mask}, 0")
        def need_block():
            Lc = k.label('nb'); Lo = k.label('nbo')
            k(f"{Lc}:")
            k(f"s_bitcmp1_b32 s{s_mask}, s{s_blk}")
            k(f"s_cbranch_scc1 {Lo}")
            k(f"buffer_load_dword v{vt}, v{vfa}, s[{sWS}:{sWS+3}], 0 offen sc1")
            k("s_waitcnt vmcnt(0)")
            k(f"v_cmp_ne_u32 vcc, 0, v{vt}")
            k(f"s_mov_b32 s{s_mask}, vcc_lo")
            k(f"s_branch {Lc}")
            k(f"{Lo}:")
        def zunit(s_src, s_dst):
            for j in range(9):
                if j % 4 == 0:
                    k(f"s_add_u32 m0, s{s_dst}, {(j // 4) * 4096}")
                    k(f"s_add_u32 s{s_m0z}, s{s_src}, {(j // 4) * 4096}")
                k(f"buffer_load_dwordx4 v{vDz}, s[{sZ}:{sZ+3}], s{s_m0z} offen offset:{(j % 4) * 1024} sc1 lds")
        k(f"s_lshl_b32 s{s_kz}, s{s_rb}, 2"); k(f"s_add_u32 s{s_kz}, s{s_kz}, s{s_wq}"); k(f"s_mul_i32 s{s_kz}, s{s_kz}, {ZU}")
        k(f"s_mul_i32 s{s_off}, s{s_wq}, {ZU}")
        zunit(s_kz, s_off)
        k(f"s_add_u32 s{s_blk}, s{s_rb}, 1"); k(f"s_and_b32 s{s_blk}, s{s_blk}, 15")
        LW = k.label('wload2')
        k(f"s_cmp_ge_u32 s{s_wq}, 2")
        k(f"s_cbranch_scc1 {LW}")
        def loader(dma, n, isz):
            AHEAD = 4
            def second():
                need_block()
                k(f"s_lshl_b32 s{s_t2}, s{s_blk}, 2"); k(f"s_add_u32 s{s_t2}, s{s_t2}, s{s_wq}"); k(f"s_mul_i32 s{s_t2}, s{s_t2}, {ZU}")
                k(f"s_add_u32 s58, s{s_wq}, 4"); k(f"s_mul_i32 s58, s58, {ZU}")
                zunit(s_t2, 58)
            if isz:
                k("s_waitcnt vmcnt(0)"); k("s_barrier")
                second()
                k("s_barrier")
                dma()
                k(f"s_waitcnt vmcnt({n})"); k("s_barrier")
                dma()
                k("s_barrier")
            else:
                k("s_barrier")
                k("s_waitcnt vmcnt(0)"); k("s_barrier")
                second()
                dma()
                k("s_barrier")
                dma()
                k(f"s_waitcnt vmcnt({2 * n})"); k("s_barrier")
                srd(k, 12, 66, 67, 0, 576 * 4096)
                k(f"s_mul_i32 s{s_tmp}, s2, 9216"); k(f"s_sub_u32 s62, s{s_wq}, 2"); k(f"s_lshl_b32 s62, s62, 13"); k(f"s_add_u32 s{s_tmp}, s{s_tmp}, s62")
                k(f"v_lshlrev_b32 v{vt}, 7, v{vlane}")
                k(f"buffer_load_dword v{vt2}, v{vt}, s[12:15], s{s_tmp} offen")
            k(f"s_mov_b32 s{s_cnt}, 6")
            Q = VMQ(k)
            def interval(evs):
                m_ = len(k.items)
                dma()
                Q.q += ['dma'] * n
                k(f"s_add_u32 s{s_cnt}, s{s_cnt}, 1")
                for e in evs:
                    if e[0] == 'i': k(e[1])
                    elif e[0] == 'q': Q(e[1], e[2])
                    elif e[0] == 'w': Q.wait(e[1])
                idx = [i for i, t_ in enumerate(Q.q) if t_ == 'dma']
                if len(idx) > n * (AHEAD - 2): Q.waitidx(idx[-n * (AHEAD - 2) - 1])
                else: k(f"s_waitcnt vmcnt({n * (AHEAD - 2)})")
                k("s_barrier")
            WS_ = [58, 59, 60, 61, 62, 63, 64, 54]
            r = jobs.Rec(); rq = jobs.RecQ(r)
            st_ = jobs.wo_loads(r, rq, 40, s_tile, 8, vlane, WS_, s_wq)
            r.ev += [('brk',), ('brk',)]
            for y in jobs.wo_job(r, rq, st_, 44, vlane, vn, vg, JLB, WS_, s_wq, ' sc1'): r.ev.append(('brk',))
            r.ev += [('brk',), ('brk',), ('brk',), ('brk',)]
            r(f"s_lshl_b32 s60, s59, 8"); r(f"s_add_u32 s60, s60, {CWO}")
            r(f"s_cmp_eq_u32 s{s_wq}, 0"); r(f"s_cselect_b32 s60, s60, {OOB}")
            r(f"v_mov_b32 v{vt}, s60"); r(f"v_mov_b32 v{vt2}, 1")
            r("s_mov_b64 exec, 1")
            rq(f"buffer_atomic_add v{vt2}, v{vt}, s[{sWS}:{sWS+3}], 0 offen sc1", "arr")
            r("s_mov_b64 exec, -1")
            ch = jobs.chunk(r.ev, 90)
            assert 6 + 2 + 2 * len(ch) <= 31, len(ch)
            for _ in range(2): interval([])
            Lj = k.label('wo')
            k(f"{Lj}:")
            Q = VMQ(k)
            for c in ch: interval(c)
            k(f"s_add_u32 s{s_tile}, s{s_tile}, 256")
            k(f"s_cmp_lt_u32 s{s_tile}, 288")
            k(f"s_cbranch_scc1 {Lj}")
            Ll = k.label('lloop2')
            k(f"{Ll}:")
            dma()
            k(f"s_add_u32 s{s_cnt}, s{s_cnt}, 1")
            k(f"s_cmp_lt_u32 s{s_cnt}, 32")
            k(f"s_waitcnt vmcnt({n * (AHEAD - 2)})")
            k("s_barrier")
            k(f"s_cbranch_scc1 {Ll}")
            for q in range(30, 33):
                k(f"s_waitcnt vmcnt({n * max(31 - q, 0)})")
                k("s_barrier")
        Ljoin = k.label('ljoin2')
        k(f"s_lshl_b32 s{s_kz}, s{s_rb}, 2"); k(f"s_add_u32 s{s_kz}, s{s_kz}, s{s_wq}"); k(f"s_add_u32 s{s_kz}, s{s_kz}, 8"); k(f"s_and_b32 s{s_kz}, s{s_kz}, 63")
        k(f"s_cmp_eq_u32 s{s_wq}, 0"); k(f"s_cselect_b32 s{s_off}, {8 * ZU}, 0")
        def dmaz():
            k(f"s_lshr_b32 s{s_blk}, s{s_kz}, 2")
            need_block()
            k(f"s_mul_i32 s{s_t2}, s{s_kz}, {ZU}")
            zunit(s_t2, s_off)
            k(f"s_add_u32 s{s_off}, s{s_off}, {2 * ZU}")
            k(f"s_add_u32 s{s_kz}, s{s_kz}, 2"); k(f"s_and_b32 s{s_kz}, s{s_kz}, 63")
            k(f"s_cmp_ge_u32 s{s_off}, {ZRING}"); k(f"s_cselect_b32 s{s_tmp}, {ZRING}, 0"); k(f"s_sub_u32 s{s_off}, s{s_off}, s{s_tmp}")
        loader(dmaz, 9, True)
        k(f"s_branch {Ljoin}")
        k(f"{LW}:")
        k(f"s_lshl_b32 s{s_kw}, s{s_rb}, 8"); k(f"s_add_u32 s{s_kw}, s{s_kw}, 512"); k(f"s_and_b32 s{s_kw}, s{s_kw}, 0xfff")
        k(f"s_sub_u32 s{s_tmp}, s{s_wq}, 2")
        k(f"s_lshl_b32 s{s_m0w}, s{s_tmp}, 13"); k(f"s_add_u32 s{s_m0w}, s{s_m0w}, {ZRING}")
        k(f"s_lshl_b32 s{s_tmp}, s{s_tmp}, 6"); k(f"s_add_u32 s{s_tmp}, s{s_tmp}, s{s_t0}")
        k(f"v_lshrrev_b32 v{vt}, 3, v{vlane}")
        k(f"v_and_b32 v{vt2}, 3, v{vt}")
        k(f"v_xor_b32 v{vt2}, v{vt2}, v{vlane}")
        k(f"v_and_b32 v{vt2}, 7, v{vt2}")
        k(f"v_add_u32 v{vt}, s{s_tmp}, v{vt}")
        k(f"v_lshlrev_b32 v{vt}, 12, v{vt}")
        for j in range(8):
            k(f"v_xor_b32 v{vt3}, {4 * (j & 1)}, v{vt2}")
            k(f"v_lshl_add_u32 v{vt3}, v{vt3}, 4, v{vt}")
            k(f"v_add_u32 v{vDw[j]}, {BIAS + j * 8 * 4096 - (j % 4) * 1024}, v{vt3}")
        def dmaw():
            k(f"s_add_u32 m0, s{s_m0w}, s{s_offw}")
            k(f"s_add_u32 s{s_tmp}, s{s_m0w}, 4096")
            for j in range(4):
                k(f"buffer_load_dwordx4 v{vDw[j]}, s[{sW}:{sW+3}], s{s_kw} offen offset:{j * 1024} lds")
            k(f"s_add_u32 m0, s{s_tmp}, s{s_offw}")
            k(f"s_add_u32 s{s_offw}, s{s_offw}, {WSL}")
            k(f"s_and_b32 s{s_offw}, s{s_offw}, {4 * WSL - 1}")
            for j in range(4, 8):
                k(f"buffer_load_dwordx4 v{vDw[j]}, s[{sW}:{sW+3}], s{s_kw} offen offset:{(j % 4) * 1024} lds")
            k(f"s_add_u32 s{s_kw}, s{s_kw}, 128"); k(f"s_and_b32 s{s_kw}, s{s_kw}, 0xfff")
        loader(dmaw, 8, False)
        k(f"{Ljoin}:")
        k(f"s_lshl_b32 s{s_tmp}, s{s_wq}, 13"); k(f"s_add_u32 s{s_tmp}, s{s_tmp}, {HOB}")
        k(f"v_add_u32 v{vt}, s{s_tmp}, v{vl16}")
        k("s_barrier")
        k("s_barrier")
        for j in range(8): k(f"ds_read_b128 {v(acc + 4 * j, 4)}, v{vt} offset:{j * 1024}")
        self.conv_pre(k)
        k("s_waitcnt lgkmcnt(0)")
        epi2([0, 1, 2, 3], False)
        k(f"{Lepi2}:")
        st(4)
        self.phase3(k, st, Lend)

    def ids3(self, k):
        s_tb, s_db, s_k, s_d0, s_dt0, s_t0_, s_nt, s_odd = 52, 53, 38, 35, 36, 37, 56, 57
        k(f"s_and_b32 s{s_tmp}, s2, 3"); k(f"s_lshl_b32 s{s_tmp}, s{s_tmp}, 3")
        k(f"s_bfe_u32 s{s_tb}, s2, 0x30003"); k(f"s_add_u32 s{s_tb}, s{s_tb}, s{s_tmp}")
        k(f"s_bfe_u32 s{s_tmp}, s2, 0x10002"); k(f"s_lshl_b32 s{s_tmp}, s{s_tmp}, 2")
        k(f"s_lshr_b32 s{s_db}, s2, 6"); k(f"s_add_u32 s{s_db}, s{s_db}, s{s_tmp}")
        k(f"s_lshr_b32 s{s_tmp}, s{s_db}, 1"); k(f"s_mul_i32 s{s_dt0}, s{s_tmp}, 9")
        k(f"s_and_b32 s{s_odd}, s{s_db}, 1"); k(f"s_mul_i32 s{s_tmp}, s{s_odd}, 5"); k(f"s_add_u32 s{s_dt0}, s{s_dt0}, s{s_tmp}")
        k(f"s_lshl_b32 s{s_d0}, s{s_dt0}, 4")
        k(f"s_lshl_b32 s{s_t0_}, s{s_tb}, 6")

    def conv_pre(self, k):
        s_tb, s_db, s_odd = 52, 53, 57
        self.ids3(k)
        k(f"s_load_dwordx4 s[60:63], s[0:1], {KA['ssmk']}")
        k(f"s_lshl_b32 s59, s{s_tb}, 2"); k(f"s_lshr_b32 s{s_tmp}, s{s_db}, 1"); k(f"s_add_u32 s59, s59, s{s_tmp}")
        k(f"s_lshl_b32 s54, s59, 2"); k(f"s_add_u32 s54, s54, s{s_wq}")
        k(f"s_add_u32 s55, s59, 512")
        k(f"s_cmp_lt_u32 s59, 64"); k(f"s_cselect_b32 s55, s55, 9999")
        k(f"s_cmp_eq_u32 s{s_wq}, 0"); k(f"s_cselect_b32 s55, s55, 9999")
        k(f"s_cmp_eq_u32 s{s_odd}, 1"); k(f"s_cselect_b32 s54, s54, s55")
        k(f"s_mul_i32 s55, s{s_wq}, {CONV_LDS}")
        k("s_waitcnt lgkmcnt(0)")
        srd(k, 8, 60, 61, 0, 576 * 4096)
        srd(k, 12, 42, 43, WS_KVT, 576 * 4096)
        srd(k, 16, 62, 63, 0, 1152)
        Lnc = k.label('nopre')
        k(f"s_cmp_ge_u32 s54, 576"); k(f"s_cbranch_scc1 {Lnc}")
        k(f"s_mul_i32 s61, s54, 911"); k(f"s_lshr_b32 s61, s61, 16"); k(f"s_lshl_b32 s61, s61, 8"); k(f"s_add_u32 s61, s61, {CKV}")
        self.poll(k, [(61, 32)], vt, vt2, vt3)
        conv_loads(k, 54, 55, 8, 12, vl16, s_tmp)
        k(f"{Lnc}:")

    def phase3(self, k, st, Lend):
        opts = self.opts
        XT = 4 * CONV_LDS; YT = XT + 10240
        sP, sWF, sX, sY, sO = 8, 12, 16, 20, 24
        s_tb, s_db, s_k, s_d0, s_dt0, s_t0_, s_nt, s_odd = 52, 53, 38, 35, 36, 37, 56, 57
        Lconv = k.label('conv'); L4 = k.label('nt4')
        k(f"s_load_dwordx2 s[4:5], s[0:1], {KA['q']}")
        k(f"s_load_dwordx2 s[6:7], s[0:1], {KA['out']}")
        k(f"s_lshl_b32 s60, s{s_rb}, 8"); k(f"s_add_u32 s60, s60, {CP}")
        k(f"s_lshl_b32 s{s_tmp}, s{s_fb}, 2"); k(f"s_add_u32 s60, s60, s{s_tmp}")
        self.ids3(k)
        srd(k, sY, 42, 43, WS_YT, 576 * 4096)
        k("s_waitcnt lgkmcnt(0)")
        k(f"s_cmp_ge_u32 s{s_wave}, 4"); k(f"s_cbranch_scc1 {Lconv}")
        va = Alloc(8)
        srd(k, sP, 42, 43, WS_P, 2048 * 2304 * 2) if False else None
        vP = [va.get() for _ in range(4)]; vW = [va.get() for _ in range(5)]
        vst = va.get(2, 2); acc = va.get(80, 4); buf = va.get(144, 4)
        assert va.n <= 256
        self.arrive(k, LC2 + 4, [60], vt, vt2)
        srd(k, sP, 42, 43, WS_P, 2048 * 2304 * 2)
        srd(k, sWF, 42, 43, WS_WOT, 2304 * 1152)
        srd(k, sX, 4, 5, 0, 2048 * 1152)
        srd(k, sO, 6, 7, 0, 2048 * 1152)
        k(f"s_lshr_b32 s{s_nt}, s{s_wave}, 1"); k(f"s_lshl_b32 s{s_nt}, s{s_nt}, 5"); k(f"s_and_b32 s{s_tmp}, s{s_wave}, 1"); k(f"s_lshl_b32 s{s_tmp}, s{s_tmp}, 2")
        k(f"s_add_u32 s{s_nt}, s{s_nt}, s{s_tmp}"); k(f"s_add_u32 s{s_nt}, s{s_nt}, s{s_t0_}")
        k(f"s_mul_i32 s{s_k}, s{s_wave}, {18 * 1024}")
        k(f"s_mul_i32 s{s_tmp}, s{s_tb}, {4 * 73728}")
        for j in range(4):
            k(f"v_add_u32 v{vP[j]}, s{s_tmp}, v{vl16}")
            if j < 3: k(f"s_add_u32 s{s_tmp}, s{s_tmp}, 73728")
        k(f"s_mul_i32 s{s_tmp}, s{s_dt0}, 73728")
        for j in range(5):
            k(f"v_add_u32 v{vW[j]}, s{s_tmp}, v{vl16}")
            if j < 4: k(f"s_add_u32 s{s_tmp}, s{s_tmp}, 73728")
        k(f"s_lshr_b32 s60, s{s_db}, 1"); k(f"s_lshl_b32 s60, s60, 8"); k(f"s_add_u32 s60, s60, {CWO}")
        k(f"s_lshr_b32 s61, s{s_tb}, 1"); k(f"s_lshl_b32 s61, s61, 8")
        k(f"s_add_u32 s62, s61, {CP}"); k(f"s_add_u32 s61, s61, {SY}")
        self.poll(k, [(60, 72), (61, 64)], vt, vt2, vt3)
        k(f"s_cmp_eq_u32 s{s_odd}, 1"); k(f"s_cbranch_scc1 {L4}")
        def gemm(NT):
            NL = 4 + NT
            def wl(slot, blk): return [f"buffer_load_dwordx4 {v(buf + slot * 36 + 16 + 4 * j, 4)}, v{vW[j]}, s[{sWF}:{sWF+3}], s{s_k} offen offset:{1024 * blk} sc1" for j in range(NT)]
            def pl(slot, blk): return [f"buffer_load_dwordx4 {v(buf + slot * 36 + 4 * j, 4)}, v{vP[j]}, s[{sP}:{sP+3}], s{s_k} offen offset:{1024 * blk} sc1" for j in range(4)]
            def loads(slot, blk):
                a_, b_ = wl(slot, blk), pl(slot, blk); L = []
                for j in range(max(4, NT)):
                    if j < NT: L.append(a_[j])
                    if j < 4: L.append(b_[j])
                return L
            for sl in range(3):
                for x in wl(sl, sl): k(x)
            W16 = 2 * NT
            k(f"s_mov_b32 s54, {65536 // 10 + 1}")
            for j in range(3):
                k(f"v_add_u32 v{vt}, {64 * j}, v{vlane}")
                k(f"v_mul_lo_u32 v{vt2}, v{vt}, s54")
                k(f"v_lshrrev_b32 v{vt2}, 16, v{vt2}")
                k(f"v_mul_u32_u24 v{acc}, 10, v{vt2}")
                k(f"v_sub_u32 v{acc}, v{vt}, v{acc}")
                k(f"v_and_b32 v{acc + 1}, 12, v{vt2}")
                k(f"v_add_u32 v{vt2}, v{vt2}, v{acc + 1}")
                k(f"v_mul_u32_u24 v{vt2}, 1152, v{vt2}")
                k(f"v_lshl_add_u32 v{vt2}, v{acc}, 4, v{vt2}")
                k(f"v_cmp_gt_u32 vcc, {W16}, v{acc}")
                k(f"v_mov_b32 v{acc + 1}, {OOB}")
                k(f"v_cndmask_b32 v{vt2}, v{acc + 1}, v{vt2}, vcc")
                k(f"s_mul_i32 s{s_tmp}, s{s_nt}, 1152"); k(f"s_lshl_b32 s55, s{s_d0}, 1"); k(f"s_add_u32 s{s_tmp}, s{s_tmp}, s55")
                k(f"s_mul_i32 s55, s{s_wave}, 2560"); k(f"s_add_u32 m0, s55, {XT + 1024 * j}")
                if j == 2: k("s_mov_b32 exec_hi, 0")
                k(f"buffer_load_dwordx4 v{vt2}, s[{sX}:{sX+3}], s{s_tmp} offen lds")
                if j == 2: k("s_mov_b32 exec_hi, -1")
            k(f"s_lshl_b32 s{s_tmp}, s{s_nt}, 3"); k(f"s_add_u32 s{s_tmp}, s{s_tmp}, {XSTAT - WS_STAT}")
            k(f"v_and_b32 v{vt}, 12, v{vn}"); k(f"v_add_u32 v{vt}, v{vt}, v{vn}")
            k(f"v_lshlrev_b32 v{vt}, 3, v{vt}")
            k(f"buffer_load_dwordx2 {v(vst, 2)}, v{vt}, s[{sWS}:{sWS+3}], s{s_tmp} offen sc1")
            for i in range(16 * NT): k(f"v_mov_b32 v{acc + i}, 0")
            k(f"s_mov_b32 s{s_cnt}, 0")
            k(f"s_lshl_b32 s{s_tmp}, s{s_wave}, 4"); k(f"s_add_u32 s62, s62, s{s_tmp}")
            k(f"s_add_u32 s63, s62, 4"); k(f"s_add_u32 s60, s62, 8"); k(f"s_add_u32 s61, s62, 12")
            self.poll(k, [(62, 1), (63, 1), (60, 1), (61, 1)], vt, vt2, vt3)
            st(5)
            for sl in range(3):
                for x in pl(sl, sl): k(x)
            def block(i, imm, wait, do_load=True):
                sl = i % 4
                k(f"s_waitcnt vmcnt({wait})")
                nl = loads((i + 3) % 4, imm) if do_load else []
                for mi, (dl, tl) in enumerate([(dl, tl) for dl in range(NT) for tl in range(4)]):
                    if mi < len(nl): k(nl[mi])
                    C = v(acc + (tl * NT + dl) * 4, 4)
                    k(f"v_mfma_f32_16x16x32_bf16 {C}, {v(buf + sl * 36 + 16 + 4 * dl, 4)}, {v(buf + sl * 36 + 4 * tl, 4)}, {C}")
            block(0, 3, 8)
            k(f"s_add_u32 s{s_k}, s{s_k}, 4096")
            block(1, 0, 4 + NL)
            block(2, 1, 2 * NL)
            L = k.label('gloop')
            k(f"{L}:")
            block(3, 2, 2 * NL); block(4, 3, 2 * NL)
            k(f"s_add_u32 s{s_k}, s{s_k}, 4096")
            block(5, 0, 2 * NL); block(6, 1, 2 * NL)
            k(f"s_add_u32 s{s_cnt}, s{s_cnt}, 1")
            k(f"s_cmp_lt_u32 s{s_cnt}, 3")
            k(f"s_cbranch_scc1 {L}")
            block(15, 0, 2 * NL, False); block(16, 0, NL, False); block(17, 0, 0, False)
            st(6)
            k("s_barrier")
            k(f"s_mul_i32 s{s_tmp}, s{s_wave}, 20480")
            k(f"v_add_u32 v{vt}, s{s_tmp}, v{vl16}")
            for i in range(4 * NT):
                if i == 14: k("s_waitcnt lgkmcnt(6)")
                tl, dl = divmod(i, NT)
                k(f"ds_write_b128 v{vt}, {v(acc + 4 * i, 4)} offset:{(tl * 5 + dl) * 1024}")
            Lp = k.label('poll')
            k(f"s_lshl_b32 s{s_tmp}, s{s_dt0}, 8"); k(f"s_add_u32 s{s_tmp}, s{s_tmp}, {CY}")
            k(f"v_lshlrev_b32 v{vt2}, 8, v{vlane}")
            k(f"v_mov_b32 v{buf}, {OOB}")
            k(f"v_cmp_gt_u32 vcc, {NT}, v{vlane}")
            k(f"v_cndmask_b32 v{vt2}, v{buf}, v{vt2}, vcc")
            k(f"{Lp}:")
            k(f"buffer_load_dword v{buf}, v{vt2}, s[{sWS}:{sWS+3}], s{s_tmp} offen sc1")
            k("s_waitcnt vmcnt(0)")
            k(f"v_cmp_gt_u32 vcc, 16, v{buf}")
            k(f"s_and_b32 s55, vcc_lo, {(1 << NT) - 1}")
            k(f"s_cmp_lg_u32 s55, 0")
            k(f"s_cbranch_scc1 {Lp}")
            k(f"v_lshrrev_b32 v{vt2}, 2, v{vlane}")
            k(f"v_lshlrev_b32 v{buf}, 12, v{vt2}")
            k(f"v_and_b32 v{buf + 1}, 3, v{vlane}")
            k(f"v_lshl_add_u32 v{buf}, v{buf + 1}, 4, v{buf}")
            k(f"s_lshl_b32 s{s_tmp}, s{s_d0}, 12")
            k(f"s_lshr_b32 s55, s{s_wave}, 1"); k(f"s_lshl_b32 s55, s55, 6"); k(f"s_add_u32 s{s_tmp}, s{s_tmp}, s55")
            k(f"s_lshl_b32 s55, s{s_t0_}, 1"); k(f"s_add_u32 s{s_tmp}, s{s_tmp}, s55")
            for j in range(NT):
                k(f"buffer_load_dwordx4 {v(buf + 4 + 4 * j, 4)}, v{buf}, s[{sY}:{sY+3}], s{s_tmp} offen sc1")
                if j + 1 < NT: k(f"s_add_u32 s{s_tmp}, s{s_tmp}, {16 * 4096}")
            k(f"s_mul_i32 s54, s{s_wave}, 5120")
            k(f"s_mul_i32 s55, s{s_wave}, 2560")
            k(f"v_add_u32 v{vt2}, s54, v{vl16}")
            k(f"v_add_u32 v{vt2}, {YT}, v{vt2}")
            k("s_waitcnt lgkmcnt(0)")
            for j in range(NT):
                k(f"s_waitcnt vmcnt({NT - 1 - j})")
                k(f"ds_write_b128 v{vt2}, {v(buf + 4 + 4 * j, 4)} offset:{1024 * j}")
            k("s_waitcnt lgkmcnt(0)")
            k("s_barrier")
            X = buf; Y = buf + 4; O = buf + 8; T = buf + 12; S = buf + 16; rd_ = buf + 24
            k(f"s_mul_i32 s{s_tmp}, s{s_wave}, 5120")
            k(f"v_add_u32 v{vt}, s{s_tmp}, v{vl16}")
            k(f"v_add_u32 v{vP[1]}, 61440, v{vt}")
            k(f"v_lshrrev_b32 v{vt2}, 2, v{vn}")
            k(f"v_lshl_add_u32 v{vt2}, v{vg}, 2, v{vt2}")
            k(f"v_lshlrev_b32 v{vt2}, 6, v{vt2}")
            k(f"v_and_b32 v{T}, 3, v{vn}")
            k(f"v_lshl_add_u32 v{vt2}, v{T}, 4, v{vt2}")
            k(f"s_and_b32 s58, s{s_wave}, 1"); k(f"s_lshl_b32 s58, s58, 3"); k(f"s_add_u32 s54, s54, s58")
            k(f"v_add_u32 v{vt2}, s54, v{vt2}")
            k(f"v_add_u32 v{vW[1]}, {YT}, v{vt2}")
            vx = vW[2]
            k(f"v_mul_u32_u24 v{vx}, 160, v{vn}")
            k(f"v_lshl_add_u32 v{vx}, v{vg}, 3, v{vx}")
            k(f"v_add_u32 v{vx}, s55, v{vx}")
            k(f"v_add_u32 v{vx}, {XT}, v{vx}")
            k(f"s_mov_b32 s54, {hex(f2u(-LOG2E))}")
            for dl in range(NT):
                for w in range(4):
                    k(f"ds_read_b128 {v(rd_ + 4 * w, 4)}, v{vt if w < 3 else vP[1]} offset:{(w % 3) * 20480 + dl * 1024}")
                k(f"ds_read_b64_tr_b16 {v(S, 2)}, v{vW[1]} offset:{dl * 1024}")
                k(f"ds_read_b64 {v(S + 2, 2)}, v{vW[2]} offset:{dl * 32}")
                k("s_waitcnt lgkmcnt(0)")
                for r in range(4): k(f"v_add_f32 v{O + r}, v{rd_ + r}, v{rd_ + 4 + r}")
                for r in range(4): k(f"v_add_f32 v{T + r}, v{rd_ + 8 + r}, v{rd_ + 12 + r}")
                for r in range(4): k(f"v_add_f32 v{O + r}, v{O + r}, v{T + r}")
                OL = [O + r for r in range(4)]; TL = [T + r for r in range(4)]
                rnd_n(k, OL, TL)
                for r in range(4): k(f"v_mul_f32 v{T + r}, s54, v{O + r}")
                for r in range(4): k(f"v_exp_f32 v{T + r}, v{T + r}")
                for j in range(2):
                    k(f"v_lshlrev_b32 v{Y + 2 * j}, 16, v{S + j}"); k(f"v_and_b32 v{Y + 2 * j + 1}, 0xffff0000, v{S + j}")
                    k(f"v_lshlrev_b32 v{X + 2 * j}, 16, v{S + 2 + j}"); k(f"v_and_b32 v{X + 2 * j + 1}, 0xffff0000, v{S + 2 + j}")
                for r in range(4): k(f"v_add_f32 v{T + r}, 1.0, v{T + r}")
                for r in range(4): k(f"v_rcp_f32 v{T + r}, v{T + r}")
                XN = [rd_ + r for r in range(4)]; T2 = [rd_ + 4 + r for r in range(4)]
                for r in range(4): k(f"v_sub_f32 v{XN[r]}, v{X + r}, v{vst}")
                for r in range(4): k(f"v_mul_f32 v{O + r}, v{O + r}, v{T + r}")
                rnd_n(k, XN, T2)
                rnd_n(k, OL, TL)
                for r in range(4): k(f"v_mul_f32 v{XN[r]}, v{XN[r]}, v{vst + 1}")
                rnd_n(k, XN, T2)
                for r in range(4): k(f"v_mul_f32 v{XN[r]}, v{XN[r]}, v{Y + r}")
                rnd_n(k, XN, T2)
                for r in range(4): k(f"v_mul_f32 v{XN[r]}, v{XN[r]}, v{O + r}")
                rnd_n(k, XN, T2)
                for r in range(4): k(f"v_add_f32 v{XN[r]}, v{XN[r]}, v{X + r}")
                k(f"v_cvt_pk_bf16_f32 v{S + 4}, v{XN[0]}, v{XN[1]}")
                k(f"v_cvt_pk_bf16_f32 v{S + 5}, v{XN[2]}, v{XN[3]}")
                k(f"ds_write_b64 v{vW[2]}, {v(S + 4, 2)} offset:{dl * 32}")
            k("s_waitcnt lgkmcnt(0)")
            k(f"s_mov_b32 s54, {65536 // 10 + 1}")
            k(f"s_mul_i32 s{s_tmp}, s{s_nt}, 1152"); k(f"s_lshl_b32 s{s_k}, s{s_d0}, 1"); k(f"s_add_u32 s{s_tmp}, s{s_tmp}, s{s_k}")
            k(f"v_add_u32 v{vW[3]}, s55, v{vl16}")
            k(f"v_add_u32 v{vW[3]}, {XT}, v{vW[3]}")
            for j in range(3): k(f"ds_read_b128 {v(rd_ + 4 * j, 4)}, v{vW[3]} offset:{1024 * j}")
            for j in range(3):
                k(f"v_add_u32 v{vt}, {64 * j}, v{vlane}")
                k(f"v_mul_lo_u32 v{vt2}, v{vt}, s54")
                k(f"v_lshrrev_b32 v{vt2}, 16, v{vt2}")
                k(f"v_mul_u32_u24 v{T}, 10, v{vt2}")
                k(f"v_sub_u32 v{T}, v{vt}, v{T}")
                k(f"v_and_b32 v{T + 1}, 12, v{vt2}")
                k(f"v_add_u32 v{vt2}, v{vt2}, v{T + 1}")
                k(f"v_mul_u32_u24 v{vt2}, 1152, v{vt2}")
                k(f"v_lshl_add_u32 v{vt2}, v{T}, 4, v{vt2}")
                k(f"v_cmp_gt_u32 vcc, {W16}, v{T}")
                k(f"v_mov_b32 v{T + 1}, {OOB}")
                k(f"v_cndmask_b32 v{vt2}, v{T + 1}, v{vt2}, vcc")
                if j == 2:
                    k(f"v_cmp_gt_u32 vcc, 32, v{vlane}")
                    k(f"v_cndmask_b32 v{vt2}, v{T + 1}, v{vt2}, vcc")
                k(f"s_waitcnt lgkmcnt({2 - j})")
                k(f"buffer_store_dwordx4 {v(rd_ + 4 * j, 4)}, v{vt2}, s[{sO}:{sO+3}], s{s_tmp} offen")
            st.flush(Lend, vt)
            k("s_endpgm")
        gemm(5)
        k(f"{L4}:")
        gemm(4)
        k(f"{Lconv}:")
        Lnc = k.label('noconv')
        k(f"s_cmp_ge_u32 s54, 576"); k(f"s_cbranch_scc1 {Lnc}")
        conv_wave(k, Alloc(8), 54, 55, 8, 12, 16, sY, vlane, vn, vg, s_tmp, s_cnt, sc1=True, opts=['nobar', 'usc1', 'preloaded'], st=lambda i: None,
                  prewait=5, mid=lambda: self.arrive(k, LC2 + 4, [60], vt, vt2))
        k("s_waitcnt vmcnt(0)")
        k(f"s_lshr_b32 s{s_tmp}, s54, 4"); k(f"s_lshl_b32 s{s_tmp}, s{s_tmp}, 8"); k(f"s_add_u32 s{s_tmp}, s{s_tmp}, {CY}")
        k(f"v_mov_b32 v{vt}, s{s_tmp}"); k(f"v_mov_b32 v{vt2}, 1")
        k("s_mov_b64 exec, 1")
        k(f"buffer_atomic_add v{vt2}, v{vt}, s[{sWS}:{sWS+3}], 0 offen sc1")
        st.flush(Lend, vt)
        k("s_endpgm")
        k(f"{Lnc}:")
        self.arrive(k, LC2 + 4, [60], vt, vt2)

def gen_mega(name, opts=()):
    k = gen_k1(name=name, opts=opts, fused=Fused(opts))
    k.lds = LC2 + 64
    return k

if __name__ == "__main__":
    import sys
    NAME = "recurrent_scan__ssm_conv_h3__mixer_gmlp__prompt_kernel"
    HEADER = open('recurrent_scan__ssm_conv_h3__mixer_gmlp__prompt.s.ref').read().split('; Override launch')[0].rstrip('\n').split('\n')
    k = gen_mega(NAME, sys.argv[2:])
    build_file(HEADER, [(k, 256, 512, k.lds)], [k], sys.argv[1])
```

```python
from asmgen import *

WS_Z1   = 0x0000000
WS_Z2T  = 0x1000000
WS_P    = 0x2000000
WS_XN   = 0x3000000
WS_KVT  = 0x3400000
WS_YT   = 0x3800000
WS_WOT  = 0x3C00000
WS_STAT = 0x4000000
WS_STAMP = 0x4800000
WS_SIZE = 268435456

KA = dict(q=0, k=8, v=16, shk=24, ssmk=32, ssmD=40, bx=48, win=56, wsp=64, bsp=72, wout=80, out=88, dbg=96, ws=104)

def srd(k, sr, base_lo, base_hi, off, size):
    if off == 0:
        k(f"s_mov_b32 s{sr}, s{base_lo}")
        k(f"s_mov_b32 s{sr+1}, s{base_hi}")
    elif off > 0:
        k(f"s_add_u32 s{sr}, s{base_lo}, {off}")
        k(f"s_addc_u32 s{sr+1}, s{base_hi}, 0")
    else:
        k(f"s_sub_u32 s{sr}, s{base_lo}, {-off}")
        k(f"s_subb_u32 s{sr+1}, s{base_hi}, 0")
    k(f"s_mov_b32 s{sr+2}, {size}")
    k(f"s_mov_b32 s{sr+3}, 0x20000")

def rnd2(k, x0, x1, tmp):
    k(f"v_cvt_pk_bf16_f32 v{tmp}, v{x0}, v{x1}")
    k(f"v_lshlrev_b32 v{x0}, 16, v{tmp}")
    k(f"v_and_b32 v{x1}, 0xffff0000, v{tmp}")


class Stamps:
    def __init__(self, k, on, s_wave, wg=77, span=None):
        self.k = k; self.on = on; self.n = 0; self.s_wave = s_wave; self.wg = wg; self.span = span; self.g = False
        if span is not None:
            k(f"s_load_dwordx2 s[68:69], s[0:1], {KA['ws']}")
            k("s_memrealtime s[96:97]")
        if on:
            k(f"s_load_dwordx2 s[68:69], s[0:1], {KA['ws']}")
            k("s_memrealtime s[96:97]")
    def __call__(self, idx):
        if self.on:
            self.k(f"{'s_memrealtime' if self.g else 's_memtime'} s[{70 + 2 * idx}:{71 + 2 * idx}]")
    def flush(self, Lend, vtmp):
        if self.span is not None:
            span_end(self.k, True, self.s_wave, 2, self.span)
        if not self.on: return
        k = self.k
        if self.g:
            k("s_waitcnt vmcnt(0)")
            k("s_memrealtime s[84:85]")
            k("s_waitcnt lgkmcnt(0)")
            srd(k, 88, 68, 69, WS_STAMP + 0x1000, 0x40000)
            k(f"s_lshl_b32 s92, s2, 3"); k(f"s_add_u32 s92, s92, s{self.s_wave}"); k("s_lshl_b32 s92, s92, 5")
            k(f"v_mov_b32 v{vtmp}, s92")
            k("s_mov_b64 exec, 1")
            for i in range(8):
                k(f"v_mov_b32 v{vtmp + 1}, s{70 + 2 * i}")
                k(f"buffer_store_dword v{vtmp + 1}, v{vtmp}, s[88:91], 0 offen offset:{4 * i}")
            return
        k("s_waitcnt vmcnt(0)")
        k("s_memtime s[84:85]")
        k("s_memrealtime s[98:99]")
        k("s_waitcnt lgkmcnt(0)")
        k("s_sub_u32 s98, s98, s96")
        k(f"s_cmp_lg_u32 s2, {self.wg}")
        k(f"s_cbranch_scc1 {Lend}")
        srd(k, 88, 68, 69, WS_STAMP, 256)
        k(f"s_lshl_b32 s92, s{self.s_wave}, 5")
        k(f"v_mov_b32 v{vtmp}, s92")
        k("s_mov_b64 exec, 1")
        for i in range(1, 8):
            k(f"s_sub_u32 s93, s{70 + 2 * i}, s70")
            k(f"v_mov_b32 v{vtmp + 1}, s93")
            k(f"buffer_store_dword v{vtmp + 1}, v{vtmp}, s[88:91], 0 offen offset:{4 * i}")
        k(f"v_mov_b32 v{vtmp + 1}, s98")
        k(f"buffer_store_dword v{vtmp + 1}, v{vtmp}, s[88:91], 0 offen")


def span_begin(k, on):
    if on:
        k(f"s_load_dwordx2 s[68:69], s[0:1], {KA['ws']}")
        k("s_memrealtime s[96:97]")
def span_end(k, on, s_wave, vt, slot):
    if not on: return
    k("s_waitcnt vmcnt(0)")
    k("s_memrealtime s[98:99]")
    k("s_waitcnt lgkmcnt(0)")
    srd(k, 88, 68, 69, WS_STAMP + 0x1000 + slot * 0x10000, 0x10000)
    k(f"s_lshl_b32 s92, s2, 4"); k(f"s_add_u32 s92, s92, s{s_wave}"); k("s_lshl_b32 s92, s92, 3")
    k(f"v_mov_b32 v{vt}, s92"); k(f"v_mov_b32 v{vt + 1}, s96"); k(f"v_mov_b32 v{vt + 2}, s98")
    k("s_mov_b64 exec, 1")
    k(f"buffer_store_dword v{vt + 1}, v{vt}, s[88:91], 0 offen")
    k(f"buffer_store_dword v{vt + 2}, v{vt}, s[88:91], 0 offen offset:4")


class DbgSpan:
    def __init__(self, k, s_wave):
        self.k = k; self.s_wave = s_wave; self.on = False; self.g = False
        k(f"s_load_dwordx2 s[68:69], s[0:1], {KA['dbg']}")
        k("s_memrealtime s[70:71]")
    def __call__(self, idx):
        if idx: self.k(f"s_memrealtime s[{70 + 2 * idx}:{71 + 2 * idx}]")
    def flush(self, Lend, vt):
        k = self.k
        k("s_waitcnt vmcnt(0)")
        k("s_memrealtime s[84:85]")
        k("s_waitcnt lgkmcnt(0)")
        k(f"s_cmp_lg_u32 s{self.s_wave}, 0"); k(f"s_cbranch_scc1 {Lend}")
        srd(k, 88, 68, 69, 0, 256)
        k("s_not_b32 s70, s70")
        k(f"v_mov_b32 v{vt}, s70")
        for i in range(1, 8): k(f"v_writelane_b32 v{vt}, s{70 + 2 * i}, {i}")
        k(f"v_lshlrev_b32 v{vt + 1}, 2, v1")
        k("s_mov_b64 exec, 255")
        k(f"buffer_atomic_umax v{vt}, v{vt + 1}, s[88:91], 0 offen offset:8 sc1")


def code_touch(k, emit, Lfrom, Lend, nbytes, s4, s_off, s_wq, vaddr, vdst, vlane):
    Lpc = k.label('pc')
    per = (nbytes + 4 * 8192 - 1) // (4 * 8192)
    k(f"s_getpc_b64 s[{s4}:{s4+1}]")
    k(f"{Lpc}:")
    k(f"s_mov_b32 s{s4+2}, {Lend}-{Lpc}"); k(f"s_mov_b32 s{s4+3}, 0x20000")
    k(f"s_mul_i32 s{s_off}, s{s_wq}, {per * 8192}"); k(f"s_add_u32 s{s_off}, s{s_off}, {Lfrom}-{Lpc}")
    k(f"v_lshlrev_b32 v{vaddr}, 7, v{vlane}")
    for j in range(per):
        emit(f"buffer_load_dword v{vdst}, v{vaddr}, s[{s4}:{s4+3}], s{s_off} offen")
        if j + 1 < per: k(f"s_add_u32 s{s_off}, s{s_off}, 8192")
```

```python
from common import *
def gen(name, unrolled, n=4096, op='pk'):
    k = Kernel(name); k.check = False
    Lend = k.label('end')
    k("s_cmp_ge_u32 s2, 256"); k(f"s_cbranch_scc1 {Lend}")
    k(f"s_load_dwordx2 s[4:5], s[0:1], {KA['ws']}")
    k("v_lshrrev_b32 v1, 6, v0"); k("s_nop 0"); k("v_readfirstlane_b32 s20, v1")
    for i in range(8, 80): k(f"v_mov_b32 v{i}, 1.0")
    k("s_waitcnt lgkmcnt(0)")
    srd(k, 8, 4, 5, WS_STAMP, 256)
    k("s_mov_b32 s25, 0")
    k("s_barrier")
    k("s_memtime s[30:31]")
    def body(m):
        for u in range(m):
            r = 8 + (u % 16) * 4
            if op == 'pk': k(f"v_pk_fma_f32 {v(r,2)}, {v(r,2)}, v[72:73], v[74:75]")
            else: k(f"v_mfma_f32_16x16x32_bf16 {v(r,4)}, v[72:75], v[76:79], {v(r,4)}")
    if unrolled: body(n)
    else:
        L = k.label('l'); k(f"{L}:"); body(64)
        k("s_add_u32 s25, s25, 1"); k(f"s_cmp_lt_u32 s25, {n // 64}"); k(f"s_cbranch_scc1 {L}")
    k("s_memtime s[32:33]"); k("s_waitcnt lgkmcnt(0)"); k("s_sub_u32 s32, s32, s30")
    k("s_cmp_lg_u32 s2, 77"); k(f"s_cbranch_scc1 {Lend}")
    k("s_lshl_b32 s21, s20, 2"); k("v_mov_b32 v2, s21"); k("v_mov_b32 v3, s32"); k("s_mov_b64 exec, 1")
    k("buffer_store_dword v3, v2, s[8:11], 0 offen")
    k(f"{Lend}:"); k("s_endpgm")
    return k
for nm, un, op in (("ic_u_pk", 1, 'pk'), ("ic_l_pk", 0, 'pk'), ("ic_u_mf", 1, 'mf'), ("ic_l_mf", 0, 'mf')):
    k = gen(nm + "_kernel", un, op=op)
    build_file(["; v"], [(k, 256, 256, 0)], [k], nm + ".s")
```
